```python
import torch

def _softmax(x, axis=-1):
    return torch.softmax(x, dim=axis)
def _gelu(x):
    return torch.nn.functional.gelu(x, approximate="tanh")
def _silu(x):
    return torch.nn.functional.silu(x)
def _sigmoid(x):
    return torch.sigmoid(x)
def _layernorm(x, axis=-1, eps=1e-5):
    m = x.mean(dim=axis, keepdim=True)
    v = x.var(dim=axis, keepdim=True, unbiased=False)
    return (x - m) / torch.sqrt(v + eps)
def _scatter_add(tgt, idx, src, axis=0):
    return tgt.clone().index_add_(axis, idx, src)
def _segment_sum(src, seg, n):
    out = torch.zeros((n,) + src.shape[1:], dtype=src.dtype)
    return out.index_add_(0, seg, src)
def _pad(x, pw):
    flat = tuple(v for pair in reversed(pw) for v in pair)
    return torch.nn.functional.pad(x, flat)

kernel_name = 'parallel_sum__mha_block__glu_gated_swiglu__prompt'

def setup_inputs():

    _w = (lambda a: (lambda t: t.to(torch.bfloat16) if t.is_floating_point() else t)(torch.as_tensor(a)))
    def _A_setup():
        B, S, D, H = 1, 2048, 512, 32
        return {
            "x": _w((lambda *s: torch.randn(*s, dtype=torch.bfloat16) * 0.05)(B, S, D)),
            "wqkv": _w((lambda *s: torch.randn(*s, dtype=torch.bfloat16) * 0.05)(D, 3 * D)),
            "wo": _w((lambda *s: torch.randn(*s, dtype=torch.bfloat16) * 0.05)(D, D)),
        }
    _A_in = _A_setup()

    def _B_setup():
        B, S, D, F = 1, 2048, 512, 1376
        return {
            "x": _w((lambda *s: torch.randn(*s, dtype=torch.bfloat16) * 0.05)(B, S, D)),
            "w1": _w((lambda *s: torch.randn(*s, dtype=torch.bfloat16) * 0.4)(D, F) * (2.0 / D) ** 0.5),
            "w3": _w((lambda *s: torch.randn(*s, dtype=torch.bfloat16) * 0.4)(D, F) * (2.0 / D) ** 0.5),
            "w2": _w((lambda *s: torch.randn(*s, dtype=torch.bfloat16) * 0.4)(F, D) * (2.0 / F) ** 0.5),
        }
    _B_in = _B_setup()

    return {
        "A_x": _A_in["x"],
        "A_wqkv": _A_in["wqkv"],
        "A_wo": _A_in["wo"],
        "B_x": _B_in["x"],
        "B_w1": _B_in["w1"],
        "B_w3": _B_in["w3"],
        "B_w2": _B_in["w2"],
    }

def reference(A_x, A_wqkv, A_wo, B_x, B_w1, B_w3, B_w2):
    def _A_ref(x, wqkv, wo):
        B, S, D = x.shape
        H = 32
        Dh = D // H
        qkv = (lambda x, *d: x.permute(*d))((x @ wqkv).reshape(B, S, 3, H, Dh), 2, 0, 3, 1, 4)
        q, k, v = qkv[0], qkv[1], qkv[2]
        scores = torch.einsum("bhqd,bhkd->bhqk", q, k) * (Dh ** -0.5)
        p = _softmax(scores, axis=-1)
        o = torch.einsum("bhqk,bhkd->bhqd", p, v)
        return (lambda x, *d: x.permute(*d))(o, 0, 2, 1, 3).reshape(B, S, D) @ wo

    def _B_ref(x, w1, w3, w2):
        gate = torch.einsum("bsd,df->bsf", x, w1)
        up = torch.einsum("bsd,df->bsf", x, w3)
        h = _silu(gate) * up
        out = torch.einsum("bsf,fd->bsd", h, w2)
        return out

    x = A_x
    xn = _layernorm(x, axis=-1)
    return x + _A_ref(xn, A_wqkv, A_wo) + _B_ref(xn, B_w1, B_w3, B_w2)
```

```python
class Asm:
    def __init__(self):
        self.lines = []
        self.lg = Cnt(self, "lgkmcnt", 15)
        self.vm = Cnt(self, "vmcnt", 63)
        self._lab = 0
    def __call__(self, s):
        for l in s.split("\n"):
            l = l.rstrip()
            if l.strip():
                self.lines.append(l if l.startswith((" ", "\t")) or l.strip().endswith(":") else "  " + l)
    def label(self, name):
        self.lines.append(name + ":")
    def newlabel(self, base):
        self._lab += 1
        return f"{base}_{self._lab}"
    def comment(self, s):
        self.lines.append("  ; " + s)
    def nop(self, n):
        while n > 0:
            k = min(n, 16)
            self.lines.append(f"  s_nop {k-1}")
            n -= k
    def text(self):
        return "\n".join(self.lines) + "\n"

class Cnt:
    def __init__(self, asm, name, maxv):
        self.asm, self.name, self.maxv = asm, name, maxv
        self.q = []
    def reset(self, q=None):
        self.q = list(q or [])
    def issue(self, tag, n=1):
        self.q += [tag] * n
    def count_after(self, tag):
        idx = max(i for i, t in enumerate(self.q) if t == tag)
        return len(self.q) - idx - 1
    def wait(self, *tags):
        idx = -1
        for tag in tags:
            for i, t in enumerate(self.q):
                if t == tag: idx = max(idx, i)
        if idx < 0: return
        n = len(self.q) - idx - 1
        n = min(n, self.maxv)
        self.asm(f"s_waitcnt {self.name}({n})")
        self.q = self.q[len(self.q) - n:] if n > 0 else []
    def waitall(self):
        self.asm(f"s_waitcnt {self.name}(0)")
        self.q = []

def vr(a, n=1):
    return f"v{a}" if n == 1 else f"v[{a}:{a+n-1}]"
def sr(a, n=1):
    return f"s{a}" if n == 1 else f"s[{a}:{a+n-1}]"

def interleave(main, inserts):
    by = {}
    for pos, it in inserts:
        by.setdefault(pos, []).append(it)
    out = []
    for i, m in enumerate(main):
        out += by.get(i, [])
        out.append(m)
    out += by.get(len(main), [])
    return out

KD = """.section .rodata,"a"
.p2align 6
.amdhsa_kernel {name}
  .amdhsa_next_free_vgpr {vgpr}
  .amdhsa_next_free_sgpr {sgpr}
  .amdhsa_accum_offset {accum}
  .amdhsa_group_segment_fixed_size 0
  .amdhsa_kernarg_size 80
  .amdhsa_user_sgpr_count 2
  .amdhsa_user_sgpr_kernarg_segment_ptr 1
  .amdhsa_system_sgpr_workgroup_id_x 1
  .amdhsa_float_denorm_mode_32 3
.end_amdhsa_kernel
"""
def kernel_text(name, body, vgpr=256, sgpr=96, accum=None):
    accum = accum or vgpr
    return (f".text\n.globl {name}\n.p2align 8\n.type {name},@function\n{name}:\n" + body +
            KD.format(name=name, vgpr=vgpr, sgpr=sgpr, accum=accum))
```

```python
from asmlib import *
from kb import QF, KF, VF, HF, OF, WSEND, mfma
SLOT = 28672
MISC = 4*SLOT
STAT = MISC
CSP  = MISC + 1024
VSCR = MISC + 4096
LDS_A = VSCR + 8*2048
CQ_BITS = 0x3EB8AA3B
import struct
assert abs(struct.unpack("<f",struct.pack("<I",CQ_BITS))[0]-0.25*1.4426950408889634)<1e-7

def gen_qkvffn(name="qkvf_kernel", stamps=False, opt=()):
    a = Asm()
    L = lambda s: f"{name}_{s}"
    X = 8; ACC = 136; WF = 200; CSA = 216; SEL = 232
    AW = 236; AX = 240; VX = 244; VW = 246; VFo = 248
    sW, sTB, sUH, sCS, sRB = 24, 25, 26, 27, 28
    sXD, sWD, sFD, sFB, sTBG = 42, 43, 44, 45, 46
    def stamp(i):
        if stamps: a(f"s_memtime s[{60+2*i}:{61+2*i}]")
    a(f"""
s_cmp_ge_u32 s2, 256
s_cbranch_scc1 {L('end')}
s_load_dwordx4 s[4:7], s[0:1], 0
s_load_dwordx4 s[36:39], s[0:1], 32
s_load_dwordx2 s[40:41], s[0:1], 72
""")
    stamp(0)
    if stamps: a("s_memrealtime s[76:77]")
    a(f"""
v_lshrrev_b32 v1, 6, v0
v_and_b32 v0, 63, v0
s_and_b32 s29, s2, 7
v_readfirstlane_b32 s{sW}, v1
s_lshr_b32 s30, s2, 3
s_and_b32 s31, s29, 1
s_lshl_b32 s31, s31, 3
s_and_b32 s32, s30, 7
s_add_u32 s{sRB}, s31, s32
s_lshr_b32 s31, s29, 1
s_lshl_b32 s31, s31, 2
s_lshr_b32 s32, s30, 3
s_add_u32 s{sCS}, s31, s32
s_and_b32 s{sTB}, s{sW}, 3
s_lshr_b32 s{sUH}, s{sW}, 2
s_lshl_b32 s{sTBG}, s{sRB}, 2
s_add_u32 s{sTBG}, s{sTBG}, s{sTB}
""")
    a(f"""
v_lshrrev_b32 v1, 3, v0
s_lshl_b32 s29, s{sRB}, 7
s_lshl_b32 s30, s{sW}, 4
s_add_u32 s29, s29, s30
v_add_u32 v1, s29, v1
v_lshlrev_b32 v1, 10, v1
v_lshrrev_b32 v2, 4, v0
v_and_b32 v3, 7, v0
v_xor_b32 v4, v2, v3
v_lshl_add_u32 v{VX}, v4, 4, v1
v_xor_b32 v4, 4, v4
v_lshl_add_u32 v{VX+1}, v4, 4, v1
v_add_u32 v{VX+1}, 8192, v{VX+1}
""")
    a(f"""
s_lshl_b32 s29, s{sTB}, 1
s_add_u32 s30, s{sTB}, 8
s_cmp_eq_u32 s{sUH}, 0
s_cselect_b32 s29, s30, s29
s_lshl_b32 s30, s29, 10
s_add_u32 s{sWD}, s30, 16384
s_lshl_b32 s29, s29, 6
s_mul_i32 s31, s{sCS}, 192
s_mov_b32 s32, 43691
s_movk_i32 s33, 3072
""")
    for q in range(2):
        a(f"""
v_add_u32 v1, s29, v0
v_mul_u32_u24 v2, s32, v1
v_lshrrev_b32 v2, 19, v2
v_mul_u32_u24 v3, 12, v2
v_sub_u32 v3, v1, v3
v_mul_u32_u24 v2, s33, v2
v_lshl_add_u32 v2, v3, 4, v2
v_add_u32 v{VW+q}, s31, v2
s_add_u32 s29, s29, 64
""")
    a("s_movk_i32 s33, 2752")
    for q in range(3):
        a(f"""
v_add_u32 v1, {64*q}, v0
v_mul_u32_u24 v2, s32, v1
v_lshrrev_b32 v2, 19, v2
v_mul_u32_u24 v3, 12, v2
v_sub_u32 v3, v1, v3
v_mul_u32_u24 v2, s33, v2
v_lshl_add_u32 v{VFo+q}, v3, 4, v2
""")
    a(f"""
s_lshl_b32 s{sXD}, s{sW}, 11
s_mul_i32 s29, s{sUH}, 12288
s_mul_i32 s30, s{sTB}, 3072
s_add_u32 s{sFD}, s29, s30
s_mul_i32 s29, s{sTB}, {16*2752}
s_add_u32 s{sFB}, s29, s31
""")
    a(f"""
v_and_b32 v1, 31, v0
v_lshrrev_b32 v2, 5, v0
s_lshl_b32 s29, s{sTB}, 5
v_add_u32 v3, s29, v1
v_lshlrev_b32 v3, 7, v3
v_lshlrev_b32 v4, 2, v2
v_or_b32 v4, s{sTB}, v4
v_bfe_u32 v5, v1, 1, 3
v_xor_b32 v4, v4, v5
v_lshl_add_u32 v{AX}, v4, 4, v3
v_xor_b32 v{AX+1}, 16, v{AX}
v_xor_b32 v{AX+2}, 32, v{AX}
v_xor_b32 v{AX+3}, 48, v{AX}
v_lshlrev_b32 v3, 5, v2
v_bfe_u32 v4, v0, 2, 2
v_add_u32 v3, v3, v4
v_mul_u32_u24 v3, 0xc0, v3
v_bfe_u32 v4, v0, 4, 1
v_lshl_add_u32 v3, v4, 5, v3
v_and_b32 v4, 3, v0
v_lshl_add_u32 v3, v4, 3, v3
""")
    for j in range(4):
        a(f"s_xor_b32 s29, s{sTB}, {j}")
        a(f"s_mul_i32 s29, s29, 1536")
        a(f"v_add_u32 v{AW+j}, s29, v3")
    a(f"""
v_and_b32 v1, 15, v0
v_bfe_u32 v2, v0, 4, 1
v_cmp_eq_u32 vcc, v1, v2
v_mov_b32 v3, 0x3f803f80
s_nop 0
v_cndmask_b32 v{SEL}, 0, v3, vcc
v_mov_b32 v{SEL+1}, v{SEL}
v_mov_b32 v{SEL+2}, v{SEL}
v_mov_b32 v{SEL+3}, v{SEL}
s_waitcnt lgkmcnt(0)
s_mov_b32 s8, s4
s_mov_b32 s9, s5
s_mov_b32 s10, {2048*1024}
s_mov_b32 s11, 0x20000
s_mov_b32 s12, s6
s_mov_b32 s13, s7
s_mov_b32 s14, {512*3072}
s_mov_b32 s15, 0x20000
s_cmp_eq_u32 s{sUH}, 0
s_cselect_b32 s16, s36, s38
s_cselect_b32 s17, s37, s39
s_mov_b32 s18, {512*2752}
s_mov_b32 s19, 0x20000
s_mov_b32 s20, s40
s_mov_b32 s21, s41
s_mov_b32 s22, {WSEND}
s_mov_b32 s23, 0x20000
s_cmp_eq_u32 s{sUH}, 0
s_cbranch_scc0 {L('uh1')}
""")
    for uh in range(2):
        if uh == 1: a.label(L('uh1'))
        if "twice" in opt:
            a("s_mov_b32 s47, 0")
            a.label(L(f'again{uh}'))
            stamp(0)
        path(a, L, uh, stamp, stamps, locals())
        if "twice" in opt:
            a(f"""
s_waitcnt vmcnt(0) lgkmcnt(0)
s_barrier
s_add_u32 s47, s47, 1
s_cmp_lt_u32 s47, 2
s_cbranch_scc0 {L(f'done{uh}')}
s_branch {L(f'again{uh}')}
{L(f'done{uh}')}:
""")
        if uh == 0: a(f"s_branch {L('fin')}")
    a.label(L('fin'))
    if stamps:
        a("s_waitcnt vmcnt(0)")
        stamp(6)
        a("s_memrealtime s[78:79]")
        a("s_waitcnt lgkmcnt(0)")
        for i in range(1,7): a(f"s_sub_u32 s{60+2*i}, s{60+2*i}, s60")
        a("s_sub_u32 s78, s78, s76")
        a(f"""
s_lshl_b32 s29, s2, 3
s_add_u32 s29, s29, s{sW}
s_lshl_b32 s29, s29, 5
s_add_u32 s29, s29, 0xE00000
v_mov_b32 v8, s62
v_mov_b32 v9, s64
v_mov_b32 v10, s66
v_mov_b32 v11, s68
v_mov_b32 v12, s70
v_mov_b32 v13, s72
v_mov_b32 v14, s78
v_mov_b32 v15, s76
v_mov_b32 v16, s29
s_mov_b64 exec, 1
global_store_dwordx4 v16, v[8:11], s[40:41]
global_store_dwordx4 v16, v[12:15], s[40:41] offset:16
""")
    a.label(L('end'))
    a("s_endpgm")
    return kernel_text(name, a.text(), vgpr=256, sgpr=96)

def path(a, L, uh, stamp, stamps, env):
    X, ACC, WF, CSA, SEL = env['X'], env['ACC'], env['WF'], env['CSA'], env['SEL']
    AW, AX, VX, VW, VFo = env['AW'], env['AX'], env['VX'], env['VW'], env['VFo']
    sW, sTB, sUH, sCS, sRB = env['sW'], env['sTB'], env['sUH'], env['sCS'], env['sRB']
    sXD, sWD, sFD, sFB, sTBG = env['sXD'], env['sWD'], env['sFD'], env['sFB'], env['sTBG']
    lg, vm = a.lg, a.vm
    opt = env['opt']
    lg.reset(); vm.reset()
    P = f"u{uh}"
    def dma(gs):
        if gs > 15: return
        sb = (gs % 4) * SLOT
        if gs < 8:
            c = gs
            a(f"s_add_u32 m0, s{sXD}, {sb}")
            a(f"s_movk_i32 s29, {c*128}")
            a(f"buffer_load_dwordx4 v{VX}, s[8:11], s29 offen lds"); vm.issue(f"d{gs}")
            a(f"s_add_u32 m0, s{sXD}, {sb+1024}")
            a(f"s_mov_b32 s30, {c*64*3072}")
            a(f"buffer_load_dwordx4 v{VX+1}, s[8:11], s29 offen lds"); vm.issue(f"d{gs}")
            a(f"s_add_u32 m0, s{sWD}, {sb}")
            a(f"s_nop 0")
            a(f"buffer_load_dwordx4 v{VW}, s[12:15], s30 offen lds"); vm.issue(f"d{gs}")
            if uh == 1:
                a(f"s_add_u32 m0, s{sWD}, {sb+1024}")
                a(f"s_nop 0")
                a(f"buffer_load_dwordx4 v{VW+1}, s[12:15], s30 offen lds"); vm.issue(f"d{gs}")
        else:
            f = gs - 8
            a(f"s_add_u32 s29, s{sFB}, {f*64*2752}")
            for q in range(3):
                a(f"s_add_u32 m0, s{sFD}, {sb+q*1024}")
                a(f"s_nop 0")
                a(f"buffer_load_dwordx4 v{VFo+q}, s[16:19], s29 offen lds"); vm.issue(f"d{gs}")
    def xreg(ks): return X + 4*ks
    def bump(reg, gs):
        if gs % 4 == 1: a(f"v_add_u32 v{reg}, {2*SLOT}, v{reg}")
        if gs % 4 == 3: a(f"v_subrev_u32 v{reg}, {2*SLOT}, v{reg}")
    def wread(dst, gs, j, off, tag):
        imm = (gs & 1)*SLOT + off
        a(f"ds_read_b64_tr_b16 {vr(dst,2)}, v{AW+j} offset:{imm}"); lg.issue(tag)
        a(f"ds_read_b64_tr_b16 {vr(dst+2,2)}, v{AW+j} offset:{imm+768}"); lg.issue(tag)
    def sel(t, frag):
        if "nosel" in opt: return
        a(f"v_mfma_f32_16x16x32_bf16 {vr(CSA+4*t,4)}, {vr(SEL,4)}, {vr(frag,4)}, {vr(CSA+4*t,4)}")
    def midbar(gs):
        vm.wait(f"d{gs+1}")
        a("s_barrier")
        dma(gs+3)

    nq = 2 if uh == 0 else 1
    tq0 = 0 if uh == 0 else 2
    S1a, S1b, S2a, S2b = 251, 252, 253, 254
    TA = ACC + 32
    for gs in range(3): dma(gs)
    for i in range(16*nq): a(f"v_mov_b32 v{ACC+i}, 0")
    for i in range(4*nq): a(f"v_mov_b32 v{CSA+i}, 0")
    if uh == 1:
        for r in (S1a, S1b, S2a, S2b): a(f"v_mov_b32 v{r}, 0")
    vm.wait("d0")
    a("s_barrier")
    stamp(1)
    def qreads(ks):
        c, j = ks >> 2, ks & 3
        a(f"ds_read_b128 {vr(xreg(ks),4)}, v{AX+j} offset:{(c&1)*SLOT}"); lg.issue(f"x{ks}")
        bump(AX+j, c)
        for t in range(nq):
            wread(WF + 8*(ks&1) + 4*t, c, j, 16384 + (tq0+t)*64, f"w{ks}")
        bump(AW+j, c)
    qreads(0)
    for ks in range(32):
        c, j = ks >> 2, ks & 3
        if j == 2: midbar(c)
        if ks + 1 < 32: qreads(ks+1)
        lg.wait(f"x{ks}", f"w{ks}")
        for t in range(nq):
            fr = WF + 8*(ks&1) + 4*t
            a(mfma(ACC+16*t, fr, xreg(ks), ACC+16*t))
            if j == 0: sel(t, fr)
        if uh == 1 and "nostats" not in opt:
            for r in range(4):
                x = xreg(ks) + r
                t0, t1 = TA + 2*(r&1), TA + 2*(r&1) + 1
                a(f"v_lshlrev_b32 v{t0}, 16, v{x}")
                a(f"v_and_b32 v{t1}, 0xffff0000, v{x}")
                a(f"v_add_f32 v{S1a}, v{S1a}, v{t0}")
                a(f"v_add_f32 v{S1b}, v{S1b}, v{t1}")
                a(f"v_fmac_f32 v{S2a}, v{t0}, v{t0}")
                a(f"v_fmac_f32 v{S2b}, v{t1}, v{t1}")
    stamp(2)
    def csp_write(tiles, t0):
        a(f"v_lshlrev_b32 v1, 4, v0")
        a(f"s_lshl_b32 s29, s{sTB}, 2")
        a(f"s_add_u32 s29, s29, {CSP + t0*512}")
        a(f"v_add_u32 v1, s29, v1")
        a.nop(8)
        a("s_mov_b64 exec, 0xffff")
        for t in range(tiles):
            a(f"ds_write_b32 v1, v{CSA+4*t} offset:{t*512}")
            a(f"ds_write_b32 v1, v{CSA+4*t+1} offset:{t*512+256}")
        a("s_mov_b64 exec, -1")
    csp_write(nq, tq0)
    if uh == 1:
        T = TA
        a(f"""
v_add_f32 v{S1a}, v{S1a}, v{S1b}
v_add_f32 v{S2a}, v{S2a}, v{S2b}
s_nop 0
v_mov_b32 v{S1b}, v{S1a}
v_mov_b32 v{S2b}, v{S2a}
s_nop 1
v_permlane32_swap_b32 v{S1a}, v{S1b}
v_permlane32_swap_b32 v{S2a}, v{S2b}
s_nop 1
v_add_f32 v{S1a}, v{S1a}, v{S1b}
v_add_f32 v{S2a}, v{S2a}, v{S2b}
v_mul_f32 v{S1a}, 0x3b000000, v{S1a}
v_mul_f32 v{S2a}, 0x3b000000, v{S2a}
v_fma_f32 v{S2a}, -v{S1a}, v{S1a}, v{S2a}
v_max_f32 v{S2a}, 0, v{S2a}
v_cvt_pk_bf16_f32 v{T}, v{S1a}, v{S1a}
v_cvt_pk_bf16_f32 v{T+1}, v{S2a}, v{S2a}
v_xor_b32 v{T}, 0x80008000, v{T}
v_lshlrev_b32 v{T+1}, 16, v{T+1}
v_add_f32 v{T+1}, 0x3727c5ac, v{T+1}
v_cvt_pk_bf16_f32 v{T+1}, v{T+1}, v{T+1}
v_lshlrev_b32 v{T+1}, 16, v{T+1}
v_sqrt_f32 v{T+1}, v{T+1}
s_nop 0
v_cvt_pk_bf16_f32 v{T+1}, v{T+1}, v{T+1}
v_lshlrev_b32 v{T+1}, 16, v{T+1}
v_and_b32 v1, 31, v0
s_lshl_b32 s29, s{sTB}, 5
v_add_u32 v1, s29, v1
v_lshlrev_b32 v1, 3, v1
v_add_u32 v1, {STAT}, v1
s_mov_b32 exec_hi, 0
ds_write_b64 v1, {vr(T,2)}
s_mov_b64 exec, -1
""")
    a("s_waitcnt lgkmcnt(0)"); lg.reset()
    a("s_barrier")
    vNM, vS, vR = 251, 252, 253
    XN = ACC + 48
    a(f"""
v_and_b32 v1, 31, v0
s_lshl_b32 s29, s{sTB}, 5
v_add_u32 v1, s29, v1
v_lshlrev_b32 v1, 3, v1
v_add_u32 v1, {STAT}, v1
ds_read_b64 v[2:3], v1
v_and_b32 v4, 31, v0
v_lshlrev_b32 v4, 4, v4
v_add_u32 v4, {CSP}, v4
""")
    def rank1(tiles, t0, accs, frs):
        for t in range(tiles):
            a(f"ds_read_b128 {vr(frs[t],4)}, v4 offset:{(t0+t)*512}")
        a("s_waitcnt lgkmcnt(0)")
        for t in range(tiles):
            f = frs[t]
            a(f"v_add_f32 v{f}, v{f}, v{f+1}")
            a(f"v_add_f32 v{f+2}, v{f+2}, v{f+3}")
            a(f"v_add_f32 v{f}, v{f}, v{f+2}")
            a(f"v_cvt_pk_bf16_f32 v{f+1}, v{f}, v{f}")
            a(f"v_lshlrev_b32 v{f+1}, 16, v{f+1}")
            a(f"v_sub_f32 v{f+2}, v{f}, v{f+1}")
            a(f"v_cvt_pk_bf16_f32 v{f}, v{f+1}, v{f+2}")
            a(f"v_mov_b32 v{f+1}, 0")
            a(f"v_mov_b32 v{f+2}, 0")
            a(f"v_mov_b32 v{f+3}, 0")
        a("s_nop 1")
        for t in range(tiles):
            a(mfma(accs[t], frs[t], XN, accs[t]))
        a.nop(16)
    a(f"""
s_waitcnt lgkmcnt(0)
v_cmp_gt_u32 vcc, 32, v0
v_mov_b32 v{vS}, v3
v_rcp_f32 v{vR}, v3
v_cndmask_b32 v{vNM}, 0, v2, vcc
v_mov_b32 v{XN}, v{vNM}
v_mov_b32 v{XN+1}, 0
v_mov_b32 v{XN+2}, 0
v_mov_b32 v{XN+3}, 0
""")
    rank1(nq, tq0, [ACC+16*t for t in range(nq)], [WF+4*t for t in range(nq)])
    a(f"v_lshlrev_b32 v5, 4, v0")
    for t in range(nq):
        A_ = ACC + 16*t; Pk = ACC + 32 + 8*t
        lv, ld = L(f"{P}_v{t}"), L(f"{P}_d{t}")
        a(f"""
s_mul_i32 s29, s{sCS}, 3
s_add_u32 s29, s29, {tq0+t}
s_cmp_lt_u32 s29, 16
s_cselect_b32 s30, {CQ_BITS}, 1.0
v_mul_f32 v6, s30, v{vR}
s_lshl_b32 s31, s29, 17
s_lshl_b32 s32, s{sTBG}, 10
s_add_u32 s31, s31, s32
""")
        for i in range(16): a(f"v_mul_f32 v{A_+i}, v{A_+i}, v6")
        for i in range(8): a(f"v_cvt_pk_bf16_f32 v{Pk+i}, v{A_+2*i}, v{A_+2*i+1}")
        a(f"""
s_cmp_ge_u32 s29, 32
s_cbranch_scc1 {lv}
s_add_u32 s32, s31, 65536
buffer_store_dwordx4 {vr(Pk,4)}, v5, s[20:23], s31 offen
buffer_store_dwordx4 {vr(Pk+4,4)}, v5, s[20:23], s32 offen
s_branch {ld}
{lv}:
s_lshl_b32 s33, s{sW}, 11
s_add_u32 s33, s33, {VSCR}
v_and_b32 v1, 31, v0
v_lshlrev_b32 v1, 6, v1
v_lshrrev_b32 v2, 5, v0
v_lshl_add_u32 v1, v2, 3, v1
v_add_u32 v1, s33, v1
""")
        for j in range(4): a(f"ds_write_b64 v1, {vr(Pk+2*j,2)} offset:{16*j}")
        a(f"""
v_lshlrev_b32 v1, 3, v2
v_bfe_u32 v3, v0, 2, 2
v_add_u32 v1, v1, v3
v_lshlrev_b32 v1, 6, v1
v_bfe_u32 v3, v0, 4, 1
v_lshl_add_u32 v1, v3, 5, v1
v_and_b32 v7, 3, v0
v_lshl_add_u32 v1, v7, 3, v1
v_add_u32 v1, s33, v1
v_lshlrev_b32 v3, 16, v3
v_lshl_add_u32 v3, v2, 8, v3
v_and_b32 v7, 15, v0
v_lshl_add_u32 v3, v7, 4, v3
s_waitcnt lgkmcnt(0)
ds_read_b64_tr_b16 {vr(Pk,2)}, v1
ds_read_b64_tr_b16 {vr(Pk+2,2)}, v1 offset:256
ds_read_b64_tr_b16 {vr(Pk+4,2)}, v1 offset:1024
ds_read_b64_tr_b16 {vr(Pk+6,2)}, v1 offset:1280
s_waitcnt lgkmcnt(0)
buffer_store_dwordx4 {vr(Pk,4)}, v3, s[20:23], s31 offen
buffer_store_dwordx4 {vr(Pk+4,4)}, v3, s[20:23], s31 offen offset:512
{ld}:
""")
        vm.issue(f"st{t}", 2)
    stamp(3)
    nf = 4 if uh == 0 else 2
    tf0 = 0 if uh == 0 else 4
    def foff(t):
        tt = tf0 + t
        return (tt & 1)*12288 + (tt >> 1)*64
    a("s_nop 1")
    for i in range(16*nf): a(f"v_mov_b32 v{ACC+i}, 0")
    for i in range(4*nf): a(f"v_mov_b32 v{CSA+i}, 0")
    if uh == 0:
        for t in range(4): wread(WF+4*t, 8, 0, foff(t), f"f0_{t}")
        for ks in range(32):
            f, j = ks >> 2, ks & 3
            gs = 8 + f
            if j == 2 and f < 7: midbar(gs)
            for t in range(4):
                lg.wait(f"f{ks}_{t}")
                a(mfma(ACC+16*t, WF+4*t, xreg(ks), ACC+16*t))
                if j == 0: sel(t, WF+4*t)
                if ks + 1 < 32:
                    k2 = ks + 1
                    wread(WF+4*t, 8+(k2>>2), k2&3, foff(t), f"f{k2}_{t}")
            k2 = ks + 1
            if k2 < 32: bump(AW+(k2&3), 8+(k2>>2))
    else:
        def freads(ks):
            f, j = ks >> 2, ks & 3
            for t in range(2): wread(WF + 8*(ks&1) + 4*t, 8+f, j, foff(t), f"f{ks}")
            bump(AW+j, 8+f)
        freads(0)
        for ks in range(32):
            f, j = ks >> 2, ks & 3
            if j == 2 and f < 7: midbar(8+f)
            if ks + 1 < 32: freads(ks+1)
            lg.wait(f"f{ks}")
            for t in range(2):
                fr = WF + 8*(ks&1) + 4*t
                a(mfma(ACC+16*t, fr, xreg(ks), ACC+16*t))
                if j == 0: sel(t, fr)
    stamp(4)
    csp_write(nf, tf0)
    a("s_waitcnt lgkmcnt(0)"); lg.reset()
    a("s_barrier")
    XN2 = X
    a(f"""
v_and_b32 v4, 31, v0
v_lshlrev_b32 v4, 4, v4
v_add_u32 v4, {CSP}, v4
v_mov_b32 v{XN2}, v{vNM}
v_mov_b32 v{XN2+1}, 0
v_mov_b32 v{XN2+2}, 0
v_mov_b32 v{XN2+3}, 0
""")
    XN = XN2
    def rank1b(tiles, t0, accs, frs):
        for t in range(tiles):
            a(f"ds_read_b128 {vr(frs[t],4)}, v4 offset:{(t0+t)*512}")
        a("s_waitcnt lgkmcnt(0)")
        for t in range(tiles):
            f = frs[t]
            a(f"v_add_f32 v{f}, v{f}, v{f+1}")
            a(f"v_add_f32 v{f+2}, v{f+2}, v{f+3}")
            a(f"v_add_f32 v{f}, v{f}, v{f+2}")
            a(f"v_cvt_pk_bf16_f32 v{f+1}, v{f}, v{f}")
            a(f"v_lshlrev_b32 v{f+1}, 16, v{f+1}")
            a(f"v_sub_f32 v{f+2}, v{f}, v{f+1}")
            a(f"v_cvt_pk_bf16_f32 v{f}, v{f+1}, v{f+2}")
            a(f"v_mov_b32 v{f+1}, 0")
            a(f"v_mov_b32 v{f+2}, 0")
            a(f"v_mov_b32 v{f+3}, 0")
        a("s_nop 1")
        for t in range(tiles):
            a(mfma(accs[t], frs[t], XN, accs[t]))
        a.nop(16)
    rank1b(nf, tf0, [ACC+16*t for t in range(nf)], [WF+4*t for t in range(nf)])
    cA, cB = X+4, X+6
    a(f"""
v_mul_f32 v{cA}, 0xbfb8aa3b, v{vR}
v_mul_f32 v{cB}, v{vS}, v{vS}
v_lshlrev_b32 v5, 4, v0
""")
    for i in range(nf//2):
        G, U = ACC+32*i, ACC+32*i+16
        T = X + 8 + 32*i; Pk = X + 8 + 32*i + 16
        for r in range(0, 16, 2):
            a(f"v_pk_mul_f32 {vr(T+r,2)}, {vr(G+r,2)}, {vr(cA,2)} op_sel_hi:[1,0]")
        for r in range(16): a(f"v_exp_f32 v{T+r}, v{T+r}")
        for r in range(0, 16, 2):
            a(f"v_pk_mul_f32 {vr(G+r,2)}, {vr(G+r,2)}, {vr(U+r,2)}")
        for r in range(0, 16, 2):
            a(f"v_pk_fma_f32 {vr(T+r,2)}, {vr(T+r,2)}, {vr(cB,2)}, {vr(cB,2)} op_sel_hi:[1,0,0]")
        for r in range(16): a(f"v_rcp_f32 v{T+r}, v{T+r}")
        a("s_nop 0")
        for r in range(0, 16, 2):
            a(f"v_pk_mul_f32 {vr(G+r,2)}, {vr(G+r,2)}, {vr(T+r,2)}")
        for r in range(8): a(f"v_cvt_pk_bf16_f32 v{Pk+r}, v{G+2*r}, v{G+2*r+1}")
        sk = L(f"{P}_ns{i}")
        a(f"""
s_mul_i32 s29, s{sCS}, 3
s_add_u32 s29, s29, {(tf0>>1)+i}
s_cmp_ge_u32 s29, 43
s_cbranch_scc1 {sk}
s_mul_i32 s30, s{sTBG}, 86
s_lshl_b32 s29, s29, 1
s_add_u32 s30, s30, s29
s_lshl_b32 s30, s30, 10
s_add_u32 s30, s30, {HF}
buffer_store_dwordx4 {vr(Pk,4)}, v5, s[20:23], s30 offen
buffer_store_dwordx4 {vr(Pk+4,4)}, v5, s[20:23], s30 offen offset:1024
{sk}:
""")
    stamp(5)

if __name__ == "__main__":
    print(gen_qkvffn())
```

```python
from asmlib import *
QF, KF, VF, HF, OF, WSEND = 0, 0x200000, 0x400000, 0x600000, 0xB60000, 0xD60000

def mfma(d, a, b, c):
    cc = vr(c, 16) if isinstance(c, int) and c >= 0 else "0"
    return f"v_mfma_f32_32x32x16_bf16 {vr(d,16)}, {vr(a,4)}, {vr(b,4)}, {cc}"
def smf(d, a, b, idx):
    return f"v_smfmac_f32_32x32x32_bf16 {vr(d,16)}, {vr(a,4)}, {vr(b,8)}, v{idx}"

def gen_attn(name="attn_kernel", standalone=True, stamps=False, opt=()):
    a = Asm()
    def stamp(i):
        if stamps:
            a(f"s_memtime s[{40+2*i}:{41+2*i}]")

    L = lambda s: f"{name}_{s}"
    vL16, vAK, vAV, vIDX = 1, 2, 3, 4
    Q = [8, 12]; K = [16, 20]; V = [24, 32]; S = [40, 56]; O = [72, 88]; C = [104, 120]; T = 136
    sW, sHD, sQB, sKH, sSRC, sDST, sSTG, sREDO = 12, 13, 14, 15, 16, 17, 18, 19
    sMASK = 20
    EX = 131072
    a(f"""
s_cmp_ge_u32 s2, 256
s_cbranch_scc1 {L('end')}
s_load_dwordx2 s[4:5], s[0:1], 72
""")
    stamp(0)
    if stamps: a("s_memrealtime s[56:57]")
    a(f"""
v_lshrrev_b32 v5, 6, v0
v_and_b32 v0, 63, v0
s_and_b32 s22, s2, 7
v_readfirstlane_b32 s{sW}, v5
s_lshr_b32 s24, s2, 3
s_lshr_b32 s25, s24, 3
s_lshl_b32 s{sHD}, s22, 2
s_add_u32 s{sHD}, s{sHD}, s25
s_and_b32 s{sQB}, s24, 7
v_lshlrev_b32 v{vL16}, 4, v0
s_lshr_b32 s{sKH}, s{sW}, 2
s_and_b32 s26, s{sW}, 3
s_lshl_b32 s27, s{sHD}, 16
s_lshl_b32 s28, s{sQB}, 3
s_lshl_b32 s29, s26, 1
s_add_u32 s28, s28, s29
s_lshl_b32 s29, s28, 10
s_add_u32 s30, s27, s29
s_waitcnt lgkmcnt(0)
s_mov_b32 s8, s4
s_mov_b32 s9, s5
s_mov_b32 s10, {WSEND}
s_mov_b32 s11, 0x20000
""")
    a(f"""
buffer_load_dwordx4 {vr(Q[0],4)}, v{vL16}, s[8:11], s30 offen
buffer_load_dwordx4 {vr(Q[1],4)}, v{vL16}, s[8:11], s30 offen offset:1024
s_lshr_b32 s22, s{sW}, 1
s_and_b32 s22, s22, 1
s_and_b32 s23, s{sW}, 1
s_lshl_b32 s23, s23, 2
s_lshl_b32 s24, s{sKH}, 5
s_add_u32 s23, s23, s24
s_lshl_b32 s23, s23, 10
s_lshl_b32 s24, s22, 16
s_add_u32 s{sDST}, s24, s23
s_lshl_b32 s24, s22, 21
s_add_u32 s{sSRC}, s24, s23
s_add_u32 s{sSRC}, s{sSRC}, s27
s_add_u32 s{sSRC}, s{sSRC}, {KF}
""")
    for s in range(4):
        a(f"s_mov_b32 m0, s{sDST}")
        a(f"s_add_u32 s{sDST}, s{sDST}, 8192")
        for q in range(4):
            a(f"buffer_load_dwordx4 v{vL16}, s[8:11], s{sSRC} offen offset:{q*1024} lds")
        a(f"s_add_u32 s{sSRC}, s{sSRC}, 8192")
    a(f"v_mov_b32 v{vIDX}, 0xdddddddd")
    if "zrows" in opt:
        a("v_and_b32 v5, 27, v0")
        a("v_cmp_eq_u32 vcc, 16, v5")
        a("v_mov_b32 v6, 0x3f803f80")
        a("s_nop 0")
        a(f"v_cndmask_b32 v{V[0]}, 0, v6, vcc")
        for i in range(1,16): a(f"v_mov_b32 v{V[0]+i}, v{V[0]}")
    else:
        for i in range(16): a(f"v_mov_b32 v{V[0]+i}, 0x3f803f80")
    a(f"""
s_mov_b32 s{sMASK}, 0x0000ffff
s_mov_b32 s{sMASK+1}, 0x0000ffff
s_mov_b32 s{sREDO}, 0
s_lshl_b32 s22, s{sKH}, 15
v_lshrrev_b32 v5, 5, v0
v_lshlrev_b32 v5, 8, v5
v_and_b32 v6, 15, v0
v_lshl_add_u32 v5, v6, 4, v5
s_add_u32 s23, s22, 65536
v_add_u32 v7, s23, v5
s_waitcnt vmcnt(12)
s_barrier
""")
    stamp(1)
    a.label(L('redo'))
    a(f"""
s_cmp_eq_u32 s{sREDO}, 0
s_cselect_b32 s24, 1, 32
v_add_u32 v{vAK}, s22, v{vL16}
v_mov_b32 v{T}, 0xff800000
v_mov_b32 v{T+1}, 0xff800000
""")
    a.label(L('maxloop'))
    a(f"""
ds_read_b128 {vr(K[0],4)}, v{vAK}
v_add_u32 v{vAK}, 1024, v{vAK}
s_waitcnt lgkmcnt(0)
{mfma(S[0],K[0],Q[0],None)}
{mfma(S[1],K[0],Q[1],None)}
s_sub_u32 s24, s24, 1
""")
    a.nop(16)
    for t in range(2):
        for i in range(8):
            a(f"v_max3_f32 v{T+t}, v{T+t}, v{S[t]+2*i}, v{S[t]+2*i+1}")
    a(f"""
s_cmp_lg_u32 s24, 0
s_cbranch_scc1 {L('maxloop')}
v_mov_b32 v{T+2}, v{T}
v_mov_b32 v{T+3}, v{T+1}
s_nop 1
v_permlane32_swap_b32 v{T}, v{T+2}
v_permlane32_swap_b32 v{T+1}, v{T+3}
s_nop 1
v_max_f32 v{T}, v{T}, v{T+2}
v_max_f32 v{T+1}, v{T+1}, v{T+3}
""")
    for t in range(2):
        for i in range(16):
            a(f"v_sub_f32 v{C[t]+i}, 0, v{T+t}")
    for t in range(2):
        for i in range(16): a(f"v_mov_b32 v{O[t]+i}, 0")
    for i in range(8,16): a(f"v_mov_b32 v{S[1]+i}, 0")
    a(f"""
v_add_u32 v{vAK}, s22, v{vL16}
v_mov_b32 v{vAV}, v7
ds_read_b128 {vr(K[0],4)}, v{vAK}
s_mov_b64 exec, s[{sMASK}:{sMASK+1}]
ds_read_b128 {vr(V[0],4)}, v{vAV}
ds_read_b128 {vr(V[0]+4,4)}, v{vAV} offset:512
s_mov_b64 exec, -1
s_mov_b32 s{sSTG}, 0
s_waitcnt lgkmcnt(0)
{mfma(S[0],K[0],Q[0],C[0])}
""")
    a.nop(12)
    stamp(2)
    if stamps: a("s_waitcnt lgkmcnt(0)")
    a.label(L('loop'))
    for t in range(8):
        p = t & 1
        if t == 6:
            lw8, lw4, lb, lskip = L('w8'), L('w4'), L('bar'), L('skip')
            a(f"""
s_cmp_lg_u32 s{sREDO}, 0
s_cbranch_scc1 {lskip}
s_cmp_eq_u32 s{sSTG}, 0
s_cbranch_scc1 {lw8}
s_cmp_eq_u32 s{sSTG}, 1
s_cbranch_scc1 {lw4}
s_waitcnt vmcnt(0)
s_branch {lb}
{lw4}:
s_waitcnt vmcnt(4)
s_branch {lb}
{lw8}:
s_waitcnt vmcnt(8)
{lb}:
s_barrier
{lskip}:
""")
        exA = [f"v_exp_f32 v{S[0]+i}, v{S[0]+i}" for i in range(16)]
        exB = [f"v_exp_f32 v{S[1]+i}, v{S[1]+i}" for i in range(16)]
        insA = [
            (3, smf(O[1], V[p^1]+4, S[1]+8, vIDX)),
            (5, mfma(S[1], K[p], Q[1], C[1])),
            (8, f"ds_read_b128 {vr(K[p^1],4)}, v{vAK} offset:{(t+1)*1024}"),
            (8, f"s_mov_b64 exec, s[{sMASK}:{sMASK+1}]"),
            (8, f"ds_read_b128 {vr(V[p^1],4)}, v{vAV} offset:{(t+1)*1024}"),
            (8, f"ds_read_b128 {vr(V[p^1]+4,4)}, v{vAV} offset:{(t+1)*1024+512}"),
            (8, f"s_mov_b64 exec, -1"),
            (11, smf(O[0], V[p], S[0], vIDX)),
        ]
        insB = [
            (3, smf(O[0], V[p]+4, S[0]+8, vIDX)),
            (5, "s_waitcnt lgkmcnt(0)"),
            (5, mfma(S[0], K[p^1], Q[0], C[0])),
            (11, smf(O[1], V[p], S[1], vIDX)),
        ]
        if "nopv" in opt:
            insA=[x for x in insA if "smfmac" not in x[1]]; insB=[x for x in insB if "smfmac" not in x[1]]
        if "nos" in opt:
            insA=[x for x in insA if "v_mfma" not in x[1]]; insB=[x for x in insB if "v_mfma" not in x[1]]
        if "noexp" in opt:
            exA=["v_nop"]*16; exB=["v_nop"]*16
        for l in interleave(exA, insA): a(l)
        for l in interleave(exB, insB): a(l)
    a(f"""
v_add_u32 v{vAK}, 8192, v{vAK}
v_add_u32 v{vAV}, 8192, v{vAV}
s_add_u32 s{sSTG}, s{sSTG}, 1
s_cmp_lt_u32 s{sSTG}, 4
s_cbranch_scc1 {L('loop')}
s_nop 0
{smf(O[1], V[1]+4, S[1]+8, vIDX)}
""")
    stamp(3)
    a.nop(16)
    a(f"v_mul_f32 v{T}, 0, v{O[0]}")
    for t in range(2):
        for i in range(8):
            if t == 0 and i == 0: continue
            a(f"v_fma_f32 v{T}, v{O[t]+i}, 0, v{T}")
    a(f"""
v_max_f32 v{T+1}, v{O[0]+8}, v{O[1]+8}
v_add_f32 v{T+2}, v{O[0]+8}, v{O[1]+8}
v_add_f32 v{T+1}, v{T+1}, v{T}
v_mul_f32 v{T+2}, 0, v{T+2}
v_add_f32 v{T+1}, v{T+1}, v{T+2}
v_mov_b32 v{T+3}, 0x4e800000
s_nop 0
v_cmp_nle_f32 s[26:27], v{T+1}, v{T+3}
s_nop 4
s_cmp_eq_u64 s[26:27], 0
s_cbranch_scc1 {L('ok')}
s_cmp_lg_u32 s{sREDO}, 0
s_cbranch_scc1 {L('ok')}
s_mov_b32 s{sREDO}, 1
s_branch {L('redo')}
{L('ok')}:
s_cmp_eq_u32 s{sKH}, 0
s_cbranch_scc1 {L('noswap')}
""")
    for i in range(9): a(f"v_swap_b32 v{O[0]+i}, v{O[1]+i}")
    a(f"v_swap_b32 v{C[0]}, v{C[1]}")
    a.label(L('noswap'))
    a(f"""
s_mul_i32 s22, s{sW}, 2560
s_add_u32 s22, s22, {EX}
s_xor_b32 s23, s{sW}, 4
s_mul_i32 s23, s23, 2560
s_add_u32 s23, s23, {EX}
v_add_u32 v5, s22, v{vL16}
v_lshlrev_b32 v6, 3, v0
v_add_u32 v6, s22, v6
v_mov_b32 v{T}, v{O[1]+8}
v_mov_b32 v{T+1}, v{C[1]}
ds_write_b128 v5, {vr(O[1],4)}
ds_write_b128 v5, {vr(O[1]+4,4)} offset:1024
ds_write_b64 v6, {vr(T,2)} offset:2048
v_add_u32 v5, s23, v{vL16}
v_lshlrev_b32 v6, 3, v0
v_add_u32 v6, s23, v6
s_waitcnt lgkmcnt(0)
s_barrier
ds_read_b64 {vr(T,2)}, v6 offset:2048
ds_read_b128 {vr(O[1],4)}, v5
ds_read_b128 {vr(O[1]+4,4)}, v5 offset:1024
s_waitcnt lgkmcnt(2)
v_min_f32 v{T+2}, v{T+1}, v{C[0]}
v_sub_f32 v{T+3}, v{T+2}, v{C[0]}
v_sub_f32 v{T+4}, v{T+2}, v{T+1}
v_exp_f32 v{T+3}, v{T+3}
v_exp_f32 v{T+4}, v{T+4}
s_nop 0
v_mul_f32 v{T+5}, v{T+3}, v{O[0]+8}
v_fma_f32 v{T+5}, v{T+4}, v{T}, v{T+5}
v_rcp_f32 v{T+5}, v{T+5}
s_nop 0
v_mul_f32 v{T+3}, v{T+3}, v{T+5}
v_mul_f32 v{T+4}, v{T+4}, v{T+5}
s_waitcnt lgkmcnt(0)
""")
    for i in range(8): a(f"v_mul_f32 v{O[0]+i}, v{O[0]+i}, v{T+3}")
    for i in range(8): a(f"v_fma_f32 v{O[0]+i}, v{O[1]+i}, v{T+4}, v{O[0]+i}")
    for i in range(4): a(f"v_cvt_pk_bf16_f32 v{T+8+i}, v{O[0]+2*i}, v{O[0]+2*i+1}")
    a(f"""
s_add_u32 s28, s28, s{sKH}
s_lshl_b32 s28, s28, 5
s_add_u32 s28, s28, s{sHD}
s_lshl_b32 s28, s28, 10
s_add_u32 s28, s28, {OF}
buffer_store_dwordx4 {vr(T+8,4)}, v{vL16}, s[8:11], s28 offen
""")
    if stamps:
        a("s_waitcnt vmcnt(0)")
        stamp(4)
        a("s_memrealtime s[58:59]")
        a("s_waitcnt lgkmcnt(0)")
        for i in range(1,5): a(f"s_sub_u32 s{40+2*i}, s{40+2*i}, s40")
        a("s_sub_u32 s58, s58, s56")
        a(f"""
s_lshl_b32 s22, s2, 3
s_add_u32 s22, s22, s{sW}
s_lshl_b32 s22, s22, 5
s_add_u32 s22, s22, 0xE00000
v_mov_b32 v8, s42
v_mov_b32 v9, s44
v_mov_b32 v10, s46
v_mov_b32 v11, s48
v_mov_b32 v12, s58
v_mov_b32 v13, s56
v_mov_b32 v14, s22
v_mov_b32 v15, 0
s_mov_b64 exec, 1
global_store_dwordx4 v14, v[8:11], s[4:5]
global_store_dwordx2 v14, v[12:13], s[4:5] offset:16
""")
    a.label(L('end'))
    a("s_endpgm")
    return kernel_text(name, a.text(), vgpr=160, sgpr=64)
if __name__ == "__main__":
    print(gen_attn())
```

```python
from asmlib import *
from kb import QF, KF, VF, HF, OF, WSEND, mfma

def gen_out(name="outp_kernel", stamps=False):
    a = Asm()
    L = lambda s: f"{name}_{s}"
    vL16, vWsrc, vA, vW = 1, 2, 3, 4
    ACC = 16; AF = [32, 36, 40, 44]; WFr = [48, 52, 56, 60]; T = 64
    sW, sRB, sCB, sKH, sSTG = 12, 13, 14, 15, 16
    sAOFF, sWOFF, sDST = 17, 18, 19
    NST = 15
    a(f"""
s_cmp_ge_u32 s2, 256
s_cbranch_scc1 {L('end')}
s_load_dwordx2 s[4:5], s[0:1], 72
s_load_dwordx2 s[6:7], s[0:1], 48
s_load_dwordx2 s[32:33], s[0:1], 16
s_load_dwordx2 s[34:35], s[0:1], 0
s_load_dwordx2 s[36:37], s[0:1], 56
v_lshrrev_b32 v5, 6, v0
v_and_b32 v0, 63, v0
s_and_b32 s38, s2, 7
v_readfirstlane_b32 s{sW}, v5
s_lshr_b32 s39, s2, 3
s_lshr_b32 s40, s39, 3
s_lshl_b32 s{sRB}, s38, 2
s_add_u32 s{sRB}, s{sRB}, s40
s_and_b32 s{sCB}, s39, 7
v_lshlrev_b32 v{vL16}, 4, v0
s_lshr_b32 s{sKH}, s{sW}, 2
""")
    a(f"""
v_lshrrev_b32 v5, 3, v0
v_lshrrev_b32 v6, 4, v0
v_and_b32 v6, 1, v6
v_lshlrev_b32 v6, 2, v6
v_and_b32 v7, 7, v0
v_xor_b32 v6, v6, v7
v_lshlrev_b32 v6, 4, v6
v_lshl_add_u32 v{vWsrc}, v5, 10, v6
s_lshl_b32 s38, s{sCB}, 7
v_add_u32 v{vWsrc}, s38, v{vWsrc}
""")
    a(f"""
s_lshr_b32 s38, s{sW}, 1
s_and_b32 s38, s38, 1
s_lshl_b32 s38, s38, 13
s_lshl_b32 s39, s{sKH}, 12
s_add_u32 s38, s38, s39
v_add_u32 v{vA}, s38, v{vL16}
v_lshrrev_b32 v5, 5, v0
v_lshlrev_b32 v5, 2, v5
v_bfe_u32 v6, v0, 2, 2
v_add_u32 v5, v5, v6
v_lshlrev_b32 v5, 7, v5
v_lshrrev_b32 v6, 1, v6
s_and_b32 s39, s{sW}, 1
v_xor_b32 v6, s39, v6
v_lshl_add_u32 v5, v6, 6, v5
v_bfe_u32 v6, v0, 4, 1
v_lshl_add_u32 v5, v6, 5, v5
v_and_b32 v6, 3, v0
v_lshl_add_u32 v5, v6, 3, v5
s_lshl_b32 s39, s{sKH}, 13
s_add_u32 s39, s39, 16384
v_add_u32 v{vW}, s39, v5
s_waitcnt lgkmcnt(0)
s_mov_b32 s8, s4
s_mov_b32 s9, s5
s_mov_b32 s10, {WSEND}
s_mov_b32 s11, 0x20000
s_mov_b32 s20, s6
s_mov_b32 s21, s7
s_mov_b32 s22, {1376*1024}
s_mov_b32 s23, 0x20000
s_mov_b32 s24, s34
s_mov_b32 s25, s35
s_mov_b32 s26, {2048*1024}
s_mov_b32 s27, 0x20000
s_mov_b32 s28, s36
s_mov_b32 s29, s37
s_mov_b32 s30, {2048*1024}
s_mov_b32 s31, 0x20000
""")
    a(f"""
s_cmp_ge_u32 s{sW}, 4
s_cbranch_scc1 {L('iw')}
s_lshr_b32 s38, s{sW}, 1
s_lshl_b32 s39, s{sRB}, 1
s_add_u32 s39, s39, s38
s_mul_i32 s40, s39, 86
s_and_b32 s41, s{sW}, 1
s_lshl_b32 s41, s41, 2
s_add_u32 s40, s40, s41
s_lshl_b32 s40, s40, 10
s_add_u32 s{sAOFF}, s40, {HF}
s_lshl_b32 s39, s39, 5
s_add_u32 s39, s39, s41
s_lshl_b32 s39, s39, 10
s_add_u32 s42, s39, {OF}
s_lshl_b32 s38, s38, 13
s_lshl_b32 s41, s41, 10
s_add_u32 s43, s38, s41
s_branch {L('i2')}
{L('iw')}:
s_sub_u32 s38, s{sW}, 4
s_lshl_b32 s{sAOFF}, s38, 15
s_mov_b32 s42, s{sAOFF}
s_lshl_b32 s43, s38, 12
s_add_u32 s43, s43, 16384
{L('i2')}:
s_mov_b32 s44, 0
""")
    def issue():
        lw, ld, lns = a.newlabel(L('dw')), a.newlabel(L('dd')), a.newlabel(L('ns'))
        a(f"""
s_cmp_lg_u32 s44, 11
s_cbranch_scc1 {lns}
s_mov_b32 s{sAOFF}, s42
s_mov_b32 s20, s32
s_mov_b32 s21, s33
s_mov_b32 s22, {512*1024}
{lns}:
s_and_b32 s45, s44, 3
s_lshl_b32 s45, s45, 15
s_add_u32 s45, s45, s43
s_mov_b32 m0, s45
s_cmp_ge_u32 s{sW}, 4
s_cbranch_scc1 {lw}
""")
        for q in range(4):
            a(f"buffer_load_dwordx4 v{vL16}, s[8:11], s{sAOFF} offen offset:{q*1024} lds")
        a(f"""
s_add_u32 s{sAOFF}, s{sAOFF}, 8192
s_branch {ld}
{lw}:
""")
        for q in range(4):
            a(f"buffer_load_dwordx4 v{vWsrc}, s[20:23], s{sAOFF} offen lds")
            if q < 3:
                a(f"s_add_u32 s45, s45, 1024")
                a(f"s_mov_b32 m0, s45")
            a(f"s_add_u32 s{sAOFF}, s{sAOFF}, {8192 if q<3 else 8192+ (128-32)*1024}")
        a(f"{ld}:")
        a("s_add_u32 s44, s44, 1")
    for i in range(3): issue()
    for i in range(16): a(f"v_mov_b32 v{ACC+i}, 0")
    a(f"s_mov_b32 s{sSTG}, 0")
    a.label(L('loop'))
    a("s_waitcnt vmcnt(8)")
    a("s_barrier")
    issue()
    for j in range(4):
        a(f"ds_read_b128 {vr(AF[j],4)}, v{vA} offset:{j*1024}")
        a(f"ds_read_b64_tr_b16 {vr(WFr[j],2)}, v{vW} offset:{j*2048}")
        a(f"ds_read_b64_tr_b16 {vr(WFr[j]+2,2)}, v{vW} offset:{j*2048+1024}")
    for j in range(4):
        a(f"s_waitcnt lgkmcnt({9-3*j})")
        a(mfma(ACC, WFr[j], AF[j], ACC))
    a(f"""
v_add_u32 v{vA}, 32768, v{vA}
v_and_b32 v{vA}, 0x1ffff, v{vA}
v_add_u32 v{vW}, 32768, v{vW}
v_and_b32 v{vW}, 0x1ffff, v{vW}
s_add_u32 s{sSTG}, s{sSTG}, 1
s_cmp_lt_u32 s{sSTG}, {NST}
s_cbranch_scc1 {L('loop')}
""")
    a(f"""
s_lshr_b32 s38, s{sW}, 1
s_and_b32 s38, s38, 1
s_lshl_b32 s39, s{sRB}, 1
s_add_u32 s39, s39, s38
s_lshl_b32 s39, s39, 15
s_and_b32 s40, s{sW}, 1
s_lshl_b32 s40, s40, 6
s_lshl_b32 s41, s{sCB}, 7
s_add_u32 s39, s39, s40
s_add_u32 s39, s39, s41
s_lshl_b32 s41, s{sKH}, 5
s_add_u32 s39, s39, s41
v_and_b32 v5, 31, v0
v_lshlrev_b32 v5, 10, v5
v_lshrrev_b32 v6, 5, v0
v_lshl_add_u32 v5, v6, 4, v5
buffer_load_dwordx4 v[{T}:{T+3}], v5, s[24:27], s39 offen
s_waitcnt vmcnt(1)
s_barrier
""")
    a(f"""
s_lshl_b32 s40, s{sW}, 11
s_xor_b32 s41, s{sW}, 4
s_lshl_b32 s41, s41, 11
v_add_u32 v6, s40, v{vL16}
v_add_u32 v7, s41, v{vL16}
s_cmp_eq_u32 s{sKH}, 0
s_cbranch_scc1 {L('k0')}
""")
    a.nop(8)
    for i in range(8): a(f"v_swap_b32 v{ACC+i}, v{ACC+8+i}")
    a.label(L('k0'))
    a.nop(8)
    a(f"""
ds_write_b128 v6, {vr(ACC+8,4)}
ds_write_b128 v6, {vr(ACC+12,4)} offset:1024
s_waitcnt lgkmcnt(0)
s_barrier
ds_read_b128 {vr(ACC+8,4)}, v7
ds_read_b128 {vr(ACC+12,4)}, v7 offset:1024
s_waitcnt lgkmcnt(0)
""")
    for i in range(8): a(f"v_add_f32 v{ACC+i}, v{ACC+i}, v{ACC+8+i}")
    a("s_nop 1")
    for i in range(4): a(f"v_permlane32_swap_b32 v{ACC+i}, v{ACC+4+i}")
    a("s_waitcnt vmcnt(0)")
    for i in range(4):
        a(f"v_lshlrev_b32 v{T+4+2*i}, 16, v{T+i}")
        a(f"v_and_b32 v{T+5+2*i}, 0xffff0000, v{T+i}")
    for i in range(8): a(f"v_add_f32 v{ACC+i}, v{ACC+i}, v{T+4+i}")
    for i in range(4): a(f"v_cvt_pk_bf16_f32 v{T+i}, v{ACC+2*i}, v{ACC+2*i+1}")
    a(f"buffer_store_dwordx4 v[{T}:{T+3}], v5, s[28:31], s39 offen")
    a.label(L('end'))
    a("s_endpgm")
    return kernel_text(name, a.text(), vgpr=96, sgpr=64)
if __name__ == "__main__":
    print(gen_out())
```

```python
import sys
from ka import gen_qkvffn, LDS_A
from kb import gen_attn
from kc import gen_out
HDR = open("parallel_sum__mha_block__glu_gated_swiglu__prompt.s.ref").read().split("; Override launch geometry")[0]
def make(extra=()):
    s = HDR
    s += f"; @launch kernel=qkvf_kernel grid=(256,1,1) block=(512,1,1) lds={LDS_A}\n"
    s += f"; @launch kernel=attn_kernel grid=(256,1,1) block=(512,1,1) lds=151552\n"
    s += f"; @launch kernel=outp_kernel grid=(256,1,1) block=(512,1,1) lds=131072\n"
    for e in extra: s += e + "\n"
    s += '.amdgcn_target "amdgcn-amd-amdhsa--gfx950"\n'
    s += gen_qkvffn("qkvf_kernel") + gen_attn("attn_kernel", opt=("zrows",)) + gen_out("outp_kernel")
    return s
if __name__ == "__main__":
    open("parallel_sum__mha_block__glu_gated_swiglu__prompt.s","w").write(make())
```

```python
from final3 import *
from asmlib import kernel_text
empty = kernel_text("nop_kernel", "  s_endpgm\n", vgpr=8, sgpr=16)
base = make()
open("v_base.s","w").write(base)
e = "; @launch kernel=nop_kernel grid=(256,1,1) block=(64,1,1) lds=0"
open("v_e1.s","w").write(make([e])+empty)
open("v_e4.s","w").write(make([e]*4)+empty)
```

```python
from final3 import *
import re
TS = 0xF00000
def instrument(txt, name, idx, last=False):
    start = f"""
  s_memrealtime s[84:85]
  s_load_dwordx2 s[86:87], s[0:1], 72
  s_load_dwordx2 s[88:89], s[0:1], 64
"""
    txt = txt.replace(f"s_cbranch_scc1 {name}_end\n", f"s_cbranch_scc1 {name}_end\n"+start, 1)
    end = f"""
  s_waitcnt vmcnt(0) lgkmcnt(0)
  s_memrealtime s[90:91]
  s_waitcnt lgkmcnt(0)
  v_mov_b32 v8, s84
  v_mov_b32 v9, s90
  s_lshl_b32 s92, s2, 3
  s_add_u32 s92, s92, {TS + idx*4096}
  v_mov_b32 v10, s92
  s_mov_b64 exec, 1
  global_store_dwordx2 v10, v[8:9], s[86:87]
"""
    if last:
        end += f"""
  s_cmp_eq_u32 s2, 0
  s_cbranch_scc0 {name}_end
  v_mov_b32 v10, {TS}
  global_load_dwordx2 v[12:13], v10, s[86:87] sc1
  global_load_dwordx2 v[14:15], v10, s[86:87] offset:2040 sc1
  v_mov_b32 v10, {TS+4096}
  global_load_dwordx2 v[16:17], v10, s[86:87] sc1
  global_load_dwordx2 v[18:19], v10, s[86:87] offset:2040 sc1
  s_waitcnt vmcnt(0)
  v_mov_b32 v20, v8
  v_mov_b32 v21, v9
  v_mov_b32 v10, 0
  global_store_dwordx4 v10, v[12:15], s[88:89]
  global_store_dwordx4 v10, v[16:19], s[88:89] offset:16
  global_store_dwordx2 v10, v[20:21], s[88:89] offset:32
"""
    txt = txt.replace(f"{name}_end:\n", end + f"{name}_end:\n", 1)
    txt = txt.replace(".amdhsa_next_free_sgpr 64", ".amdhsa_next_free_sgpr 96")
    return txt
s = HDR
s += f"; @launch kernel=qkvf_kernel grid=(256,1,1) block=(512,1,1) lds={LDS_A}\n"
s += f"; @launch kernel=attn_kernel grid=(256,1,1) block=(512,1,1) lds=151552\n"
s += f"; @launch kernel=outp_kernel grid=(256,1,1) block=(512,1,1) lds=131072\n"
s += '.amdgcn_target "amdgcn-amd-amdhsa--gfx950"\n'
body = instrument(gen_qkvffn("qkvf_kernel"),"qkvf_kernel",0) + instrument(gen_attn("attn_kernel", opt=("zrows",)),"attn_kernel",1)
c = instrument(gen_out("outp_kernel"),"outp_kernel",2,last=True)
open("v_ts.s","w").write(s+body+c)
c2 = c.replace("  v_mov_b32 v10, 0\n  global_store_dwordx4 v10, v[12:15], s[88:89]\n", "  s_sub_u32 s88, s88, 1024\n  s_subb_u32 s89, s89, 0\n  v_mov_b32 v10, 0\n  s_nop 4\n  global_store_dwordx4 v10, v[12:15], s[88:89]\n")
open("v_ts2.s","w").write(s+body+c2)
```

```python
from final3 import *
import re
TS = 0xF00000
def instrument(txt, name, idx, last=False):
    start = f"""
  s_memrealtime s[84:85]
  s_load_dwordx2 s[86:87], s[0:1], 72
  s_load_dwordx2 s[88:89], s[0:1], 64
"""
    txt = txt.replace(f"s_cbranch_scc1 {name}_end\n", f"s_cbranch_scc1 {name}_end\n"+start, 1)
    end = f"""
  s_waitcnt vmcnt(0) lgkmcnt(0)
  s_memrealtime s[90:91]
  s_waitcnt lgkmcnt(0)
  v_mov_b32 v8, s84
  v_mov_b32 v9, s90
  s_lshl_b32 s92, s2, 3
  s_add_u32 s92, s92, {TS + idx*4096}
  v_mov_b32 v10, s92
  s_mov_b64 exec, 1
  global_store_dwordx2 v10, v[8:9], s[86:87]
"""
    if last:
        end += f"""
  s_cmp_eq_u32 s2, 0
  s_cbranch_scc0 {name}_end
  v_mov_b32 v10, {TS}
  global_load_dwordx2 v[12:13], v10, s[86:87] sc1
  global_load_dwordx2 v[14:15], v10, s[86:87] offset:2040 sc1
  v_mov_b32 v10, {TS+4096}
  global_load_dwordx2 v[16:17], v10, s[86:87] sc1
  global_load_dwordx2 v[18:19], v10, s[86:87] offset:2040 sc1
  s_waitcnt vmcnt(0)
  v_mov_b32 v20, v8
  v_mov_b32 v21, v9
  v_mov_b32 v10, 0
  global_store_dwordx4 v10, v[12:15], s[88:89]
  global_store_dwordx4 v10, v[16:19], s[88:89] offset:16
  global_store_dwordx2 v10, v[20:21], s[88:89] offset:32
"""
    txt = txt.replace(f"{name}_end:\n", end + f"{name}_end:\n", 1)
    txt = txt.replace(".amdhsa_next_free_sgpr 64", ".amdhsa_next_free_sgpr 96")
    return txt
s = HDR
s += f"; @launch kernel=qkvf_kernel grid=(256,1,1) block=(512,1,1) lds={LDS_A}\n"
s += f"; @launch kernel=attn_kernel grid=(256,1,1) block=(512,1,1) lds=151552\n"
s += f"; @launch kernel=outp_kernel grid=(256,1,1) block=(512,1,1) lds=131072\n"
s += '.amdgcn_target "amdgcn-amd-amdhsa--gfx950"\n'
body = instrument(gen_qkvffn("qkvf_kernel"),"qkvf_kernel",0) + instrument(gen_attn("attn_kernel", opt=("zrows",)),"attn_kernel",1)
c = instrument(gen_out("outp_kernel"),"outp_kernel",2,last=True)
open("v_ts.s","w").write(s+body+c)
c2 = c.replace("  v_mov_b32 v10, 0\n  global_store_dwordx4 v10, v[12:15], s[88:89]\n", "  s_sub_u32 s88, s88, 1024\n  s_subb_u32 s89, s89, 0\n  v_mov_b32 v10, 0\n  s_nop 4\n  global_store_dwordx4 v10, v[12:15], s[88:89]\n")
open("v_ts2.s","w").write(s+body+c2)
spin = f"""
  s_waitcnt vmcnt(0)
  v_readfirstlane_b32 s93, v12
  s_nop 4
  s_add_u32 s93, s93, 10000
outp_spin:
  s_memrealtime s[94:95]
  s_waitcnt lgkmcnt(0)
  s_sub_u32 s94, s94, s93
  s_cmp_lt_i32 s94, 0
  s_cbranch_scc1 outp_spin
"""
c3 = c.replace("  v_mov_b32 v20, v8\n", spin + "  v_mov_b32 v20, v8\n")
open("v_ts3.s","w").write(s+body+c3)
```

```python
from asmlib import *
import struct
QF, KF, VF, HF, OF, WSEND = 0, 0x200000, 0x400000, 0x600000, 0xB60000, 0xD60000
SLOT = 28672
MISC = 131072
STAT = MISC
CSP  = MISC + 1024
VSCR = MISC + 4096
EX   = MISC
FLAG = MISC + 20480
LDS_TOTAL = MISC + 20480 + 256
FL = 0xD60000
F1, F2, F3, FW0 = FL, FL + 4096, FL + 8192, FL + 12288
CQ_BITS = 0x3EB8AA3B
KNAME = "parallel_sum__mha_block__glu_gated_swiglu__prompt_kernel"

def mfma(d, a, b, c):
    cc = vr(c, 16) if c is not None else "0"
    return f"v_mfma_f32_32x32x16_bf16 {vr(d,16)}, {vr(a,4)}, {vr(b,4)}, {cc}"
def smf(d, a, b, idx):
    return f"v_smfmac_f32_32x32x32_bf16 {vr(d,16)}, {vr(a,4)}, {vr(b,8)}, v{idx}"
def mf4(d, a, b):
    return f"v_mfma_f32_4x4x4_16b_bf16 {vr(d,4)}, {vr(a,2)}, {vr(b,2)}, {vr(d,4)}"

SRD_X, SRD_WQ, SRD_WF, SRD_WS = 8, 12, 16, 20
SRD_W3 = 4
sW, sTB, sUH, sCS, sRB = 24, 25, 26, 27, 28
pOUT, pW2, pWO, pDBG = 36, 38, 40, 42
sXD, sWD, sFD, sFB, sTBG = 44, 45, 46, 47, 48
sHD, sQB, sSRC, sDST, sSTG, sREDO, sTB0 = 49, 50, 51, 52, 53, 54, 55
sMASK = 56
sRB64, sCB, sAOFF, sALT, sLOFF, sISS, sTMP, sCST = 58, 59, 60, 61, 62, 63, 64, 65
sSPIN = 66
sWOFF, sWL = 67, 68
sK0D, sK0S = 67, 68
sTAG = 3
sWB = 35
sVER = 42
sA2 = 43
X = 8; ACC = 136; WF = 200; CSA = 216; SEL = 232
AW = 236; AX = 240; VX = 244; VW = 246; VFo = 232
vNM, vS, vR = 251, 252, 253
vPOLL = 254
vL16 = 255

class Gen:
    def __init__(self, name=KNAME, stamps=False, opt=(), prefix="L"):
        self.a = Asm(); self.name = name; self.stamps = stamps; self.opt = set(opt); self.prefix = prefix
    def L(self, s): return f"{self.prefix}_{s}"
    def stamp(self, i, c=False):
        if ("cst2" in self.opt or "cst3" in self.opt) and 1 <= i <= 7: return
        if "cstamps" in self.opt and (1 <= i <= 7) != c:
            if not (i == 0 or i >= 8): return
            if c: return
        if self.stamps: self.a(f"s_memtime s[{70+2*i}:{71+2*i}]")

    def signal(self, off_sgpr):
        a = self.a; l = a.newlabel(self.L("sig"))
        a(f"""
s_cmp_lg_u32 s{sW}, 0
s_cbranch_scc1 {l}
v_mov_b32 v5, s{off_sgpr}
v_mov_b32 v6, s{sTAG}
s_mov_b64 exec, 1
global_store_dword v5, v6, s[{SRD_WS}:{SRD_WS+1}] sc1
s_mov_b64 exec, -1
{l}:
""")
    def poll_issue(self, vaddr):
        a = self.a; l = a.newlabel(self.L("pi"))
        a(f"""
s_cmp_lg_u32 s{sW}, 0
s_cbranch_scc1 {l}
global_load_dword v{vPOLL}, v{vaddr}, s[{SRD_WS}:{SRD_WS+1}] sc1
{l}:
""")
    def poll_check(self, vaddr, site=0, wait=True):
        a = self.a; ok = a.newlabel(self.L("pok")); sp = a.newlabel(self.L("psp")); bail = self.L("bail")
        a(f"""
s_cmp_lg_u32 s{sW}, 0
s_cbranch_scc1 {ok}
s_mov_b32 s{sSPIN}, 0
""")
        if wait: a("s_waitcnt vmcnt(0)")
        a(f"""
{sp}:
v_cmp_ne_u32 vcc, s{sTAG}, v{vPOLL}
s_nop 4
s_cmp_eq_u64 vcc, 0
s_cbranch_scc1 {ok}
s_add_u32 s{sSPIN}, s{sSPIN}, 1
s_cmp_gt_u32 s{sSPIN}, 0x8000
s_cbranch_scc1 {bail}
s_sleep 1
global_load_dword v{vPOLL}, v{vaddr}, s[{SRD_WS}:{SRD_WS+1}] sc1
s_waitcnt vmcnt(0)
s_branch {sp}
{ok}:
""")
        if self.stamps:
            if site == 2: self.stamp(12)

    def prologue(self):
        a = self.a; L = self.L
        a(f"""
s_cmp_ge_u32 s2, 256
s_cbranch_scc1 {L('end')}
s_load_dwordx4 s[4:7], s[0:1], 0
s_load_dwordx4 s[60:63], s[0:1], 32
s_load_dwordx2 s[{pW2}:{pW2+1}], s[0:1], 48
s_load_dwordx2 s[{pWO}:{pWO+1}], s[0:1], 16
s_load_dwordx4 s[64:67], s[0:1], 56
s_load_dwordx2 s[68:69], s[0:1], 72
""")
        if self.stamps:
            a("s_memtime s[70:71]")
            a("s_memrealtime s[96:97]")
        a(f"""
v_lshrrev_b32 v1, 6, v0
v_and_b32 v0, 63, v0
s_and_b32 s29, s2, 7
v_readfirstlane_b32 s{sW}, v1
s_lshr_b32 s30, s2, 3
s_and_b32 s31, s29, 1
s_lshl_b32 s31, s31, 3
s_and_b32 s32, s30, 7
s_add_u32 s{sRB}, s31, s32
s_lshr_b32 s31, s29, 1
s_lshl_b32 s31, s31, 2
s_lshr_b32 s33, s30, 3
s_add_u32 s{sCS}, s31, s33
s_lshl_b32 s31, s29, 2
s_add_u32 s{sHD}, s31, s33
s_mov_b32 s{sQB}, s32
s_mov_b32 s{sRB64}, s{sHD}
s_mov_b32 s{sCB}, s32
v_lshlrev_b32 v{vL16}, 4, v0
v_mov_b32 v7, 0
s_and_b32 s{sTB}, s{sW}, 3
s_lshr_b32 s{sUH}, s{sW}, 2
s_lshl_b32 s{sTBG}, s{sRB}, 2
s_add_u32 s{sTBG}, s{sTBG}, s{sTB}
""")
        a(f"""
v_lshrrev_b32 v1, 3, v0
s_lshl_b32 s29, s{sRB}, 7
s_lshl_b32 s30, s{sTB}, 5
s_add_u32 s29, s29, s30
v_add_u32 v1, s29, v1
v_lshlrev_b32 v1, 10, v1
v_lshrrev_b32 v2, 4, v0
v_and_b32 v3, 7, v0
v_xor_b32 v4, v2, v3
v_lshl_add_u32 v{VX}, v4, 4, v1
v_xor_b32 v4, 4, v4
v_lshl_add_u32 v{VX+1}, v4, 4, v1
v_add_u32 v{VX+1}, 8192, v{VX+1}
s_mul_i32 s31, s{sCS}, 192
s_mul_i32 s29, s{sTB}, {16*3072}
s_add_u32 s{sWB}, s29, s31
s_mov_b32 s32, 43691
s_movk_i32 s33, 3072
""")
        for q in range(3):
            a(f"""
v_add_u32 v1, {64*q}, v0
v_mul_u32_u24 v2, s32, v1
v_lshrrev_b32 v2, 19, v2
v_mul_u32_u24 v3, 12, v2
v_sub_u32 v3, v1, v3
v_mul_u32_u24 v2, s33, v2
v_lshl_add_u32 v{VW+q}, v3, 4, v2
""")
        a(f"""
s_mul_i32 s30, s{sTB}, 3072
s_add_u32 s{sWD}, s30, 16384
s_lshl_b32 s{sXD}, s{sTB}, 12
s_waitcnt lgkmcnt(0)
s_mov_b32 s{SRD_X}, s4
s_mov_b32 s{SRD_X+1}, s5
s_mov_b32 s{SRD_X+2}, {2048*1024}
s_mov_b32 s{SRD_X+3}, 0x20000
s_mov_b32 s{SRD_WQ}, s6
s_mov_b32 s{SRD_WQ+1}, s7
s_mov_b32 s{SRD_WQ+2}, {512*3072}
s_mov_b32 s{SRD_WQ+3}, 0x20000
s_mov_b32 s{SRD_WF}, s60
s_mov_b32 s{SRD_WF+1}, s61
s_mov_b32 s{SRD_WF+2}, {512*2752}
s_mov_b32 s{SRD_WF+3}, 0x20000
s_mov_b32 s{SRD_WS}, s68
s_mov_b32 s{SRD_WS+1}, s69
s_mov_b32 s{SRD_WS+2}, {WSEND}
s_mov_b32 s{SRD_WS+3}, 0x20000
s_mov_b32 s{pOUT}, s64
s_mov_b32 s{pOUT+1}, s65
s_mov_b32 s{sVER}, 0
s_add_u32 s30, s68, {FW0}
s_addc_u32 s31, s69, 0
s_load_dword s{sTAG}, s[30:31], 0
s_mov_b32 s{SRD_W3}, s62
s_mov_b32 s{SRD_W3+1}, s63
s_mov_b32 s{SRD_W3+2}, {512*2752}
s_mov_b32 s{SRD_W3+3}, 0x20000
""")

    def prologue2(self):
        a = self.a
        a(f"s_movk_i32 s33, 2752")
        a(f"s_mov_b32 s32, 43691")
        for q in range(3):
            a(f"""
v_add_u32 v1, {64*q}, v0
v_mul_u32_u24 v2, s32, v1
v_lshrrev_b32 v2, 19, v2
v_mul_u32_u24 v3, 12, v2
v_sub_u32 v3, v1, v3
v_mul_u32_u24 v2, s33, v2
v_lshl_add_u32 v{VFo+q}, v3, 4, v2
""")
        a(f"""
s_mul_i32 s31, s{sCS}, 192
s_mul_i32 s{sFD}, s{sTB}, 3072
s_mul_i32 s29, s{sTB}, {16*2752}
s_add_u32 s{sFB}, s29, s31
v_and_b32 v1, 31, v0
v_lshrrev_b32 v2, 5, v0
s_lshl_b32 s29, s{sTB}, 5
v_add_u32 v3, s29, v1
v_lshlrev_b32 v3, 7, v3
v_lshlrev_b32 v4, 2, v2
v_or_b32 v4, s{sTB}, v4
v_bfe_u32 v5, v1, 1, 3
v_xor_b32 v4, v4, v5
v_lshl_add_u32 v{AX}, v4, 4, v3
v_xor_b32 v{AX+1}, 16, v{AX}
v_xor_b32 v{AX+2}, 32, v{AX}
v_xor_b32 v{AX+3}, 48, v{AX}
v_lshlrev_b32 v3, 5, v2
v_bfe_u32 v4, v0, 2, 2
v_add_u32 v3, v3, v4
v_mul_u32_u24 v3, 0xc0, v3
v_bfe_u32 v4, v0, 4, 1
v_lshl_add_u32 v3, v4, 5, v3
v_and_b32 v4, 3, v0
v_lshl_add_u32 v3, v4, 3, v3
""")
        for j in range(4):
            a(f"s_xor_b32 s29, s{sTB}, {j}")
            a(f"s_mul_i32 s29, s29, 1536")
            a(f"v_add_u32 v{AW+j}, s29, v3")

    def l2_prefetch_a(self, uh):
        a = self.a; D = ACC + 60
        if uh == 0:
            l3, ld = a.newlabel(self.L("pf3")), a.newlabel(self.L("pfd"))
            a(f"""
s_cmp_eq_u32 s{sTB}, 3
s_cbranch_scc1 {l3}
s_and_b32 s29, s{sCS}, 3
s_lshl_b32 s29, s29, 5
s_lshl_b32 s30, s{sRB}, 7
s_add_u32 s29, s29, s30
v_and_b32 v1, 31, v0
v_add_u32 v1, s29, v1
v_lshlrev_b32 v1, 10, v1
v_lshrrev_b32 v2, 5, v0
s_lshl_b32 s30, s{sTB}, 1
s_add_u32 s30, s30, 3
v_add_u32 v2, s30, v2
v_min_u32 v2, 7, v2
v_lshl_add_u32 v1, v2, 7, v1
buffer_load_dword v{D}, v1, s[{SRD_X}:{SRD_X+3}], 0 offen sc1
s_branch {ld}
{l3}:
s_and_b32 s29, s{sRB}, 7
s_mul_i32 s29, s29, 40
s_add_u32 s29, s29, 192
v_lshrrev_b32 v1, 1, v0
v_add_u32 v1, s29, v1
s_movk_i32 s30, 3072
v_mul_lo_u32 v1, s30, v1
v_and_b32 v2, 1, v0
v_lshl_add_u32 v1, v2, 7, v1
s_mul_i32 s30, s{sCS}, 192
buffer_load_dword v{D}, v1, s[{SRD_WQ}:{SRD_WQ+3}], s30 offen sc1
{ld}:
""")
        else:
            a(f"""
s_and_b32 s29, s{sRB}, 7
s_mul_i32 s29, s29, 40
s_add_u32 s29, s29, 224
v_bfe_u32 v1, v0, 1, 3
v_add_u32 v1, s29, v1
s_movk_i32 s30, 3072
v_mul_lo_u32 v1, s30, v1
v_and_b32 v2, 1, v0
v_lshl_add_u32 v1, v2, 7, v1
s_mul_i32 s30, s{sCS}, 192
buffer_load_dword v{D}, v1, s[{SRD_WQ}:{SRD_WQ+3}], s30 offen sc1
""")
        a(f"""
s_and_b32 s29, s{sRB}, 7
s_lshl_b32 s29, s29, 6
s_lshl_b32 s30, s{sTB}, 4
s_add_u32 s29, s29, s30
v_bfe_u32 v1, v0, 1, 4
v_add_u32 v1, s29, v1
s_movk_i32 s30, 2752
v_mul_lo_u32 v1, s30, v1
v_and_b32 v2, 1, v0
v_lshl_add_u32 v1, v2, 7, v1
s_mul_i32 s30, s{sCS}, 192
buffer_load_dword v{D+1}, v1, s[{(SRD_WF if uh == 0 else SRD_W3)}:{(SRD_WF if uh == 0 else SRD_W3)+3}], s30 offen sc1
""")

    def phaseA(self, uh):
        a = self.a; L = self.L; opt = self.opt; stamp = self.stamp
        lg, vm = a.lg, a.vm
        lg.reset(); vm.reset()
        P = f"u{uh}"
        CS = CSA
        CT = CSA + 8
        def dma_pieces(gs):
            if gs > 15 or ("nodma" in opt and gs >= 3): return []
            sb = (gs % 4) * SLOT
            out = []
            def piece(m0base, m0off, static_soff, sreg_base, vreg, srd):
                def f():
                    a(f"s_add_u32 m0, s{m0base}, {m0off}")
                    if sreg_base is None: a(f"s_mov_b32 s29, {static_soff}")
                    else: a(f"s_add_u32 s29, s{sreg_base}, {static_soff}")
                    a(f"buffer_load_dwordx4 v{vreg}, s[{srd}:{srd+3}], s29 offen lds"); vm.issue(f"d{gs}")
                return f
            if uh == 0: return []
            if gs < 8:
                c = gs
                xs = [piece(sXD, sb+q2*2048+p*1024, c*128+q2*16384, None, VX+p, SRD_X) for q2 in range(2) for p in range(2)]
                ws = [piece(sWD, sb+q*1024, c*64*3072, sWB, VW+q, SRD_WQ) for q in range(3)]
                out = [xs[0], ws[0], xs[1], ws[1], xs[2], ws[2], xs[3]]
            else:
                f_ = gs - 8
                for q in range(3):
                    out.append(piece(sFD, sb+q*1024, f_*64*2752, sFB, VFo+q, SRD_WF))
                    out.append(piece(sFD, sb+12288+q*1024, f_*64*2752, sFB, VFo+q, SRD_W3))
            return out
        pending = []
        def dma(gs):
            for p in dma_pieces(gs): p()
        def dma_one():
            if pending: pending.pop(0)()
        def xreg(ks): return X + 4*ks
        def bump(reg, gs):
            if gs % 4 == 1: a(f"v_add_u32 v{reg}, {2*SLOT}, v{reg}")
            if gs % 4 == 3: a(f"v_subrev_u32 v{reg}, {2*SLOT}, v{reg}")
        def wread(dst, gs, j, off, tag):
            imm = (gs & 1)*SLOT + off
            a(f"ds_read_b64_tr_b16 {vr(dst,2)}, v{AW+j} offset:{imm}"); lg.issue(tag)
            a(f"ds_read_b64_tr_b16 {vr(dst+2,2)}, v{AW+j} offset:{imm+768}"); lg.issue(tag)
        def cs_unpack(frag):
            for r in range(4):
                a(f"v_lshlrev_b32 v{CT+2*r}, 16, v{frag+r}")
                a(f"v_and_b32 v{CT+2*r+1}, s{sHI}, v{frag+r}")
        def cs_add(t):
            for r in range(4):
                a(f"v_add_f32 v{CS+2*t}, v{CS+2*t}, v{CT+2*r}")
                a(f"v_add_f32 v{CS+2*t+1}, v{CS+2*t+1}, v{CT+2*r+1}")
        def midbar(gs):
            vm.wait(f"d{gs+1}")
            if gs == 10: vm.wait("st")
            if "nobar" not in opt: a("s_barrier")
            if gs == 10:
                a(f"s_lshl_b32 s29, s{sCS}, 7")
                a(f"s_lshl_b32 s30, s{sRB}, 2")
                a(f"s_add_u32 s29, s29, s30")
                a(f"s_add_u32 s29, s29, {F1}")
                self.signal(29)
            assert not pending
            pending.extend(dma_pieces(gs+3))
            if gs == 14 and uh == 0 and "nokvpf" not in opt:
                l = a.newlabel(L("kvpf"))
                a(f"""
s_cmp_lg_u32 s{sW}, 0
s_cbranch_scc1 {l}
s_waitcnt vmcnt(0)
v_cmp_ne_u32 vcc, s{sTAG}, v{vPOLL}
s_nop 4
s_cmp_eq_u64 vcc, 0
s_cbranch_scc0 {l}
s_lshl_b32 s29, s{sHD}, 16
s_lshl_b32 s30, s{sQB}, 13
s_add_u32 s29, s29, s30
v_lshlrev_b32 v1, 7, v0
buffer_load_dword v232, v1, s[{SRD_WS}:{SRD_WS+3}], s29 offen
s_add_u32 s29, s29, {KF}
buffer_load_dword v233, v1, s[{SRD_WS}:{SRD_WS+3}], s29 offen
s_add_u32 s29, s29, {VF-KF}
buffer_load_dword v234, v1, s[{SRD_WS}:{SRD_WS+3}], s29 offen
s_mov_b32 s{sVER}, 1
{l}:
""")
            if gs == 12 and uh == 0:
                a(f"""
s_lshr_b32 s29, s{sHD}, 1
v_and_b32 v1, 48, v0
v_min_u32 v1, 32, v1
v_add_u32 v1, s29, v1
v_mul_u32_u24 v1, 0x5556, v1
v_lshrrev_b32 v1, 16, v1
v_lshlrev_b32 v1, 7, v1
v_and_b32 v7, 15, v0
v_lshl_add_u32 v7, v7, 2, v1
v_add_u32 v7, {F1}, v7
""")
                self.poll_issue(7)
        def csp_write(tiles, t0):
            for t in range(tiles):
                a(f"v_add_f32 v{CS+2*t}, v{CS+2*t}, v{CS+2*t+1}")
            a(f"v_and_b32 v1, 31, v0")
            for t in range(tiles):
                a(f"v_mov_b32 v{CS+2*t+1}, v{CS+2*t}")
            a(f"v_lshlrev_b32 v1, 4, v1")
            a(f"s_lshl_b32 s29, s{sTB}, 2")
            a(f"s_add_u32 s29, s29, {CSP + t0*512}")
            a(f"v_add_u32 v1, s29, v1")
            for t in range(tiles):
                a(f"v_permlane32_swap_b32 v{CS+2*t}, v{CS+2*t+1}")
            a("s_nop 0")
            for t in range(tiles):
                a(f"v_add_f32 v{CS+2*t}, v{CS+2*t}, v{CS+2*t+1}")
            a("s_mov_b32 exec_hi, 0")
            for t in range(tiles):
                a(f"ds_write_b32 v1, v{CS+2*t} offset:{t*512}"); lg.issue("csp")
            a("s_mov_b64 exec, -1")

        S2, S1, ONES = ACC+48, ACC+52, ACC+56
        sHI = 34
        for gs in range(3): dma(gs)
        if "pf" in opt:
            self.l2_prefetch_a(uh); vm.issue("pf", 2)
        self.prologue2()
        a(f"s_mov_b32 s{sHI}, 0xffff0000")
        if uh == 0:
            for i in range(56): a(f"v_mov_b32 v{ACC+i}, 0")
            for i in range(6): a(f"v_mov_b32 v{CS+i}, 0")
            for i in range(2): a(f"v_mov_b32 v{ONES+i}, 0x3f803f80")
        a(f"""
s_waitcnt lgkmcnt(0)
s_mul_i32 s{sTAG}, s{sTAG}, 0x9E3779B1
s_add_u32 s{sTAG}, s{sTAG}, 0x7F4A7C15
""")
        vm.wait("d0")
        a("s_barrier")
        stamp(1)
        def xread(ks):
            c, j = ks >> 2, ks & 3
            a(f"ds_read_b128 {vr(xreg(ks),4)}, v{AX+j} offset:{(c&1)*SLOT}"); lg.issue(f"x{ks}")
            bump(AX+j, c)
        if uh == 1:
            for ks in range(32):
                c, j = ks >> 2, ks & 3
                if j == 2:
                    if c > 0: lg.wait(f"x{4*c-1}")
                    midbar(c)
                xread(ks)
                dma_one(); dma_one()
            while pending: dma_one()
            stamp(2)
            a("s_waitcnt lgkmcnt(0)"); lg.reset()
            a("s_barrier")
            a(f"""
v_and_b32 v1, 31, v0
s_lshl_b32 s29, s{sTB}, 5
v_add_u32 v1, s29, v1
v_lshlrev_b32 v1, 3, v1
v_add_u32 v1, {STAT}, v1
ds_read_b64 v[2:3], v1
v_cmp_gt_u32 vcc, 32, v0
s_waitcnt lgkmcnt(0)
v_mov_b32 v{vS}, v3
v_rcp_f32 v{vR}, v3
v_cndmask_b32 v{vNM}, 0, v2, vcc
""")
        else:
            QS = [[WF, WF+4, WF+8], [WF+12, SEL, ACC+60]]
            def qreads(ks):
                c, j = ks >> 2, ks & 3
                xread(ks)
                for t in range(3):
                    wread(QS[ks & 1][t], c, j, 16384 + t*64, f"w{ks}")
                bump(AW+j, c)
            qreads(0)
            for ks in range(32):
                c, j = ks >> 2, ks & 3
                if j == 3: midbar(c)
                fr = QS[ks & 1]; xr = xreg(ks)
                lg.wait(f"x{ks}", f"w{ks}")
                st = "nomf4" not in opt; cs_ = j < 3 and "nocs" not in opt
                if st: a(mf4(S2, xr, xr)); a(mf4(S1, xr, ONES))
                a(mfma(ACC, fr[0], xr, ACC))
                if ks + 1 < 32: qreads(ks+1)
                if st: a(mf4(S2, xr+2, xr+2)); a(mf4(S1, xr+2, ONES))
                a(mfma(ACC+16, fr[1], xr, ACC+16))
                if cs_: cs_unpack(fr[j])
                a(mfma(ACC+32, fr[2], xr, ACC+32))
                if cs_: cs_add(j)
                if ks == 30: csp_write(3, 0)
            stamp(2)
            T = CT
            a.nop(4)
            a(f"""
v_and_b32 v1, 3, v0
v_cmp_eq_u32 vcc, 1, v1
v_cmp_eq_u32 s[30:31], 2, v1
v_cmp_eq_u32 s[32:33], 3, v1
s_nop 1
v_cndmask_b32 v{S2}, v{S2}, v{S2+1}, vcc
v_cndmask_b32 v{S1}, v{S1}, v{S1+1}, vcc
v_cndmask_b32 v{S2}, v{S2}, v{S2+2}, s[30:31]
v_cndmask_b32 v{S1}, v{S1}, v{S1+2}, s[30:31]
v_cndmask_b32 v{S2}, v{S2}, v{S2+3}, s[32:33]
v_cndmask_b32 v{S1}, v{S1}, v{S1+3}, s[32:33]
v_and_b32 v1, 31, v0
s_lshl_b32 s29, s{sTB}, 5
v_mov_b32 v{S1+1}, v{S1}
v_mov_b32 v{S2+1}, v{S2}
v_add_u32 v1, s29, v1
v_lshlrev_b32 v1, 3, v1
v_permlane32_swap_b32 v{S1}, v{S1+1}
v_permlane32_swap_b32 v{S2}, v{S2+1}
v_add_u32 v1, {STAT}, v1
s_nop 0
v_add_f32 v{S1}, v{S1}, v{S1+1}
v_add_f32 v{S2}, v{S2}, v{S2+1}
v_mul_f32 v{S1}, 0x3b000000, v{S1}
v_mul_f32 v{S2}, 0x3b000000, v{S2}
v_fma_f32 v{S2}, -v{S1}, v{S1}, v{S2}
v_max_f32 v{S2}, 0, v{S2}
v_cvt_pk_bf16_f32 v{T}, v{S1}, v{S1}
v_cvt_pk_bf16_f32 v{T+1}, v{S2}, v{S2}
v_xor_b32 v{T}, 0x80008000, v{T}
v_lshlrev_b32 v{T+1}, 16, v{T+1}
v_add_f32 v{T+1}, 0x3727c5ac, v{T+1}
v_cvt_pk_bf16_f32 v{T+1}, v{T+1}, v{T+1}
v_lshlrev_b32 v{T+1}, 16, v{T+1}
v_sqrt_f32 v{T+1}, v{T+1}
v_cmp_gt_u32 vcc, 32, v0
v_cvt_pk_bf16_f32 v{T+1}, v{T+1}, v{T+1}
v_lshlrev_b32 v{T+1}, 16, v{T+1}
s_mov_b32 exec_hi, 0
ds_write_b64 v1, {vr(T,2)}
s_mov_b64 exec, -1
v_mov_b32 v{vS}, v{T+1}
v_rcp_f32 v{vR}, v{T+1}
v_cndmask_b32 v{vNM}, 0, v{T}, vcc
v_and_b32 v4, 31, v0
v_lshlrev_b32 v4, 4, v4
v_add_u32 v4, {CSP}, v4
""")
            a("s_waitcnt lgkmcnt(0)"); lg.reset()
            a("s_barrier")
        def rank1(tiles, t0, accs, frs, xn):
            for t in range(tiles):
                a(f"ds_read_b128 {vr(frs[t],4)}, v4 offset:{(t0+t)*512}")
            a(f"""
v_mov_b32 v{xn+1}, 0
v_mov_b32 v{xn+2}, 0
v_mov_b32 v{xn+3}, 0
v_mov_b32 v{xn}, v{vNM}
""")
            for t in range(tiles):
                f = frs[t]
                a(f"s_waitcnt lgkmcnt({tiles-1-t})")
                a(f"v_add_f32 v{f}, v{f}, v{f+1}")
                a(f"v_add_f32 v{f+2}, v{f+2}, v{f+3}")
                a(f"v_mov_b32 v{f+3}, 0")
                a(f"v_add_f32 v{f}, v{f}, v{f+2}")
                a(f"v_cvt_pk_bf16_f32 v{f+1}, v{f}, v{f}")
                a(f"v_lshlrev_b32 v{f+1}, 16, v{f+1}")
                a(f"v_sub_f32 v{f+2}, v{f}, v{f+1}")
                a(f"v_cvt_pk_bf16_f32 v{f}, v{f+1}, v{f+2}")
                a(f"v_mov_b32 v{f+1}, 0")
                a(f"v_mov_b32 v{f+2}, 0")
                a("s_nop 1")
                a(mfma(accs[t], frs[t], xn, accs[t]))
        if uh == 0:
            rank1(3, 0, [ACC, ACC+16, ACC+32], [WF, WF+4, WF+8], WF+12)
            a.nop(6)
            PK = [WF, WF+8, CT]
            for t in range(3):
                A_ = ACC + 16*t; Pk = PK[t]
                lv, ld = L(f"{P}_v{t}"), L(f"{P}_d{t}")
                a(f"""
s_mul_i32 s30, s{sCS}, 3
s_add_u32 s30, s30, {t}
s_cmp_lt_u32 s30, 16
s_cselect_b32 s29, {CQ_BITS}, 1.0
v_mul_f32 v6, s29, v{vR}
s_lshl_b32 s69, s30, 17
s_lshl_b32 s32, s{sTBG}, 10
s_add_u32 s69, s69, s32
""")
                if t == 2: a.nop(4)
                for i in range(16): a(f"v_mul_f32 v{A_+i}, v{A_+i}, v6")
                for i in range(8): a(f"v_cvt_pk_bf16_f32 v{Pk+i}, v{A_+2*i}, v{A_+2*i+1}")
                a(f"""
s_cmp_ge_u32 s30, 32
s_cbranch_scc1 {lv}
s_add_u32 s32, s69, 65536
buffer_store_dwordx4 {vr(Pk,4)}, v{vL16}, s[{SRD_WS}:{SRD_WS+3}], s69 offen sc1
buffer_store_dwordx4 {vr(Pk+4,4)}, v{vL16}, s[{SRD_WS}:{SRD_WS+3}], s32 offen sc1
s_branch {ld}
{lv}:
s_lshl_b32 s33, s{sTB}, 11
s_add_u32 s33, s33, {VSCR}
v_and_b32 v1, 31, v0
v_lshlrev_b32 v1, 6, v1
v_lshrrev_b32 v2, 5, v0
v_lshl_add_u32 v1, v2, 3, v1
v_add_u32 v1, s33, v1
""")
                for j in range(4): a(f"ds_write_b64 v1, {vr(Pk+2*j,2)} offset:{16*j}")
                a(f"""
v_lshlrev_b32 v1, 3, v2
v_bfe_u32 v3, v0, 2, 2
v_add_u32 v1, v1, v3
v_lshlrev_b32 v1, 6, v1
v_bfe_u32 v3, v0, 4, 1
v_lshl_add_u32 v1, v3, 5, v1
v_and_b32 v7, 3, v0
v_lshl_add_u32 v1, v7, 3, v1
v_add_u32 v1, s33, v1
v_lshlrev_b32 v3, 16, v3
v_lshl_add_u32 v3, v2, 8, v3
v_and_b32 v7, 15, v0
v_lshl_add_u32 v3, v7, 4, v3
s_waitcnt lgkmcnt(0)
ds_read_b64_tr_b16 {vr(Pk,2)}, v1
ds_read_b64_tr_b16 {vr(Pk+2,2)}, v1 offset:256
ds_read_b64_tr_b16 {vr(Pk+4,2)}, v1 offset:1024
ds_read_b64_tr_b16 {vr(Pk+6,2)}, v1 offset:1280
s_waitcnt lgkmcnt(0)
buffer_store_dwordx4 {vr(Pk,4)}, v3, s[{SRD_WS}:{SRD_WS+3}], s69 offen sc1
buffer_store_dwordx4 {vr(Pk+4,4)}, v3, s[{SRD_WS}:{SRD_WS+3}], s69 offen offset:512 sc1
{ld}:
""")
                vm.issue("st", 2)
        stamp(3)
        nf = 4 if uh == 0 else 2
        tf0 = 0 if uh == 0 else 4
        def foff(t):
            tt = tf0 + t
            return (tt & 1)*12288 + (tt >> 1)*64
        a("s_nop 1")
        if uh == 0:
            for t in range(4): wread(WF+4*t, 8, 0, foff(t), f"f0_{t}")
        else:
            FS = [[WF, WF+4], [WF+8, WF+12], [ACC+40, ACC+44]]
            def freads(ks):
                f, j = ks >> 2, ks & 3
                for t in range(2): wread(FS[ks % 3][t], 8+f, j, foff(t), f"f{ks}")
                bump(AW+j, 8+f)
            freads(0); freads(1)
        for i in range(16*nf): a(f"v_mov_b32 v{ACC+i}, 0")
        for i in range(2*nf): a(f"v_mov_b32 v{CS+i}, 0")
        adds = []
        def flush_adds(n):
            for _ in range(n):
                if adds: a(adds.pop(0))
        for ks in range(32):
            f, j = ks >> 2, ks & 3
            gs = 8 + f
            if j == 2 and f < 7: midbar(gs)
            if uh == 0:
                for t in range(4):
                    lg.wait(f"f{ks}_{t}")
                    a(mfma(ACC+16*t, WF+4*t, xreg(ks), ACC+16*t))
                    if j == t and "nocs" not in opt:
                        flush_adds(8)
                        cs_unpack(WF+4*t)
                        for r in range(4):
                            adds.append(f"v_add_f32 v{CS+2*t}, v{CS+2*t}, v{CT+2*r}")
                            adds.append(f"v_add_f32 v{CS+2*t+1}, v{CS+2*t+1}, v{CT+2*r+1}")
                    else: flush_adds(3)
                    if ks + 1 < 32:
                        k2 = ks + 1
                        wread(WF+4*t, 8+(k2>>2), k2&3, foff(t), f"f{k2}_{t}")
                k2 = ks + 1
                if k2 < 32: bump(AW+(k2&3), 8+(k2>>2))
            else:
                if ks + 2 < 32: freads(ks+2)
                lg.wait(f"f{ks}")
                for t in range(2):
                    a(mfma(ACC+16*t, FS[ks % 3][t], xreg(ks), ACC+16*t))
                    dma_one()
                if j < 2 and "nocs" not in opt:
                    cs_unpack(FS[ks % 3][j]); cs_add(j)
        flush_adds(8)
        csp_write(nf, tf0)
        stamp(4)
        if uh == 0:
            lv_ = a.newlabel(L("ver"))
            a(f"s_cmp_eq_u32 s{sVER}, 1\ns_cbranch_scc1 {lv_}")
            self.poll_check(7, 0)
            a(f"{lv_}:")
        a("s_waitcnt lgkmcnt(0)"); lg.reset()
        a("s_barrier")
        kv = self.attn_loads(uh)
        def kv_one(n=1):
            for _ in range(n):
                if kv: a(kv.pop(0))
        XN2 = X
        a(f"""
v_and_b32 v4, 31, v0
v_lshlrev_b32 v4, 4, v4
v_add_u32 v4, {CSP}, v4
""")
        kv_one(2)
        rank1(nf, tf0, [ACC+16*t for t in range(nf)], [WF+4*t for t in range(nf)], XN2)
        cA, cB = X+4, X+6
        a(f"""
v_mul_f32 v{cA}, 0xbfb8aa3b, v{vR}
v_mul_f32 v{cB}, v{vS}, v{vS}
""")
        kv_one(2)
        a.nop(8)
        stores = []
        npairs = nf//2
        for i in range(npairs):
            G, U = ACC+32*i, ACC+32*i+16
            T = X + 8 + 32*i; Pk = X + 8 + 32*i + 16
            body = []
            body += [f"v_pk_mul_f32 {vr(T+r,2)}, {vr(G+r,2)}, {vr(cA,2)} op_sel_hi:[1,0]" for r in range(0,16,2)]
            body += [f"v_exp_f32 v{T+r}, v{T+r}" for r in range(16)]
            body += [f"v_pk_mul_f32 {vr(G+r,2)}, {vr(G+r,2)}, {vr(U+r,2)}" for r in range(0,16,2)]
            body += [f"v_pk_fma_f32 {vr(T+r,2)}, {vr(T+r,2)}, {vr(cB,2)}, {vr(cB,2)} op_sel_hi:[1,0,0]" for r in range(0,16,2)]
            body += [f"v_rcp_f32 v{T+r}, v{T+r}" for r in range(16)]
            body += ["s_nop 0"]
            body += [f"v_pk_mul_f32 {vr(G+r,2)}, {vr(G+r,2)}, {vr(T+r,2)}" for r in range(0,16,2)]
            body += [f"v_cvt_pk_bf16_f32 v{Pk+r}, v{G+2*r}, v{G+2*r+1}" for r in range(8)]
            every = 5
            for n_, ins in enumerate(body):
                a(ins)
                if n_ % every == every-1: kv_one()
            stores.append((i, Pk))
        kv_one(18)
        for (i, Pk) in stores:
            a(f"""
s_mul_i32 s29, s{sCS}, 3
s_add_u32 s29, s29, {(tf0>>1)+i}
s_mul_i32 s30, s{sTBG}, 86
s_lshl_b32 s31, s29, 1
s_add_u32 s30, s30, s31
s_lshl_b32 s30, s30, 10
s_add_u32 s30, s30, {HF}
s_cmp_ge_u32 s29, 43
s_cselect_b32 s30, {WSEND}, s30
buffer_store_dwordx4 {vr(Pk,4)}, v{vL16}, s[{SRD_WS}:{SRD_WS+3}], s30 offen sc1
buffer_store_dwordx4 {vr(Pk+4,4)}, v{vL16}, s[{SRD_WS}:{SRD_WS+3}], s30 offen offset:1024 sc1
""")
        stamp(5)

    BQ = [216, 220]
    def attn_loads(self, uh):
        a = self.a; Q = self.BQ
        a(f"""
s_lshl_b32 s33, s{sHD}, 16
s_lshl_b32 s{sTB0}, s{sQB}, 3
s_lshl_b32 s29, s{sTB}, 1
s_add_u32 s{sTB0}, s{sTB0}, s29
s_lshl_b32 s29, s{sTB0}, 10
s_add_u32 s69, s33, s29
""")
        a(f"""
s_lshr_b32 s29, s{sW}, 1
s_and_b32 s29, s29, 1
s_and_b32 s30, s{sW}, 1
s_lshl_b32 s30, s30, 2
s_lshl_b32 s31, s{sUH}, 5
s_add_u32 s30, s30, s31
s_add_u32 s30, s30, 16
s_lshl_b32 s30, s30, 10
s_lshl_b32 s31, s29, 16
s_add_u32 s{sDST}, s31, s30
s_lshl_b32 s31, s29, 21
s_add_u32 s{sSRC}, s31, s30
s_add_u32 s{sSRC}, s{sSRC}, s33
s_add_u32 s{sSRC}, s{sSRC}, {KF}
""")
        g = []
        g.append(f"buffer_load_dwordx4 {vr(Q[0],4)}, v{vL16}, s[{SRD_WS}:{SRD_WS+3}], s69 offen sc1")
        g.append(f"buffer_load_dwordx4 {vr(Q[1],4)}, v{vL16}, s[{SRD_WS}:{SRD_WS+3}], s69 offen offset:1024 sc1")
        if uh == 1:
            a(f"""
s_and_b32 s29, s{sTB}, 1
s_lshr_b32 s30, s{sTB}, 1
s_lshl_b32 s30, s30, 15
s_lshl_b32 s31, s29, 16
s_add_u32 s{sK0D}, s31, s30
s_lshl_b32 s31, s29, 21
s_add_u32 s{sK0S}, s31, s30
s_add_u32 s{sK0S}, s{sK0S}, s33
s_add_u32 s{sK0S}, s{sK0S}, {KF}
""")
            for h_ in range(4):
                for q in range(4):
                    t = ""
                    if q == 0: t += f"s_mov_b32 m0, s{sK0D}\ns_add_u32 s{sK0D}, s{sK0D}, 4096\n"
                    t += f"buffer_load_dwordx4 v{vL16}, s[{SRD_WS}:{SRD_WS+3}], s{sK0S} offen offset:{q*1024} sc1 lds"
                    if q == 3: t += f"\ns_add_u32 s{sK0S}, s{sK0S}, 4096"
                    g.append(t)
        return g

    def phaseB(self):
        a = self.a; L = self.L; opt = self.opt; stamp = self.stamp
        vAK, vAV, vIDX = 2, 3, 4
        Q = self.BQ; K = [16, 20]; V = [24, 32]; S = [40, 56]; O = [72, 88]; C = [104, 120]; T = 136
        NST = 4
        a("s_nop 1")
        a(f"""
v_mov_b32 v{vIDX}, 0xdddddddd
v_and_b32 v5, 27, v0
v_cmp_eq_u32 vcc, 16, v5
v_mov_b32 v6, 0x3f803f80
s_mov_b32 s{sMASK}, 0x0000ffff
v_cndmask_b32 v{V[0]}, 0, v6, vcc
""")
        for i in range(1,16): a(f"v_mov_b32 v{V[0]+i}, v{V[0]}")
        a(f"""
s_mov_b32 s{sMASK+1}, 0x0000ffff
s_mov_b32 s{sREDO}, 0
s_lshl_b32 s35, s{sUH}, 15
v_lshrrev_b32 v5, 5, v0
v_lshlrev_b32 v5, 8, v5
v_and_b32 v6, 15, v0
v_lshl_add_u32 v5, v6, 4, v5
s_add_u32 s29, s35, 65536
v_add_u32 v1, s29, v5
v_mov_b32 v5, {FLAG}
v_mov_b32 v6, 0
ds_write_b32 v5, v6
s_cmp_eq_u32 s{sUH}, 0
s_cbranch_scc1 {L('bw0')}
s_waitcnt vmcnt(10)
{L('bw0')}:
s_waitcnt vmcnt(10) lgkmcnt(0)
""")
        a(f"""
s_cmp_lg_u32 s{sUH}, 0
s_cbranch_scc1 {L('bw1')}
s_waitcnt vmcnt(4)
{L('bw1')}:
s_barrier
""")
        stamp(6)
        if "nocpf" not in opt:
            a(f"""
s_lshr_b32 s29, s2, 3
s_lshl_b32 s29, s29, 9
s_lshl_b32 s30, s{sW}, 6
s_add_u32 s29, s29, s30
v_add_u32 v5, s29, v0
v_lshlrev_b32 v5, 7, v5
s_mov_b32 s{SRD_WQ}, s{pW2}
s_mov_b32 s{SRD_WQ+1}, s{pW2+1}
s_mov_b32 s{SRD_WQ+2}, {1376*1024}
buffer_load_dword v163, v5, s[{SRD_WQ}:{SRD_WQ+3}], 0 offen
v_subrev_u32 v6, {1376*1024}, v5
s_mov_b32 s{SRD_WF}, s{pWO}
s_mov_b32 s{SRD_WF+1}, s{pWO+1}
s_mov_b32 s{SRD_WF+2}, {512*1024}
buffer_load_dword v164, v6, s[{SRD_WF}:{SRD_WF+3}], 0 offen
""")
        a.label(L('redo'))
        a(f"""
s_cmp_eq_u32 s{sREDO}, 0
s_cselect_b32 s29, 1, 32
v_add_u32 v{vAK}, s35, v{vL16}
v_mov_b32 v{T}, 0xff800000
v_mov_b32 v{T+1}, 0xff800000
""")
        a.label(L('maxloop'))
        a(f"""
ds_read_b128 {vr(K[0],4)}, v{vAK}
v_add_u32 v{vAK}, 1024, v{vAK}
s_waitcnt lgkmcnt(0)
{mfma(S[0],K[0],Q[0],None)}
{mfma(S[1],K[0],Q[1],None)}
s_sub_u32 s29, s29, 1
""")
        a.nop(12)
        for i in range(8):
            for t in range(2):
                a(f"v_max3_f32 v{T+t}, v{T+t}, v{S[t]+2*i}, v{S[t]+2*i+1}")
        a(f"""
s_cmp_lg_u32 s29, 0
s_cbranch_scc1 {L('maxloop')}
v_mov_b32 v{T+2}, v{T}
v_mov_b32 v{T+3}, v{T+1}
v_add_u32 v{vAK}, s35, v{vL16}
v_mov_b32 v{vAV}, v1
v_permlane32_swap_b32 v{T}, v{T+2}
v_permlane32_swap_b32 v{T+1}, v{T+3}
s_mov_b64 exec, s[{sMASK}:{sMASK+1}]
ds_read_b128 {vr(V[0],4)}, v{vAV}
ds_read_b128 {vr(V[0]+4,4)}, v{vAV} offset:512
s_mov_b64 exec, -1
v_max_f32 v{T}, v{T}, v{T+2}
v_max_f32 v{T+1}, v{T+1}, v{T+3}
""")
        a(f"ds_read_b128 {vr(K[0],4)}, v{vAK}")
        for i in range(16): a(f"v_sub_f32 v{C[0]+i}, 0, v{T}")
        a("s_waitcnt lgkmcnt(0)")
        a("s_nop 0")
        a(mfma(S[0],K[0],Q[0],C[0]))
        for i in range(16): a(f"v_sub_f32 v{C[1]+i}, 0, v{T+1}")
        for t in range(2):
            for i in range(16): a(f"v_mov_b32 v{O[t]+i}, 0")
        for i in range(8,16): a(f"v_mov_b32 v{S[1]+i}, 0")
        a(f"s_mov_b32 s{sSTG}, 0")
        stamp(7)
        a.label(L('loop'))
        for t in range(8):
            p = t & 1
            if t == 1:
                lk = L('kvn')
                a(f"""
s_cmp_gt_u32 s{sSTG}, 1
s_cbranch_scc1 {lk}
s_cmp_lg_u32 s{sREDO}, 0
s_cbranch_scc1 {lk}
s_mov_b32 m0, s{sDST}
s_add_u32 s{sDST}, s{sDST}, 8192
""")
                for q in range(4):
                    a(f"buffer_load_dwordx4 v{vL16}, s[{SRD_WS}:{SRD_WS+3}], s{sSRC} offen offset:{q*1024} sc1 lds")
                a(f"s_add_u32 s{sSRC}, s{sSRC}, 8192")
                a(f"{lk}:")
            if t == 6:
                l0, l1, l2, l3, lb = L('st0'), L('st1'), L('st2'), L('st3'), L('stb')
                a(f"""
s_cmp_eq_u32 s{sSTG}, 3
s_cbranch_scc1 {l3}
s_cmp_eq_u32 s{sSTG}, 2
s_cbranch_scc1 {l2}
s_waitcnt vmcnt(4)
s_branch {lb}
{l2}:
s_waitcnt vmcnt(0)
{lb}:
s_barrier
s_cmp_lg_u32 s{sREDO}, 0
s_cbranch_scc1 {l3}
s_cmp_lg_u32 s{sSTG}, 0
s_cbranch_scc1 {l0}
s_lshl_b32 s29, s{sRB}, 7
s_lshl_b32 s30, s{sCS}, 2
s_add_u32 s29, s29, s30
s_add_u32 s29, s29, {F2}
""")
                self.signal(29)
                a(f"""
s_lshr_b32 s29, s{sRB64}, 1
s_lshl_b32 s29, s29, 7
s_add_u32 s29, s29, {F2}
v_and_b32 v7, 15, v0
v_lshl_add_u32 v7, v7, 2, s29
s_branch {l3}
{l0}:
s_cmp_lg_u32 s{sSTG}, 1
s_cbranch_scc1 {l1}
""")
                self.poll_issue(7)
                a(f"""
s_branch {l3}
{l1}:
""")
                if "nohpf" not in opt:
                    a(f"""
s_cmp_lg_u32 s{sW}, 0
s_cbranch_scc1 {l3}
v_cmp_ne_u32 vcc, s{sTAG}, v{vPOLL}
s_nop 4
s_cmp_eq_u64 vcc, 0
s_cbranch_scc0 {l3}
s_mul_i32 s29, s{sRB64}, 176128
s_mul_i32 s30, s{sCB}, {172*128}
s_add_u32 s29, s29, s30
s_add_u32 s29, s29, {HF}
v_lshlrev_b32 v5, 7, v0
buffer_load_dword v160, v5, s[{SRD_WS}:{SRD_WS+3}], s29 offen
v_add_u32 v5, 8192, v5
buffer_load_dword v161, v5, s[{SRD_WS}:{SRD_WS+3}], s29 offen
v_add_u32 v5, 8192, v5
v_min_u32 v5, {171*128}, v5
buffer_load_dword v162, v5, s[{SRD_WS}:{SRD_WS+3}], s29 offen
""")
                a(f"{l3}:")
            exA = [f"v_exp_f32 v{S[0]+i}, v{S[0]+i}" for i in range(16)]
            exB = [f"v_exp_f32 v{S[1]+i}, v{S[1]+i}" for i in range(16)]
            insA = [
                (3, smf(O[1], V[p^1]+4, S[1]+8, vIDX)),
                (5, mfma(S[1], K[p], Q[1], C[1])),
                (8, f"ds_read_b128 {vr(K[p^1],4)}, v{vAK} offset:{(t+1)*1024}"),
                (8, f"s_mov_b64 exec, s[{sMASK}:{sMASK+1}]"),
                (8, f"ds_read_b128 {vr(V[p^1],4)}, v{vAV} offset:{(t+1)*1024}"),
                (8, f"ds_read_b128 {vr(V[p^1]+4,4)}, v{vAV} offset:{(t+1)*1024+512}"),
                (8, f"s_mov_b64 exec, -1"),
                (11, smf(O[0], V[p], S[0], vIDX)),
            ]
            insB = [
                (3, smf(O[0], V[p]+4, S[0]+8, vIDX)),
                (5, "s_waitcnt lgkmcnt(0)"),
                (5, mfma(S[0], K[p^1], Q[0], C[0])),
                (11, smf(O[1], V[p], S[1], vIDX)),
            ]
            for l in interleave(exA, insA): a(l)
            for l in interleave(exB, insB): a(l)
        a(f"""
v_add_u32 v{vAK}, 8192, v{vAK}
v_add_u32 v{vAV}, 8192, v{vAV}
s_add_u32 s{sSTG}, s{sSTG}, 1
s_cmp_lt_u32 s{sSTG}, 4
s_cbranch_scc1 {L('loop')}
{smf(O[1], V[1]+4, S[1]+8, vIDX)}
""")
        stamp(8)
        a(f"""
s_cmp_lg_u32 s{sREDO}, 0
s_cbranch_scc1 {L('vote')}
""")
        a.nop(12)
        a(f"v_mul_f32 v{T}, 0, v{O[0]}")
        for t in range(2):
            for i in range(8):
                if t == 0 and i == 0: continue
                a(f"v_fma_f32 v{T}, v{O[t]+i}, 0, v{T}")
        a(f"""
v_max_f32 v{T+1}, v{O[0]+8}, v{O[1]+8}
v_add_f32 v{T+2}, v{O[0]+8}, v{O[1]+8}
v_add_f32 v{T+1}, v{T+1}, v{T}
v_mul_f32 v{T+2}, 0, v{T+2}
v_add_f32 v{T+1}, v{T+1}, v{T+2}
v_mov_b32 v{T+3}, 0x4e800000
v_mov_b32 v5, {FLAG}
v_cmp_nle_f32 vcc, v{T+1}, v{T+3}
v_mov_b32 v6, 1
s_nop 3
s_cmp_eq_u64 vcc, 0
s_cbranch_scc1 {L('vote')}
ds_write_b32 v5, v6
s_waitcnt lgkmcnt(0)
{L('vote')}:
""")
        self.poll_check(7, 1)
        a(f"""
s_barrier
s_cmp_lg_u32 s{sREDO}, 0
s_cbranch_scc1 {L('ok')}
v_mov_b32 v5, {FLAG}
ds_read_b32 v6, v5
s_waitcnt lgkmcnt(0)
v_readfirstlane_b32 s29, v6
s_nop 3
s_cmp_eq_u32 s29, 0
s_cbranch_scc1 {L('ok')}
s_mov_b32 s{sREDO}, 1
s_branch {L('redo')}
{L('ok')}:
""")
        self.c_setup()
        def c_some(q0, q1):
            l = a.newlabel(L("cp"))
            a(f"s_cmp_eq_u32 s{sUH}, 0\ns_cbranch_scc1 {l}")
            for g_ in self.c_pieces(q0, q1): a(g_)
            a(f"{l}:")
        a(f"""
s_cmp_eq_u32 s{sUH}, 0
s_cbranch_scc1 {L('noswap')}
""")
        for i in range(9): a(f"v_swap_b32 v{O[0]+i}, v{O[1]+i}")
        a(f"v_swap_b32 v{C[0]}, v{C[1]}")
        a.label(L('noswap'))
        a(f"""
s_mul_i32 s29, s{sW}, 2560
s_add_u32 s29, s29, {EX}
s_xor_b32 s30, s{sW}, 4
s_mul_i32 s30, s30, 2560
s_add_u32 s30, s30, {EX}
v_add_u32 v5, s29, v{vL16}
v_lshlrev_b32 v6, 3, v0
v_add_u32 v6, s29, v6
v_mov_b32 v{T}, v{O[1]+8}
v_mov_b32 v{T+1}, v{C[1]}
ds_write_b128 v5, {vr(O[1],4)}
ds_write_b128 v5, {vr(O[1]+4,4)} offset:1024
ds_write_b64 v6, {vr(T,2)} offset:2048
v_add_u32 v5, s30, v{vL16}
v_lshlrev_b32 v6, 3, v0
v_add_u32 v6, s30, v6
""")
        c_some(0, 4)
        a(f"""
s_waitcnt lgkmcnt(0)
s_barrier
ds_read_b64 {vr(T,2)}, v6 offset:2048
ds_read_b128 {vr(O[1],4)}, v5
ds_read_b128 {vr(O[1]+4,4)}, v5 offset:1024
""")
        c_some(4, 8)
        a(f"""
s_waitcnt lgkmcnt(2)
v_min_f32 v{T+2}, v{T+1}, v{C[0]}
v_sub_f32 v{T+3}, v{T+2}, v{C[0]}
v_sub_f32 v{T+4}, v{T+2}, v{T+1}
v_exp_f32 v{T+3}, v{T+3}
v_exp_f32 v{T+4}, v{T+4}
s_nop 0
v_mul_f32 v{T+5}, v{T+3}, v{O[0]+8}
v_fma_f32 v{T+5}, v{T+4}, v{T}, v{T+5}
v_rcp_f32 v{T+5}, v{T+5}
s_nop 0
v_mul_f32 v{T+3}, v{T+3}, v{T+5}
v_mul_f32 v{T+4}, v{T+4}, v{T+5}
s_waitcnt lgkmcnt(0)
""")
        for i in range(8): a(f"v_mul_f32 v{O[0]+i}, v{O[0]+i}, v{T+3}")
        for i in range(8): a(f"v_fma_f32 v{O[0]+i}, v{O[1]+i}, v{T+4}, v{O[0]+i}")
        for i in range(4): a(f"v_cvt_pk_bf16_f32 v{T+8+i}, v{O[0]+2*i}, v{O[0]+2*i+1}")
        a(f"""
s_add_u32 s29, s{sTB0}, s{sUH}
s_lshl_b32 s29, s29, 5
s_add_u32 s29, s29, s{sHD}
s_lshl_b32 s29, s29, 10
s_add_u32 s29, s29, {OF}
buffer_store_dwordx4 {vr(T+8,4)}, v{vL16}, s[{SRD_WS}:{SRD_WS+3}], s29 offen sc1
""")
        stamp(9)

    cSRC, cA, cW = 224, 225, 226
    SRD_C = 4
    def c_setup(self):
        a = self.a; L = self.L
        vS_ = self.cSRC; C4 = self.SRD_C
        a(f"""
v_lshrrev_b32 v5, 3, v0
v_lshrrev_b32 v6, 4, v0
v_and_b32 v6, 1, v6
v_lshlrev_b32 v6, 2, v6
v_and_b32 v7, 7, v0
v_xor_b32 v6, v6, v7
v_lshlrev_b32 v6, 4, v6
v_lshl_add_u32 v{vS_}, v5, 10, v6
s_lshl_b32 s29, s{sCB}, 7
v_add_u32 v{vS_}, s29, v{vS_}
s_mov_b32 s{SRD_WF}, s{pOUT}
s_mov_b32 s{SRD_WF+1}, s{pOUT+1}
s_mov_b32 s{SRD_WF+2}, {2048*1024}
s_mov_b32 s{C4}, s{pW2}
s_mov_b32 s{C4+1}, s{pW2+1}
s_mov_b32 s{C4+2}, {1376*1024}
s_mov_b32 s{C4+3}, 0x20000
s_lshr_b32 s29, s{sTB}, 1
s_lshl_b32 s30, s{sRB64}, 1
s_add_u32 s30, s30, s29
s_mul_i32 s31, s30, 86
s_and_b32 s32, s{sTB}, 1
s_lshl_b32 s32, s32, 2
s_add_u32 s31, s31, s32
s_lshl_b32 s31, s31, 10
s_add_u32 s{sAOFF}, s31, {HF}
s_lshl_b32 s30, s30, 5
s_add_u32 s30, s30, s32
s_lshl_b32 s30, s30, 10
s_add_u32 s{sALT}, s30, {OF}
s_lshl_b32 s29, s29, 13
s_lshl_b32 s32, s32, 10
s_add_u32 s{sLOFF}, s29, s32
s_lshl_b32 s{sWOFF}, s{sTB}, 15
s_lshl_b32 s{sWL}, s{sTB}, 12
s_add_u32 s{sWL}, s{sWL}, 16384
s_mov_b32 s{sISS}, 0
""")
    def c_pieces(self, q0=0, q1=8):
        a = self.a; L = self.L; vS_ = self.cSRC; C4 = self.SRD_C
        out = []
        for q in range(q0, q1):
            t = ""
            if q == 0:
                lns = a.newlabel(L('ns'))
                t += f"""s_cmp_lg_u32 s{sISS}, 11
s_cbranch_scc1 {lns}
s_mov_b32 s{sAOFF}, s{sALT}
s_lshl_b32 s{sWOFF}, s{sTB}, 15
s_mov_b32 s{C4}, s{pWO}
s_mov_b32 s{C4+1}, s{pWO+1}
s_mov_b32 s{C4+2}, {512*1024}
{lns}:
s_cmp_eq_u32 s{sISS}, 10
s_cselect_b32 s{sA2}, s{sTB}, 0
s_and_b32 s{sA2}, s{sA2}, 1
s_lshl_b32 s{sA2}, s{sA2}, 11
s_sub_u32 s{sA2}, s{sAOFF}, s{sA2}
s_and_b32 s{sTMP}, s{sISS}, 3
s_lshl_b32 s{sTMP}, s{sTMP}, 15
s_add_u32 m0, s{sTMP}, s{sLOFF}
s_add_u32 s{sISS}, s{sISS}, 1
"""
            if q < 4:
                t += f"buffer_load_dwordx4 v{vL16}, s[{SRD_WS}:{SRD_WS+3}], s{sAOFF if q < 2 else sA2} offen offset:{q*1024} sc1 lds"
                if q == 3: t += f"\ns_add_u32 s{sAOFF}, s{sAOFF}, 8192\ns_add_u32 s{sTMP}, s{sTMP}, s{sWL}"
            else:
                t += f"s_mov_b32 m0, s{sTMP}\ns_add_u32 s{sTMP}, s{sTMP}, 1024\n"
                t += f"buffer_load_dwordx4 v{vS_}, s[{C4}:{C4+3}], s{sWOFF} offen lds\n"
                t += f"s_add_u32 s{sWOFF}, s{sWOFF}, {8192 if q < 7 else 8192 + 96*1024}"
            out.append(t)
        return out

    def phaseC(self):
        a = self.a; L = self.L; stamp = self.stamp
        vA, vW = self.cA, self.cW
        ACCc = 16; AF = [32+4*i for i in range(8)]; WFr = [64+4*i for i in range(8)]; T = 96
        NST = 15
        a(f"s_cmp_eq_u32 s{sUH}, 0")
        a(f"s_cbranch_scc0 {L('cprod')}")
        a(f"""
s_lshr_b32 s29, s{sW}, 1
s_lshl_b32 s30, s{sRB64}, 1
s_add_u32 s30, s30, s29
s_lshl_b32 s30, s30, 15
s_and_b32 s31, s{sW}, 1
s_lshl_b32 s31, s31, 6
s_lshl_b32 s32, s{sCB}, 7
s_add_u32 s30, s30, s31
s_add_u32 s34, s30, s32
v_and_b32 v8, 31, v0
v_lshlrev_b32 v8, 10, v8
v_lshrrev_b32 v6, 5, v0
v_lshl_add_u32 v8, v6, 4, v8
buffer_load_dwordx4 v[{T}:{T+3}], v8, s[{SRD_X}:{SRD_X+3}], s34 offen
buffer_load_dwordx4 v[{T+4}:{T+7}], v8, s[{SRD_X}:{SRD_X+3}], s34 offen offset:32
s_lshl_b32 s29, s29, 13
v_add_u32 v{vA}, s29, v{vL16}
v_lshrrev_b32 v5, 5, v0
v_lshlrev_b32 v5, 2, v5
v_bfe_u32 v6, v0, 2, 2
v_add_u32 v5, v5, v6
v_lshlrev_b32 v5, 7, v5
v_lshrrev_b32 v6, 1, v6
s_and_b32 s30, s{sW}, 1
v_xor_b32 v6, s30, v6
v_lshl_add_u32 v5, v6, 6, v5
v_bfe_u32 v6, v0, 4, 1
v_lshl_add_u32 v5, v6, 5, v5
v_and_b32 v6, 3, v0
v_lshl_add_u32 v5, v6, 3, v5
v_add_u32 v{vW}, 16384, v5
s_lshr_b32 s29, s{sRB64}, 2
s_lshl_b32 s29, s29, 7
s_add_u32 s29, s29, {F3}
v_and_b32 v7, 31, v0
v_lshl_add_u32 v7, v7, 2, s29
""")
        for i in range(16): a(f"v_mov_b32 v{ACCc+i}, 0")
        a(f"s_mov_b32 s{sCST}, 0")
        a.label(L('cloop'))
        n1, n2, n3, n4 = L('c_n1'), L('c_n2'), L('c_n3'), L('c_n4')
        a(f"""
s_cmp_lg_u32 s{sCST}, 0
s_cbranch_scc1 {n4}
s_waitcnt vmcnt(0)
{n4}:
s_cmp_lg_u32 s{sCST}, 8
s_cbranch_scc1 {n2}
""")
        self.poll_check(7, 2)
        a(f"""
{n2}:
s_barrier
s_cmp_lg_u32 s{sCST}, 0
s_cbranch_scc1 {n1}
s_lshl_b32 s29, s{sQB}, 7
s_lshl_b32 s30, s{sHD}, 2
s_add_u32 s29, s29, s30
s_add_u32 s29, s29, {F3}
""")
        self.signal(29)
        a(f"{n1}:")
        def rd(j):
            a(f"ds_read_b128 {vr(AF[j],4)}, v{vA} offset:{j*1024}")
            a(f"ds_read_b64_tr_b16 {vr(WFr[j],2)}, v{vW} offset:{j*2048}")
            a(f"ds_read_b64_tr_b16 {vr(WFr[j]+2,2)}, v{vW} offset:{j*2048+1024}")
        for j in range(5): rd(j)
        for j in range(8):
            a(f"s_waitcnt lgkmcnt({min(12, 3*(7-j) if j >= 3 else 12)})")
            a(mfma(ACCc, WFr[j], AF[j], ACCc))
            if j + 5 < 8: rd(j+5)
        a(f"""
s_cmp_lg_u32 s{sCST}, 4
s_cbranch_scc1 {n3}
""")
        self.poll_issue(7)
        a(f"""
{n3}:
v_add_u32 v{vA}, 32768, v{vA}
v_and_b32 v{vA}, 0x1ffff, v{vA}
v_add_u32 v{vW}, 32768, v{vW}
v_and_b32 v{vW}, 0x1ffff, v{vW}
s_add_u32 s{sCST}, s{sCST}, 1
s_cmp_lt_u32 s{sCST}, {NST}
s_cbranch_scc1 {L('cloop')}
""")
        stamp(10)
        a.nop(10)
        for h_ in range(2):
            A_ = ACCc + 8*h_; Xr = T + 4*h_; U = T + 8
            for i in range(4): a(f"v_permlane32_swap_b32 v{A_+i}, v{A_+4+i}")
            for i in range(4):
                a(f"v_lshlrev_b32 v{U+2*i}, 16, v{Xr+i}")
                a(f"v_and_b32 v{U+2*i+1}, 0xffff0000, v{Xr+i}")
            for i in range(8): a(f"v_add_f32 v{A_+i}, v{A_+i}, v{U+i}")
            for i in range(4): a(f"v_cvt_pk_bf16_f32 v{Xr+i}, v{A_+2*i}, v{A_+2*i+1}")
            a(f"buffer_store_dwordx4 v[{Xr}:{Xr+3}], v8, s[{SRD_WF}:{SRD_WF+3}], s34 offen offset:{32*h_}")
        a(f"s_cmp_lg_u32 s2, 0")
        a(f"s_cbranch_scc1 {L('cdone')}")
        a(f"s_mov_b32 s29, {FW0}")
        self.signal(29)
        a(f"s_branch {L('cdone')}")
        a.label(L('cprod'))
        for st_ in range(2):
            for g_ in self.c_pieces(): a(g_)
        a(f"s_mov_b32 s{sCST}, 0")
        a.label(L('ploop'))
        a("s_waitcnt vmcnt(16)")
        a("s_barrier")
        lskip = L('pskip')
        a(f"s_cmp_ge_u32 s{sISS}, {NST}\ns_cbranch_scc1 {lskip}")
        for g_ in self.c_pieces(): a(g_)
        a(f"""
s_branch {L('pnext')}
{lskip}:
s_waitcnt vmcnt(0)
{L('pnext')}:
s_add_u32 s{sCST}, s{sCST}, 1
s_cmp_lt_u32 s{sCST}, {NST}
s_cbranch_scc1 {L('ploop')}
""")
        stamp(10)
        a.label(L('cdone'))

    def build(self):
        a = self.a; L = self.L
        self.prologue()
        a(f"s_cmp_eq_u32 s{sUH}, 0")
        a(f"s_cbranch_scc0 {L('uh1')}")
        self.phaseA(0)
        a(f"s_branch {L('join')}")
        a.label(L('uh1'))
        self.phaseA(1)
        a.label(L('join'))
        self.phaseB()
        self.phaseC()
        if self.stamps:
            a("s_waitcnt vmcnt(0)")
            self.stamp(11)
            a("s_memrealtime s[98:99]")
            a("s_waitcnt lgkmcnt(0)")
            for i in range(1,12): a(f"s_sub_u32 s{70+2*i}, s{70+2*i}, s70")
            a("s_sub_u32 s98, s98, s96")
            a("s_sub_u32 s94, s94, s70")
            a("s_mov_b32 s96, s94")
            a(f"""
s_lshl_b32 s29, s2, 3
s_add_u32 s29, s29, s{sW}
s_lshl_b32 s29, s29, 6
s_add_u32 s29, s29, 0xE00000
""")
            for i in range(1,12): a(f"v_mov_b32 v{7+i}, s{70+2*i}")
            a(f"""
v_mov_b32 v19, s98
v_mov_b32 v20, s96
v_mov_b32 v21, 0
v_mov_b32 v22, 0
v_mov_b32 v23, 0
v_mov_b32 v24, s29
s_mov_b64 exec, 1
global_store_dwordx4 v24, v[8:11], s[20:21]
global_store_dwordx4 v24, v[12:15], s[20:21] offset:16
global_store_dwordx4 v24, v[16:19], s[20:21] offset:32
global_store_dwordx4 v24, v[20:23], s[20:21] offset:48
""")
        a.label(L('bail'))
        a.label(L('end'))
        a("s_endpgm")
        return kernel_text(self.name, a.text(), vgpr=256, sgpr=100)

HDR = open("parallel_sum__mha_block__glu_gated_swiglu__prompt.s.ref").read().split("; Override launch geometry")[0]
def make(stamps=False, opt=(), name=KNAME):
    s = HDR + f"; @launch grid=(256,1,1) block=(512,1,1) lds={LDS_TOTAL}\n"
    s += '.amdgcn_target "amdgcn-amd-amdhsa--gfx950"\n'
    s += Gen(name, stamps, opt).build()
    return s
if __name__ == "__main__":
    open("pk.s","w").write(make())
```

```python
from asmlib import *
import struct
QF, KF, VF, HF, OF, WSEND = 0, 0x200000, 0x400000, 0x600000, 0xB60000, 0xD60000
SLOT = 28672
MISC = 131072
STAT = MISC
CSP  = MISC + 1024
VSCR = MISC + 4096
EX   = MISC
FLAG = MISC + 20480
LDS_TOTAL = MISC + 4096 + 4*6144
FL = 0xD60000
F1, F2, F3, FW0 = FL, FL + 4096, FL + 8192, FL + 12288
CQ_BITS = 0x3EB8AA3B
KNAME = "parallel_sum__mha_block__glu_gated_swiglu__prompt_kernel"

def mfma(d, a, b, c):
    cc = vr(c, 16) if c is not None else "0"
    return f"v_mfma_f32_32x32x16_bf16 {vr(d,16)}, {vr(a,4)}, {vr(b,4)}, {cc}"
def smf(d, a, b, idx):
    return f"v_smfmac_f32_32x32x32_bf16 {vr(d,16)}, {vr(a,4)}, {vr(b,8)}, v{idx}"
def mf4(d, a, b):
    return f"v_mfma_f32_4x4x4_16b_bf16 {vr(d,4)}, {vr(a,2)}, {vr(b,2)}, {vr(d,4)}"

SRD_X, SRD_WQ, SRD_WF, SRD_WS = 8, 12, 16, 20
SRD_W3 = 4
sW, sTB, sUH, sCS, sRB = 24, 25, 26, 27, 28
pOUT, pW2, pWO, pDBG = 36, 38, 40, 42
sXD, sWD, sFD, sFB, sTBG = 44, 45, 46, 47, 48
sHD, sQB, sSRC, sDST, sSTG, sREDO, sTB0 = 49, 50, 51, 52, 53, 54, 55
sMASK = 56
sRB64, sCB, sAOFF, sALT, sLOFF, sISS, sTMP, sCST = 58, 59, 60, 61, 62, 63, 64, 65
sSPIN = 66
sWOFF, sWL = 67, 68
sK0D, sK0S = 67, 68
sTAG = 3
sWB = 35
sVER = 42
sA2 = 43
X = 8; ACC = 136; WF = 200; CSA = 216; SEL = 232
AW = 236; AX = 240; VX = 244; VW = 246; VFo = 232
vNM, vS, vR = 251, 252, 253
vPOLL = 254
vL16 = 255

class Gen:
    def __init__(self, name=KNAME, stamps=False, opt=(), prefix="L"):
        self.a = Asm(); self.name = name; self.stamps = stamps; self.opt = set(opt); self.prefix = prefix
    def L(self, s): return f"{self.prefix}_{s}"
    def stamp(self, i, c=False):
        if ("cst2" in self.opt or "cst3" in self.opt or "pst" in self.opt) and 1 <= i <= 7: return
        if "cstamps" in self.opt and (1 <= i <= 7) != c:
            if not (i == 0 or i >= 8): return
            if c: return
        if self.stamps: self.a(f"s_memtime s[{70+2*i}:{71+2*i}]")

    def signal(self, off_sgpr):
        a = self.a; l = a.newlabel(self.L("sig"))
        a(f"""
s_cmp_lg_u32 s{sW}, 0
s_cbranch_scc1 {l}
v_mov_b32 v5, s{off_sgpr}
v_mov_b32 v6, s{sTAG}
s_mov_b64 exec, 1
global_store_dword v5, v6, s[{SRD_WS}:{SRD_WS+1}] sc1
s_mov_b64 exec, -1
{l}:
""")
    def poll_issue(self, vaddr):
        a = self.a; l = a.newlabel(self.L("pi"))
        a(f"""
s_cmp_lg_u32 s{sW}, 0
s_cbranch_scc1 {l}
global_load_dword v{vPOLL}, v{vaddr}, s[{SRD_WS}:{SRD_WS+1}] sc1
{l}:
""")
    def poll_check(self, vaddr, site=0, wait=True):
        a = self.a; ok = a.newlabel(self.L("pok")); sp = a.newlabel(self.L("psp")); bail = self.L("bail")
        a(f"""
s_cmp_lg_u32 s{sW}, 0
s_cbranch_scc1 {ok}
s_mov_b32 s{sSPIN}, 0
""")
        if wait is True: a("s_waitcnt vmcnt(0)")
        elif wait: a(f"s_waitcnt vmcnt({wait})")
        a(f"""
{sp}:
v_cmp_ne_u32 vcc, s{sTAG}, v{vPOLL}
s_nop 4
s_cmp_eq_u64 vcc, 0
s_cbranch_scc1 {ok}
s_add_u32 s{sSPIN}, s{sSPIN}, 1
s_cmp_gt_u32 s{sSPIN}, 0x8000
s_cbranch_scc1 {bail}
s_sleep 1
global_load_dword v{vPOLL}, v{vaddr}, s[{SRD_WS}:{SRD_WS+1}] sc1
s_waitcnt vmcnt(0)
s_branch {sp}
{ok}:
""")
        if self.stamps:
            if site == 2: self.stamp(12)

    def prologue(self):
        a = self.a; L = self.L
        a(f"""
s_cmp_ge_u32 s2, 256
s_cbranch_scc1 {L('end')}
s_load_dwordx4 s[4:7], s[0:1], 0
s_load_dwordx4 s[60:63], s[0:1], 32
s_load_dwordx2 s[{pW2}:{pW2+1}], s[0:1], 48
s_load_dwordx2 s[{pWO}:{pWO+1}], s[0:1], 16
s_load_dwordx4 s[64:67], s[0:1], 56
s_load_dwordx2 s[68:69], s[0:1], 72
""")
        if self.stamps:
            a("s_memtime s[70:71]")
            a("s_memrealtime s[96:97]")
        a(f"""
v_lshrrev_b32 v1, 6, v0
v_and_b32 v0, 63, v0
s_and_b32 s29, s2, 7
v_readfirstlane_b32 s{sW}, v1
s_lshr_b32 s30, s2, 3
s_and_b32 s31, s29, 1
s_lshl_b32 s31, s31, 3
s_and_b32 s32, s30, 7
s_add_u32 s{sRB}, s31, s32
s_lshr_b32 s31, s29, 1
s_lshl_b32 s31, s31, 2
s_lshr_b32 s33, s30, 3
s_add_u32 s{sCS}, s31, s33
s_lshl_b32 s31, s29, 2
s_add_u32 s{sHD}, s31, s33
s_mov_b32 s{sQB}, s32
s_mov_b32 s{sRB64}, s{sHD}
s_mov_b32 s{sCB}, s32
v_lshlrev_b32 v{vL16}, 4, v0
v_mov_b32 v7, 0
s_and_b32 s{sTB}, s{sW}, 3
s_lshr_b32 s{sUH}, s{sW}, 2
s_lshl_b32 s{sTBG}, s{sRB}, 2
s_add_u32 s{sTBG}, s{sTBG}, s{sTB}
""")
        a(f"""
v_lshrrev_b32 v1, 3, v0
s_lshl_b32 s29, s{sRB}, 7
s_lshl_b32 s30, s{sTB}, 5
s_add_u32 s29, s29, s30
v_add_u32 v1, s29, v1
v_lshlrev_b32 v1, 10, v1
v_lshrrev_b32 v2, 4, v0
v_and_b32 v3, 7, v0
v_xor_b32 v4, v2, v3
v_lshl_add_u32 v{VX}, v4, 4, v1
v_xor_b32 v4, 4, v4
v_lshl_add_u32 v{VX+1}, v4, 4, v1
v_add_u32 v{VX+1}, 8192, v{VX+1}
s_mul_i32 s31, s{sCS}, 192
s_mul_i32 s29, s{sTB}, {16*3072}
s_add_u32 s{sWB}, s29, s31
s_mov_b32 s32, 43691
s_movk_i32 s33, 3072
""")
        for q in range(3):
            a(f"""
v_add_u32 v1, {64*q}, v0
v_mul_u32_u24 v2, s32, v1
v_lshrrev_b32 v2, 19, v2
v_mul_u32_u24 v3, 12, v2
v_sub_u32 v3, v1, v3
v_mul_u32_u24 v2, s33, v2
v_lshl_add_u32 v{VW+q}, v3, 4, v2
""")
        a(f"""
s_mul_i32 s30, s{sTB}, 3072
s_add_u32 s{sWD}, s30, 16384
s_lshl_b32 s{sXD}, s{sTB}, 12
s_waitcnt lgkmcnt(0)
s_mov_b32 s{SRD_X}, s4
s_mov_b32 s{SRD_X+1}, s5
s_mov_b32 s{SRD_X+2}, {2048*1024}
s_mov_b32 s{SRD_X+3}, 0x20000
s_mov_b32 s{SRD_WQ}, s6
s_mov_b32 s{SRD_WQ+1}, s7
s_mov_b32 s{SRD_WQ+2}, {512*3072}
s_mov_b32 s{SRD_WQ+3}, 0x20000
s_mov_b32 s{SRD_WF}, s60
s_mov_b32 s{SRD_WF+1}, s61
s_mov_b32 s{SRD_WF+2}, {512*2752}
s_mov_b32 s{SRD_WF+3}, 0x20000
s_mov_b32 s{SRD_WS}, s68
s_mov_b32 s{SRD_WS+1}, s69
s_mov_b32 s{SRD_WS+2}, {WSEND}
s_mov_b32 s{SRD_WS+3}, 0x20000
s_mov_b32 s{pOUT}, s64
s_mov_b32 s{pOUT+1}, s65
s_mov_b32 s{sVER}, 0
s_add_u32 s30, s68, {FW0}
s_addc_u32 s31, s69, 0
s_load_dword s{sTAG}, s[30:31], 0
s_mov_b32 s{SRD_W3}, s62
s_mov_b32 s{SRD_W3+1}, s63
s_mov_b32 s{SRD_W3+2}, {512*2752}
s_mov_b32 s{SRD_W3+3}, 0x20000
""")

    def prologue2(self):
        a = self.a
        a(f"s_movk_i32 s33, 2752")
        a(f"s_mov_b32 s32, 43691")
        for q in range(3):
            a(f"""
v_add_u32 v1, {64*q}, v0
v_mul_u32_u24 v2, s32, v1
v_lshrrev_b32 v2, 19, v2
v_mul_u32_u24 v3, 12, v2
v_sub_u32 v3, v1, v3
v_mul_u32_u24 v2, s33, v2
v_lshl_add_u32 v{VFo+q}, v3, 4, v2
""")
        a(f"""
s_mul_i32 s31, s{sCS}, 192
s_mul_i32 s{sFD}, s{sTB}, 3072
s_mul_i32 s29, s{sTB}, {16*2752}
s_add_u32 s{sFB}, s29, s31
v_and_b32 v1, 31, v0
v_lshrrev_b32 v2, 5, v0
s_lshl_b32 s29, s{sTB}, 5
v_add_u32 v3, s29, v1
v_lshlrev_b32 v3, 7, v3
v_lshlrev_b32 v4, 2, v2
v_or_b32 v4, s{sTB}, v4
v_bfe_u32 v5, v1, 1, 3
v_xor_b32 v4, v4, v5
v_lshl_add_u32 v{AX}, v4, 4, v3
v_xor_b32 v{AX+1}, 16, v{AX}
v_xor_b32 v{AX+2}, 32, v{AX}
v_xor_b32 v{AX+3}, 48, v{AX}
v_lshlrev_b32 v3, 5, v2
v_bfe_u32 v4, v0, 2, 2
v_add_u32 v3, v3, v4
v_mul_u32_u24 v3, 0xc0, v3
v_bfe_u32 v4, v0, 4, 1
v_lshl_add_u32 v3, v4, 5, v3
v_and_b32 v4, 3, v0
v_lshl_add_u32 v3, v4, 3, v3
""")
        for j in range(4):
            a(f"s_xor_b32 s29, s{sTB}, {j}")
            a(f"s_mul_i32 s29, s29, 1536")
            a(f"v_add_u32 v{AW+j}, s29, v3")

    def l2_pf_qkv(self):
        a = self.a; D = 250
        l3, ld = a.newlabel(self.L("pf3")), a.newlabel(self.L("pfd"))
        a(f"""
s_cmp_eq_u32 s{sTB}, 3
s_cbranch_scc1 {l3}
s_and_b32 s29, s{sCS}, 3
s_lshl_b32 s29, s29, 5
s_lshl_b32 s30, s{sRB}, 7
s_add_u32 s29, s29, s30
v_and_b32 v1, 31, v0
v_add_u32 v1, s29, v1
v_lshlrev_b32 v1, 10, v1
v_lshrrev_b32 v2, 5, v0
s_lshl_b32 s30, s{sTB}, 1
s_add_u32 s30, s30, 3
v_add_u32 v2, s30, v2
v_min_u32 v2, 7, v2
v_lshl_add_u32 v1, v2, 7, v1
buffer_load_dword v{D}, v1, s[{SRD_X}:{SRD_X+3}], 0 offen
s_branch {ld}
{l3}:
s_and_b32 s29, s{sRB}, 7
s_mul_i32 s29, s29, 40
s_add_u32 s29, s29, 192
v_lshrrev_b32 v1, 1, v0
v_add_u32 v1, s29, v1
s_movk_i32 s30, 3072
v_mul_lo_u32 v1, s30, v1
v_and_b32 v2, 1, v0
v_lshl_add_u32 v1, v2, 7, v1
s_mul_i32 s30, s{sCS}, 192
buffer_load_dword v{D}, v1, s[{SRD_WQ}:{SRD_WQ+3}], s30 offen
v_add_u32 v1, {32*3072}, v1
s_mov_b32 exec_hi, 0
s_mov_b32 exec_lo, 0xffff
buffer_load_dword v{D}, v1, s[{SRD_WQ}:{SRD_WQ+3}], s30 offen
s_mov_b64 exec, -1
{ld}:
""")
    def l2_pf_ffn(self):
        a = self.a; D = 250
        a(f"""
s_and_b32 s29, s{sRB}, 7
s_lshl_b32 s29, s29, 6
s_lshl_b32 s30, s{sTB}, 4
s_add_u32 s29, s29, s30
v_bfe_u32 v1, v0, 1, 4
v_add_u32 v1, s29, v1
s_movk_i32 s30, 2752
v_mul_lo_u32 v1, s30, v1
v_and_b32 v2, 1, v0
v_lshl_add_u32 v1, v2, 7, v1
s_mul_i32 s30, s{sCS}, 192
s_mov_b32 exec_hi, 0
buffer_load_dword v{D}, v1, s[{SRD_WF}:{SRD_WF+3}], s30 offen
buffer_load_dword v{D}, v1, s[{SRD_W3}:{SRD_W3+3}], s30 offen
s_mov_b64 exec, -1
""")

    def phaseA(self, uh):
        a = self.a; L = self.L; opt = self.opt; stamp = self.stamp
        lg, vm = a.lg, a.vm
        lg.reset(); vm.reset()
        P = f"u{uh}"
        CS = CSA
        CT = CSA + 8
        def dma_pieces(gs):
            if gs > 15 or ("nodma" in opt and gs >= 3): return []
            sb = (gs % 4) * SLOT
            out = []
            def piece(m0base, m0off, static_soff, sreg_base, vreg, srd):
                def f():
                    a(f"s_add_u32 m0, s{m0base}, {m0off}")
                    if sreg_base is None: a(f"s_mov_b32 s29, {static_soff}")
                    else: a(f"s_add_u32 s29, s{sreg_base}, {static_soff}")
                    a(f"buffer_load_dwordx4 v{vreg}, s[{srd}:{srd+3}], s29 offen lds"); vm.issue(f"d{gs}")
                return f
            if uh == 0: return []
            if gs < 8:
                c = gs
                xs = [piece(sXD, sb+q2*2048+p*1024, c*128+q2*16384, None, VX+p, SRD_X) for q2 in range(2) for p in range(2)]
                ws = [piece(sWD, sb+q*1024, c*64*3072, sWB, VW+q, SRD_WQ) for q in range(3)]
                out = [xs[0], ws[0], xs[1], ws[1], xs[2], ws[2], xs[3]]
            else:
                f_ = gs - 8
                for q in range(3):
                    out.append(piece(sFD, sb+q*1024, f_*64*2752, sFB, VFo+q, SRD_WF))
                    out.append(piece(sFD, sb+12288+q*1024, f_*64*2752, sFB, VFo+q, SRD_W3))
            return out
        pending = []
        def dma(gs):
            for p in dma_pieces(gs): p()
        def dma_one():
            if pending: pending.pop(0)()
        def xreg(ks): return X + 4*ks
        def bump(reg, gs):
            if gs % 4 == 1: a(f"v_add_u32 v{reg}, {2*SLOT}, v{reg}")
            if gs % 4 == 3: a(f"v_subrev_u32 v{reg}, {2*SLOT}, v{reg}")
        def wread(dst, gs, j, off, tag):
            imm = (gs & 1)*SLOT + off
            a(f"ds_read_b64_tr_b16 {vr(dst,2)}, v{AW+j} offset:{imm}"); lg.issue(tag)
            a(f"ds_read_b64_tr_b16 {vr(dst+2,2)}, v{AW+j} offset:{imm+768}"); lg.issue(tag)
        SELR = CSA + 12 if uh == 0 else ACC + 48
        def sel_init(r):
            a(f"""
v_and_b32 v1, 15, v0
v_bfe_u32 v2, v0, 4, 1
v_cmp_eq_u32 vcc, v1, v2
v_mov_b32 v3, 0x3f803f80
s_nop 0
v_cndmask_b32 v{r}, 0, v3, vcc
v_mov_b32 v{r+1}, v{r}
v_mov_b32 v{r+2}, v{r}
v_mov_b32 v{r+3}, v{r}
""")
        def sel(t, frag, selr):
            if "nocs" in opt: return
            a(f"v_mfma_f32_16x16x32_bf16 {vr(CS+4*t,4)}, {vr(selr,4)}, {vr(frag,4)}, {vr(CS+4*t,4)}")
        def midbar(gs):
            vm.wait(f"d{gs+1}")
            if gs == 10: vm.wait("st")
            if "nobar" not in opt: a("s_barrier")
            if gs == 10:
                a(f"s_lshl_b32 s29, s{sCS}, 7")
                a(f"s_lshl_b32 s30, s{sRB}, 2")
                a(f"s_add_u32 s29, s29, s30")
                a(f"s_add_u32 s29, s29, {F1}")
                self.signal(29)
            assert not pending
            pending.extend(dma_pieces(gs+3))
            if gs == 14 and uh == 0 and "nokvpf" not in opt:
                l = a.newlabel(L("kvpf"))
                a(f"""
s_cmp_lg_u32 s{sW}, 0
s_cbranch_scc1 {l}
s_waitcnt vmcnt(0)
v_cmp_ne_u32 vcc, s{sTAG}, v{vPOLL}
s_nop 4
s_cmp_eq_u64 vcc, 0
s_cbranch_scc0 {l}
s_lshl_b32 s29, s{sHD}, 16
s_lshl_b32 s30, s{sQB}, 13
s_add_u32 s29, s29, s30
v_lshlrev_b32 v1, 7, v0
buffer_load_dword v244, v1, s[{SRD_WS}:{SRD_WS+3}], s29 offen
s_add_u32 s29, s29, {KF}
buffer_load_dword v245, v1, s[{SRD_WS}:{SRD_WS+3}], s29 offen
s_add_u32 s29, s29, {VF-KF}
buffer_load_dword v246, v1, s[{SRD_WS}:{SRD_WS+3}], s29 offen
s_mov_b32 s{sVER}, 1
{l}:
""")
            if gs == 12 and uh == 0:
                a(f"""
s_lshr_b32 s29, s{sHD}, 1
v_and_b32 v1, 48, v0
v_min_u32 v1, 32, v1
v_add_u32 v1, s29, v1
v_mul_u32_u24 v1, 0x5556, v1
v_lshrrev_b32 v1, 16, v1
v_lshlrev_b32 v1, 7, v1
v_and_b32 v7, 15, v0
v_lshl_add_u32 v7, v7, 2, v1
v_add_u32 v7, {F1}, v7
""")
                self.poll_issue(7)
        def csp_write(tiles, t0):
            a(f"v_lshlrev_b32 v1, 4, v0")
            a(f"s_lshl_b32 s29, s{sTB}, 2")
            a(f"s_add_u32 s29, s29, {CSP + t0*512}")
            a(f"v_add_u32 v1, s29, v1")
            a("s_mov_b64 exec, 0xffff")
            for t in range(tiles):
                a(f"ds_write_b32 v1, v{CS+4*t} offset:{t*512}"); lg.issue("csp")
                a(f"ds_write_b32 v1, v{CS+4*t+1} offset:{t*512+256}"); lg.issue("csp")
            a("s_mov_b64 exec, -1")

        S2, S2b, S1, S1b, ONES = ACC+48, ACC+52, ACC+56, ACC+60, 248
        sHI = 34
        for gs in range(3): dma(gs)
        self.prologue2()
        a(f"s_mov_b32 s{sHI}, 0xffff0000")
        if uh == 0:
            for i in range(64): a(f"v_mov_b32 v{ACC+i}, 0")
            for i in range(12): a(f"v_mov_b32 v{CS+i}, 0")
            for i in range(2): a(f"v_mov_b32 v{ONES+i}, 0x3f803f80")
            sel_init(SELR)
        a(f"""
s_waitcnt lgkmcnt(0)
s_mul_i32 s{sTAG}, s{sTAG}, 0x9E3779B1
s_add_u32 s{sTAG}, s{sTAG}, 0x7F4A7C15
""")
        vm.wait("d0")
        a("s_barrier")
        stamp(1)
        def xread(ks):
            c, j = ks >> 2, ks & 3
            a(f"ds_read_b128 {vr(xreg(ks),4)}, v{AX+j} offset:{(c&1)*SLOT}"); lg.issue(f"x{ks}")
            bump(AX+j, c)
        if uh == 1:
            for ks in range(32):
                c, j = ks >> 2, ks & 3
                if j == 2:
                    if c > 0: lg.wait(f"x{4*c-1}")
                    midbar(c)
                xread(ks)
                dma_one(); dma_one()
            while pending: dma_one()
            stamp(2)
            a("s_waitcnt lgkmcnt(0)"); lg.reset()
            a("s_barrier")
            a(f"""
v_and_b32 v1, 31, v0
s_lshl_b32 s29, s{sTB}, 5
v_add_u32 v1, s29, v1
v_lshlrev_b32 v1, 3, v1
v_add_u32 v1, {STAT}, v1
ds_read_b64 v[2:3], v1
v_cmp_gt_u32 vcc, 32, v0
s_waitcnt lgkmcnt(0)
v_mov_b32 v{vS}, v3
v_rcp_f32 v{vR}, v3
v_cndmask_b32 v{vNM}, 0, v2, vcc
""")
        else:
            QS = [[WF, WF+4, WF+8], [WF+12, SEL, 244]]
            def qread(ks, part):
                c, j = ks >> 2, ks & 3
                if part == 0: xread(ks)
                wread(QS[ks & 1][part], c, j, 16384 + part*64, f"w{ks}_{part}")
                if part == 2: bump(AW+j, c)
            for p_ in range(3): qread(0, p_)
            if "pf" in opt: self.l2_pf_qkv()
            for ks in range(32):
                c, j = ks >> 2, ks & 3
                if ks == 8 and ("pf" in opt or "pff" in opt): self.l2_pf_ffn()
                if j == 3: midbar(c)
                fr = QS[ks & 1]; xr = xreg(ks)
                for t in range(3):
                    lg.wait(f"x{ks}", f"w{ks}_{t}")
                    a(mfma(ACC+16*t, fr[t], xr, ACC+16*t))
                    if ks + 1 < 32: qread(ks+1, t)
                if j < 3: sel(j, fr[j], SELR)
                if j == 3 and "nomf4" not in opt:
                    for q in range(4):
                        x4 = xreg(4*c+q)
                        a(mf4(S2, x4, x4)); a(mf4(S1, x4, ONES)); a(mf4(S2b, x4+2, x4+2)); a(mf4(S1b, x4+2, ONES))
            a.nop(2)
            csp_write(3, 0)
            if "pfdummy" in opt: pass
            stamp(2)
            T = WF
            a.nop(4)
            for i in range(4):
                a(f"v_add_f32 v{S2+i}, v{S2+i}, v{S2b+i}")
                a(f"v_add_f32 v{S1+i}, v{S1+i}, v{S1b+i}")
            a(f"""
v_and_b32 v1, 3, v0
v_cmp_eq_u32 vcc, 1, v1
v_cmp_eq_u32 s[30:31], 2, v1
v_cmp_eq_u32 s[32:33], 3, v1
s_nop 1
v_cndmask_b32 v{S2}, v{S2}, v{S2+1}, vcc
v_cndmask_b32 v{S1}, v{S1}, v{S1+1}, vcc
v_cndmask_b32 v{S2}, v{S2}, v{S2+2}, s[30:31]
v_cndmask_b32 v{S1}, v{S1}, v{S1+2}, s[30:31]
v_cndmask_b32 v{S2}, v{S2}, v{S2+3}, s[32:33]
v_cndmask_b32 v{S1}, v{S1}, v{S1+3}, s[32:33]
v_and_b32 v1, 31, v0
s_lshl_b32 s29, s{sTB}, 5
v_mov_b32 v{S1+1}, v{S1}
v_mov_b32 v{S2+1}, v{S2}
v_add_u32 v1, s29, v1
v_lshlrev_b32 v1, 3, v1
v_permlane32_swap_b32 v{S1}, v{S1+1}
v_permlane32_swap_b32 v{S2}, v{S2+1}
v_add_u32 v1, {STAT}, v1
s_nop 0
v_add_f32 v{S1}, v{S1}, v{S1+1}
v_add_f32 v{S2}, v{S2}, v{S2+1}
v_mul_f32 v{S1}, 0x3b000000, v{S1}
v_mul_f32 v{S2}, 0x3b000000, v{S2}
v_fma_f32 v{S2}, -v{S1}, v{S1}, v{S2}
v_max_f32 v{S2}, 0, v{S2}
v_cvt_pk_bf16_f32 v{T}, v{S1}, v{S1}
v_cvt_pk_bf16_f32 v{T+1}, v{S2}, v{S2}
v_xor_b32 v{T}, 0x80008000, v{T}
v_lshlrev_b32 v{T+1}, 16, v{T+1}
v_add_f32 v{T+1}, 0x3727c5ac, v{T+1}
v_cvt_pk_bf16_f32 v{T+1}, v{T+1}, v{T+1}
v_lshlrev_b32 v{T+1}, 16, v{T+1}
v_sqrt_f32 v{T+1}, v{T+1}
v_cmp_gt_u32 vcc, 32, v0
v_cvt_pk_bf16_f32 v{T+1}, v{T+1}, v{T+1}
v_lshlrev_b32 v{T+1}, 16, v{T+1}
s_mov_b32 exec_hi, 0
ds_write_b64 v1, {vr(T,2)}
s_mov_b64 exec, -1
v_mov_b32 v{vS}, v{T+1}
v_rcp_f32 v{vR}, v{T+1}
v_cndmask_b32 v{vNM}, 0, v{T}, vcc
v_and_b32 v4, 31, v0
v_lshlrev_b32 v4, 4, v4
v_add_u32 v4, {CSP}, v4
""")
            a("s_waitcnt lgkmcnt(0)"); lg.reset()
            a("s_barrier")
        def rank1(tiles, t0, accs, frs, xn):
            for t in range(tiles):
                a(f"ds_read_b128 {vr(frs[t],4)}, v4 offset:{(t0+t)*512}")
            a(f"""
v_mov_b32 v{xn+1}, 0
v_mov_b32 v{xn+2}, 0
v_mov_b32 v{xn+3}, 0
v_mov_b32 v{xn}, v{vNM}
""")
            for t in range(tiles):
                f = frs[t]
                a(f"s_waitcnt lgkmcnt({tiles-1-t})")
                a(f"v_add_f32 v{f}, v{f}, v{f+1}")
                a(f"v_add_f32 v{f+2}, v{f+2}, v{f+3}")
                a(f"v_mov_b32 v{f+3}, 0")
                a(f"v_add_f32 v{f}, v{f}, v{f+2}")
                a(f"v_cvt_pk_bf16_f32 v{f+1}, v{f}, v{f}")
                a(f"v_lshlrev_b32 v{f+1}, 16, v{f+1}")
                a(f"v_sub_f32 v{f+2}, v{f}, v{f+1}")
                a(f"v_cvt_pk_bf16_f32 v{f}, v{f+1}, v{f+2}")
                a(f"v_mov_b32 v{f+1}, 0")
                a(f"v_mov_b32 v{f+2}, 0")
                a("s_nop 1")
                a(mfma(accs[t], frs[t], xn, accs[t]))
        if uh == 0:
            rank1(3, 0, [ACC, ACC+16, ACC+32], [WF, WF+4, WF+8], WF+12)
            a.nop(6)
            PK = [WF, WF+8, CSA]
            sB = [66, 69, 43]
            a(f"""
s_mul_i32 s33, s{sTB}, 6144
s_add_u32 s33, s33, {VSCR}
v_and_b32 v1, 31, v0
v_lshlrev_b32 v1, 6, v1
v_lshrrev_b32 v2, 5, v0
v_lshl_add_u32 v1, v2, 3, v1
v_bfe_u32 v7, v0, 1, 2
v_lshl_add_u32 v1, v7, 4, v1
v_add_u32 v1, s33, v1
v_lshlrev_b32 v5, 3, v2
v_bfe_u32 v3, v0, 2, 2
v_add_u32 v5, v5, v3
v_lshlrev_b32 v5, 6, v5
v_bfe_u32 v3, v0, 4, 1
v_lshl_add_u32 v5, v3, 5, v5
v_and_b32 v7, 3, v0
v_lshl_add_u32 v5, v7, 3, v5
v_bfe_u32 v7, v0, 3, 1
v_lshlrev_b32 v7, 4, v7
v_xor_b32 v5, v7, v5
v_lshlrev_b32 v3, 16, v3
v_lshl_add_u32 v3, v2, 8, v3
v_and_b32 v7, 15, v0
v_lshl_add_u32 v3, v7, 4, v3
v_add_u32 v2, s33, v5
v_xor_b32 v4, 32, v5
v_add_u32 v4, s33, v4
s_mul_i32 s31, s{sCS}, 3
""")
            for t in range(3):
                A_ = ACC + 16*t; Pk = PK[t]
                lv, ld = L(f"{P}_v{t}"), L(f"{P}_d{t}")
                a(f"""
s_add_u32 s30, s31, {t}
s_cmp_lt_u32 s30, 16
s_cselect_b32 s29, {CQ_BITS}, 1.0
v_mul_f32 v6, s29, v{vR}
s_lshl_b32 s{sB[t]}, s30, 17
s_lshl_b32 s32, s{sTBG}, 10
s_add_u32 s{sB[t]}, s{sB[t]}, s32
""")
                if t == 2: a.nop(4)
                for i in range(16): a(f"v_mul_f32 v{A_+i}, v{A_+i}, v6")
                for i in range(8): a(f"v_cvt_pk_bf16_f32 v{Pk+i}, v{A_+2*i}, v{A_+2*i+1}")
                a(f"""
s_cmp_ge_u32 s30, 32
s_cbranch_scc1 {lv}
s_add_u32 s32, s{sB[t]}, 65536
buffer_store_dwordx4 {vr(Pk,4)}, v{vL16}, s[{SRD_WS}:{SRD_WS+3}], s{sB[t]} offen sc1
buffer_store_dwordx4 {vr(Pk+4,4)}, v{vL16}, s[{SRD_WS}:{SRD_WS+3}], s32 offen sc1
s_branch {ld}
{lv}:
""")
                for j in range(4):
                    if j: a(f"v_xor_b32 v5, {16*j}, v1")
                    a(f"ds_write_b64 v{5 if j else 1}, {vr(Pk+2*j,2)} offset:{2048*t}")
                a(f"{ld}:")
            nov = L(f"{P}_nov")
            a(f"""
s_cmp_lt_u32 s{sCS}, 10
s_cbranch_scc1 {nov}
s_waitcnt lgkmcnt(0)
""")
            for t in range(3):
                Pk = PK[t]; l = L(f"{P}_vr{t}")
                if t < 2: a(f"s_cmp_eq_u32 s{sCS}, 10\ns_cbranch_scc1 {l}")
                for q, off in enumerate((0, 256, 1024, 1280)):
                    a(f"ds_read_b64_tr_b16 {vr(Pk+2*q,2)}, v{4 if q & 1 else 2} offset:{2048*t+off}")
                if t < 2: a(f"{l}:")
            a("s_waitcnt lgkmcnt(0)")
            for t in range(3):
                Pk = PK[t]; l = L(f"{P}_vs{t}")
                if t < 2: a(f"s_cmp_eq_u32 s{sCS}, 10\ns_cbranch_scc1 {l}")
                a(f"buffer_store_dwordx4 {vr(Pk,4)}, v3, s[{SRD_WS}:{SRD_WS+3}], s{sB[t]} offen sc1")
                a(f"buffer_store_dwordx4 {vr(Pk+4,4)}, v3, s[{SRD_WS}:{SRD_WS+3}], s{sB[t]} offen offset:512 sc1")
                if t < 2: a(f"{l}:")
            a(f"{nov}:")
            vm.issue("st", 6)
        stamp(3)
        nf = 4 if uh == 0 else 2
        tf0 = 0 if uh == 0 else 4
        def foff(t):
            tt = tf0 + t
            return (tt & 1)*12288 + (tt >> 1)*64
        a("s_nop 1")
        if uh == 0:
            for t in range(4): wread(WF+4*t, 8, 0, foff(t), f"f0_{t}")
        else:
            FS = [[WF, WF+4], [WF+8, WF+12], [ACC+40, ACC+44]]
            def freads(ks):
                f, j = ks >> 2, ks & 3
                for t in range(2): wread(FS[ks % 3][t], 8+f, j, foff(t), f"f{ks}")
                bump(AW+j, 8+f)
            freads(0); freads(1)
        for i in range(16*nf): a(f"v_mov_b32 v{ACC+i}, 0")
        if uh == 0:
            for i in range(12): a(f"v_mov_b32 v{CS+i}, 0")
            for i in range(4): a(f"v_mov_b32 v{SEL+i}, v{CSA+12+i}")
            for i in range(4): a(f"v_mov_b32 v{CS+12+i}, 0")
            SELR = SEL
        else:
            for i in range(8): a(f"v_mov_b32 v{CS+i}, 0")
            sel_init(SELR)
        adds = []
        def flush_adds(n):
            for _ in range(n):
                if adds: a(adds.pop(0))
        for ks in range(32):
            f, j = ks >> 2, ks & 3
            gs = 8 + f
            if j == 2 and f < 7: midbar(gs)
            if uh == 0:
                for t in range(4):
                    lg.wait(f"f{ks}_{t}")
                    a(mfma(ACC+16*t, WF+4*t, xreg(ks), ACC+16*t))
                    if j == t: sel(t, WF+4*t, SELR)
                    if ks + 1 < 32:
                        k2 = ks + 1
                        wread(WF+4*t, 8+(k2>>2), k2&3, foff(t), f"f{k2}_{t}")
                k2 = ks + 1
                if k2 < 32: bump(AW+(k2&3), 8+(k2>>2))
            else:
                if ks + 2 < 32: freads(ks+2)
                lg.wait(f"f{ks}")
                for t in range(2):
                    a(mfma(ACC+16*t, FS[ks % 3][t], xreg(ks), ACC+16*t))
                    dma_one()
                if j < 2: sel(j, FS[ks % 3][j], SELR)
        a.nop(8)
        csp_write(nf, tf0)
        stamp(4)
        if uh == 0:
            lv_ = a.newlabel(L("ver"))
            a(f"s_cmp_eq_u32 s{sVER}, 1\ns_cbranch_scc1 {lv_}")
            self.poll_check(7, 0)
            a(f"{lv_}:")
        a("s_waitcnt lgkmcnt(0)"); lg.reset()
        a("s_barrier")
        kv = self.attn_loads(uh)
        def kv_one(n=1):
            for _ in range(n):
                if kv: a(kv.pop(0))
        XN2 = X
        a(f"""
v_and_b32 v4, 31, v0
v_lshlrev_b32 v4, 4, v4
v_add_u32 v4, {CSP}, v4
""")
        kv_one(2)
        rank1(nf, tf0, [ACC+16*t for t in range(nf)], [WF+4*t for t in range(nf)], XN2)
        cA, cB = X+4, X+6
        a(f"""
v_mul_f32 v{cA}, 0xbfb8aa3b, v{vR}
v_mul_f32 v{cB}, v{vS}, v{vS}
""")
        kv_one(2)
        a.nop(8)
        stores = []
        npairs = nf//2
        for i in range(npairs):
            G, U = ACC+32*i, ACC+32*i+16
            T = X + 8 + 32*i; Pk = X + 8 + 32*i + 16
            body = []
            body += [f"v_pk_mul_f32 {vr(T+r,2)}, {vr(G+r,2)}, {vr(cA,2)} op_sel_hi:[1,0]" for r in range(0,16,2)]
            body += [f"v_exp_f32 v{T+r}, v{T+r}" for r in range(16)]
            body += [f"v_pk_mul_f32 {vr(G+r,2)}, {vr(G+r,2)}, {vr(U+r,2)}" for r in range(0,16,2)]
            body += [f"v_pk_fma_f32 {vr(T+r,2)}, {vr(T+r,2)}, {vr(cB,2)}, {vr(cB,2)} op_sel_hi:[1,0,0]" for r in range(0,16,2)]
            body += [f"v_rcp_f32 v{T+r}, v{T+r}" for r in range(16)]
            body += ["s_nop 0"]
            body += [f"v_pk_mul_f32 {vr(G+r,2)}, {vr(G+r,2)}, {vr(T+r,2)}" for r in range(0,16,2)]
            body += [f"v_cvt_pk_bf16_f32 v{Pk+r}, v{G+2*r}, v{G+2*r+1}" for r in range(8)]
            every = 16 if npairs == 2 else 9
            for n_, ins in enumerate(body):
                a(ins)
                if n_ % every == every-1: kv_one()
            stores.append((i, Pk))
        kv_one(18)
        for (i, Pk) in stores:
            a(f"""
s_mul_i32 s29, s{sCS}, 3
s_add_u32 s29, s29, {(tf0>>1)+i}
s_mul_i32 s30, s{sTBG}, 86
s_lshl_b32 s31, s29, 1
s_add_u32 s30, s30, s31
s_lshl_b32 s30, s30, 10
s_add_u32 s30, s30, {HF}
s_cmp_ge_u32 s29, 43
s_cselect_b32 s30, {WSEND}, s30
buffer_store_dwordx4 {vr(Pk,4)}, v{vL16}, s[{SRD_WS}:{SRD_WS+3}], s30 offen sc1
buffer_store_dwordx4 {vr(Pk+4,4)}, v{vL16}, s[{SRD_WS}:{SRD_WS+3}], s30 offen offset:1024 sc1
""")
        stamp(5)

    BQ = [216, 220]
    def kv_scalars(self):
        self.a(f"""
s_lshl_b32 s33, s{sHD}, 16
s_lshr_b32 s29, s{sW}, 1
s_and_b32 s29, s29, 1
s_and_b32 s30, s{sW}, 1
s_lshl_b32 s30, s30, 2
s_lshl_b32 s31, s{sUH}, 5
s_add_u32 s30, s30, s31
s_lshl_b32 s30, s30, 10
s_lshl_b32 s31, s29, 16
s_add_u32 s{sDST}, s31, s30
s_lshl_b32 s31, s29, 21
s_add_u32 s{sSRC}, s31, s30
s_add_u32 s{sSRC}, s{sSRC}, s33
s_add_u32 s{sSRC}, s{sSRC}, {KF}
""")
    def attn_loads(self, uh):
        a = self.a; Q = self.BQ
        a(f"""
s_lshl_b32 s33, s{sHD}, 16
s_lshl_b32 s{sTB0}, s{sQB}, 3
s_lshl_b32 s29, s{sTB}, 1
s_add_u32 s{sTB0}, s{sTB0}, s29
s_lshl_b32 s29, s{sTB0}, 10
s_add_u32 s69, s33, s29
""")
        self.kv_scalars()
        g = []
        g.append(f"buffer_load_dwordx4 {vr(Q[0],4)}, v{vL16}, s[{SRD_WS}:{SRD_WS+3}], s69 offen sc1")
        g.append(f"buffer_load_dwordx4 {vr(Q[1],4)}, v{vL16}, s[{SRD_WS}:{SRD_WS+3}], s69 offen offset:1024 sc1")
        for s_ in range(2):
            for q in range(4):
                t = ""
                if q == 0: t += f"s_mov_b32 m0, s{sDST}\ns_add_u32 s{sDST}, s{sDST}, 8192\n"
                t += f"buffer_load_dwordx4 v{vL16}, s[{SRD_WS}:{SRD_WS+3}], s{sSRC} offen offset:{q*1024} sc1 lds"
                if q == 3: t += f"\ns_add_u32 s{sSRC}, s{sSRC}, 8192"
                g.append(t)
        return g

    def phaseB(self):
        a = self.a; L = self.L; opt = self.opt; stamp = self.stamp
        vAK, vAV, vIDX = 2, 3, 4
        Q = self.BQ; K = [16, 20]; V = [24, 32]; S = [40, 56]; O = [72, 88]; C = [104, 120]; T = 136
        NST = 4
        a("s_nop 1")
        a(f"""
v_mov_b32 v{vIDX}, 0xdddddddd
v_and_b32 v5, 27, v0
v_cmp_eq_u32 vcc, 16, v5
v_mov_b32 v6, 0x3f803f80
s_mov_b32 s{sMASK}, 0x0000ffff
v_cndmask_b32 v{V[0]}, 0, v6, vcc
""")
        for i in range(1,16): a(f"v_mov_b32 v{V[0]+i}, v{V[0]}")
        a(f"""
s_mov_b32 s{sMASK+1}, 0x0000ffff
s_mov_b32 s{sREDO}, 0
s_lshl_b32 s35, s{sUH}, 15
v_lshrrev_b32 v5, 5, v0
v_lshlrev_b32 v5, 8, v5
v_and_b32 v6, 15, v0
v_lshl_add_u32 v5, v6, 4, v5
s_add_u32 s29, s35, 65536
v_add_u32 v1, s29, v5
v_mov_b32 v5, {FLAG}
v_mov_b32 v6, 0
ds_write_b32 v5, v6
s_cmp_eq_u32 s{sUH}, 0
s_cbranch_scc1 {L('bw0')}
s_waitcnt vmcnt(6)
{L('bw0')}:
s_waitcnt vmcnt(8) lgkmcnt(0)
s_barrier
""")
        stamp(6)
        a.label(L('redo'))
        a(f"""
s_cmp_eq_u32 s{sREDO}, 0
s_cselect_b32 s29, 1, 32
v_add_u32 v{vAK}, s35, v{vL16}
v_mov_b32 v{T}, 0xff800000
v_mov_b32 v{T+1}, 0xff800000
""")
        a.label(L('maxloop'))
        a(f"""
ds_read_b128 {vr(K[0],4)}, v{vAK}
v_add_u32 v{vAK}, 1024, v{vAK}
s_waitcnt lgkmcnt(0)
{mfma(S[0],K[0],Q[0],None)}
{mfma(S[1],K[0],Q[1],None)}
s_sub_u32 s29, s29, 1
""")
        a.nop(12)
        for i in range(8):
            for t in range(2):
                a(f"v_max3_f32 v{T+t}, v{T+t}, v{S[t]+2*i}, v{S[t]+2*i+1}")
        a(f"""
s_cmp_lg_u32 s29, 0
s_cbranch_scc1 {L('maxloop')}
v_mov_b32 v{T+2}, v{T}
v_mov_b32 v{T+3}, v{T+1}
v_add_u32 v{vAK}, s35, v{vL16}
v_mov_b32 v{vAV}, v1
v_permlane32_swap_b32 v{T}, v{T+2}
v_permlane32_swap_b32 v{T+1}, v{T+3}
s_mov_b64 exec, s[{sMASK}:{sMASK+1}]
ds_read_b128 {vr(V[0],4)}, v{vAV}
ds_read_b128 {vr(V[0]+4,4)}, v{vAV} offset:512
s_mov_b64 exec, -1
v_max_f32 v{T}, v{T}, v{T+2}
v_max_f32 v{T+1}, v{T+1}, v{T+3}
""")
        a(f"ds_read_b128 {vr(K[0],4)}, v{vAK}")
        for i in range(16): a(f"v_sub_f32 v{C[0]+i}, 0, v{T}")
        a("s_waitcnt lgkmcnt(0)")
        a("s_nop 0")
        a(mfma(S[0],K[0],Q[0],C[0]))
        for i in range(16): a(f"v_sub_f32 v{C[1]+i}, 0, v{T+1}")
        for t in range(2):
            for i in range(16): a(f"v_mov_b32 v{O[t]+i}, 0")
        for i in range(8,16): a(f"v_mov_b32 v{S[1]+i}, 0")
        def tile(p, off):
            exA = [f"v_exp_f32 v{S[0]+i}, v{S[0]+i}" for i in range(16)]
            exB = [f"v_exp_f32 v{S[1]+i}, v{S[1]+i}" for i in range(16)]
            insA = [
                (3, smf(O[1], V[p^1]+4, S[1]+8, vIDX)),
                (5, mfma(S[1], K[p], Q[1], C[1])),
                (8, f"ds_read_b128 {vr(K[p^1],4)}, v{vAK} offset:{off}"),
                (8, f"s_mov_b64 exec, s[{sMASK}:{sMASK+1}]"),
                (8, f"ds_read_b128 {vr(V[p^1],4)}, v{vAV} offset:{off}"),
                (8, f"ds_read_b128 {vr(V[p^1]+4,4)}, v{vAV} offset:{off+512}"),
                (8, f"s_mov_b64 exec, -1"),
                (11, smf(O[0], V[p], S[0], vIDX)),
            ]
            insB = [
                (3, smf(O[0], V[p]+4, S[0]+8, vIDX)),
                (5, "s_waitcnt lgkmcnt(0)"),
                (5, mfma(S[0], K[p^1], Q[0], C[0])),
                (11, smf(O[1], V[p], S[1], vIDX)),
            ]
            for l in interleave(exA, insA): a(l)
            for l in interleave(exB, insB): a(l)
        def kv_stage():
            a(f"s_mov_b32 m0, s{sDST}\ns_add_u32 s{sDST}, s{sDST}, 8192")
            for q in range(4):
                a(f"buffer_load_dwordx4 v{vL16}, s[{SRD_WS}:{SRD_WS+3}], s{sSRC} offen offset:{q*1024} sc1 lds")
            a(f"s_add_u32 s{sSRC}, s{sSRC}, 8192")
        a(f"s_cmp_lg_u32 s{sREDO}, 0")
        a(f"s_cbranch_scc1 {L('rloop0')}")
        stamp(7)
        for T_ in range(32):
            st_, t = T_ >> 3, T_ & 7
            if st_ == 0 and t in (1, 3): kv_stage()
            if st_ == 0 and t == 6:
                a("s_waitcnt vmcnt(8)\ns_barrier")
                a(f"""
s_lshl_b32 s29, s{sRB}, 7
s_lshl_b32 s30, s{sCS}, 2
s_add_u32 s29, s29, s30
s_add_u32 s29, s29, {F2}
""")
                self.signal(29)
                a(f"""
s_lshr_b32 s29, s{sRB64}, 1
s_lshl_b32 s29, s29, 7
s_add_u32 s29, s29, {F2}
v_and_b32 v7, 15, v0
v_lshl_add_u32 v7, v7, 2, s29
""")
            if st_ == 1 and t == 6:
                a("s_waitcnt vmcnt(0)\ns_barrier")
                self.poll_issue(7)
            if st_ == 2 and t < 4 and "nocpf" not in opt:
                lp = L(f'cpf{t}')
                a(f"""
s_cmp_lg_u32 s{sTB}, {t}
s_cbranch_scc1 {lp}
s_lshr_b32 s29, s2, 3
s_lshl_b32 s29, s29, 9
s_lshl_b32 s30, s{sW}, 6
s_add_u32 s29, s29, s30
v_add_u32 v5, s29, v0
v_lshlrev_b32 v5, 7, v5
s_mov_b32 s{SRD_WQ}, s{pW2}
s_mov_b32 s{SRD_WQ+1}, s{pW2+1}
s_mov_b32 s{SRD_WQ+2}, {1376*1024}
buffer_load_dword v163, v5, s[{SRD_WQ}:{SRD_WQ+3}], 0 offen
v_subrev_u32 v6, {1376*1024}, v5
s_mov_b32 s{SRD_WF}, s{pWO}
s_mov_b32 s{SRD_WF+1}, s{pWO+1}
s_mov_b32 s{SRD_WF+2}, {512*1024}
buffer_load_dword v164, v6, s[{SRD_WF}:{SRD_WF+3}], 0 offen
{lp}:
""")
            early = "cearly" in opt
            if st_ == 2 and t == 5: self.c_setup()
            if early and st_ == 2 and t == 6:
                self.poll_check(7, 1, wait=(True if "nocpf" in opt else 2))
                a("s_barrier")
                cq = self.c_pieces() + self.c_pieces()
            if early and st_ == 3 and t == 6:
                a("s_barrier")
                cq = self.c_pieces()
            if early and ((st_ == 2 and t >= 6) or (st_ == 3 and (t < 2 or t >= 6))):
                lq = a.newlabel(L("cq"))
                a(f"s_cmp_eq_u32 s{sUH}, 0\ns_cbranch_scc1 {lq}")
                for _ in range(4): a(cq.pop(0))
                a(f"{lq}:")
            if not early and st_ == 2 and t == 6 and "nohpf" not in opt:
                l3 = L('hpf')
                a(f"""
s_cmp_lg_u32 s{sW}, 0
s_cbranch_scc1 {l3}
s_waitcnt vmcnt({0 if "nocpf" in opt else 2})
v_cmp_ne_u32 vcc, s{sTAG}, v{vPOLL}
s_nop 4
s_cmp_eq_u64 vcc, 0
s_cbranch_scc0 {l3}
s_mul_i32 s29, s{sRB64}, 176128
s_mul_i32 s30, s{sCB}, {172*128}
s_add_u32 s29, s29, s30
s_add_u32 s29, s29, {HF}
v_lshlrev_b32 v5, 7, v0
buffer_load_dword v160, v5, s[{SRD_WS}:{SRD_WS+3}], s29 offen
v_add_u32 v5, 8192, v5
buffer_load_dword v161, v5, s[{SRD_WS}:{SRD_WS+3}], s29 offen
v_add_u32 v5, 8192, v5
v_min_u32 v5, {171*128}, v5
buffer_load_dword v162, v5, s[{SRD_WS}:{SRD_WS+3}], s29 offen
{l3}:
""")
            tile(T_ & 1, (T_+1)*1024)
        a(f"s_branch {L('mdone')}")
        a.label(L('rloop0'))
        a(f"s_mov_b32 s{sSTG}, 0")
        a.label(L('rloop'))
        tile(0, 1024); tile(1, 2048)
        a(f"""
v_add_u32 v{vAK}, 2048, v{vAK}
v_add_u32 v{vAV}, 2048, v{vAV}
s_add_u32 s{sSTG}, s{sSTG}, 1
s_cmp_lt_u32 s{sSTG}, 16
s_cbranch_scc1 {L('rloop')}
""")
        a.label(L('mdone'))
        a(smf(O[1], V[1]+4, S[1]+8, vIDX))
        stamp(8)
        a(f"""
s_cmp_lg_u32 s{sREDO}, 0
s_cbranch_scc1 {L('vote')}
""")
        a.nop(12)
        a(f"v_mul_f32 v{T}, 0, v{O[0]}")
        for t in range(2):
            for i in range(8):
                if t == 0 and i == 0: continue
                a(f"v_fma_f32 v{T}, v{O[t]+i}, 0, v{T}")
        a(f"""
v_max_f32 v{T+1}, v{O[0]+8}, v{O[1]+8}
v_add_f32 v{T+2}, v{O[0]+8}, v{O[1]+8}
v_add_f32 v{T+1}, v{T+1}, v{T}
v_mul_f32 v{T+2}, 0, v{T+2}
v_add_f32 v{T+1}, v{T+1}, v{T+2}
v_mov_b32 v{T+3}, 0x4e800000
v_mov_b32 v5, {FLAG}
v_cmp_nle_f32 vcc, v{T+1}, v{T+3}
v_mov_b32 v6, 1
s_nop 3
s_cmp_eq_u64 vcc, 0
s_cbranch_scc1 {L('vote')}
ds_write_b32 v5, v6
s_waitcnt lgkmcnt(0)
{L('vote')}:
""")
        if "cearly" not in opt: self.poll_check(7, 1)
        a(f"""
s_barrier
s_cmp_lg_u32 s{sREDO}, 0
s_cbranch_scc1 {L('redone')}
v_mov_b32 v5, {FLAG}
ds_read_b32 v6, v5
s_waitcnt lgkmcnt(0)
v_readfirstlane_b32 s29, v6
s_nop 3
s_cmp_eq_u32 s29, 0
s_cbranch_scc1 {L('ok')}
s_mov_b32 s{sREDO}, 1
""")
        a("s_waitcnt vmcnt(0)")
        a("s_barrier")
        self.kv_scalars()
        for st_ in range(4):
            a(f"s_mov_b32 m0, s{sDST}\ns_add_u32 s{sDST}, s{sDST}, 8192")
            for q in range(4):
                a(f"buffer_load_dwordx4 v{vL16}, s[{SRD_WS}:{SRD_WS+3}], s{sSRC} offen offset:{q*1024} sc1 lds")
            a(f"s_add_u32 s{sSRC}, s{sSRC}, 8192")
        a(f"""
s_waitcnt vmcnt(0)
s_barrier
s_branch {L('redo')}
{L('redone')}:
""")
        if "cearly" in opt:
            self.c_setup()
            lr = L('rc')
            a(f"s_cmp_eq_u32 s{sUH}, 0\ns_cbranch_scc1 {lr}")
            for st_ in range(3):
                for g_ in self.c_pieces(): a(g_)
            a(f"{lr}:")
        a(f"{L('ok')}:")
        def c_some(q0, q1):
            if "cearly" in opt: return
            l = a.newlabel(L("cp"))
            a(f"s_cmp_eq_u32 s{sUH}, 0\ns_cbranch_scc1 {l}")
            for g_ in self.c_pieces(q0, q1): a(g_)
            a(f"{l}:")
        a(f"""
s_cmp_eq_u32 s{sUH}, 0
s_cbranch_scc1 {L('noswap')}
""")
        for i in range(9): a(f"v_swap_b32 v{O[0]+i}, v{O[1]+i}")
        a(f"v_swap_b32 v{C[0]}, v{C[1]}")
        a.label(L('noswap'))
        a(f"""
s_mul_i32 s29, s{sW}, 2560
s_add_u32 s29, s29, {EX}
s_xor_b32 s30, s{sW}, 4
s_mul_i32 s30, s30, 2560
s_add_u32 s30, s30, {EX}
v_add_u32 v5, s29, v{vL16}
v_lshlrev_b32 v6, 3, v0
v_add_u32 v6, s29, v6
v_mov_b32 v{T}, v{O[1]+8}
v_mov_b32 v{T+1}, v{C[1]}
ds_write_b128 v5, {vr(O[1],4)}
ds_write_b128 v5, {vr(O[1]+4,4)} offset:1024
ds_write_b64 v6, {vr(T,2)} offset:2048
v_add_u32 v5, s30, v{vL16}
v_lshlrev_b32 v6, 3, v0
v_add_u32 v6, s30, v6
""")
        c_some(0, 4)
        a(f"""
s_waitcnt lgkmcnt(0)
s_barrier
ds_read_b64 {vr(T,2)}, v6 offset:2048
ds_read_b128 {vr(O[1],4)}, v5
ds_read_b128 {vr(O[1]+4,4)}, v5 offset:1024
""")
        c_some(4, 8)
        a(f"""
s_waitcnt lgkmcnt(2)
v_min_f32 v{T+2}, v{T+1}, v{C[0]}
v_sub_f32 v{T+3}, v{T+2}, v{C[0]}
v_sub_f32 v{T+4}, v{T+2}, v{T+1}
v_exp_f32 v{T+3}, v{T+3}
v_exp_f32 v{T+4}, v{T+4}
s_nop 0
v_mul_f32 v{T+5}, v{T+3}, v{O[0]+8}
v_fma_f32 v{T+5}, v{T+4}, v{T}, v{T+5}
v_rcp_f32 v{T+5}, v{T+5}
s_nop 0
v_mul_f32 v{T+3}, v{T+3}, v{T+5}
v_mul_f32 v{T+4}, v{T+4}, v{T+5}
s_waitcnt lgkmcnt(0)
""")
        for i in range(8): a(f"v_mul_f32 v{O[0]+i}, v{O[0]+i}, v{T+3}")
        for i in range(8): a(f"v_fma_f32 v{O[0]+i}, v{O[1]+i}, v{T+4}, v{O[0]+i}")
        for i in range(4): a(f"v_cvt_pk_bf16_f32 v{T+8+i}, v{O[0]+2*i}, v{O[0]+2*i+1}")
        a(f"""
s_add_u32 s29, s{sTB0}, s{sUH}
s_lshl_b32 s29, s29, 5
s_add_u32 s29, s29, s{sHD}
s_lshl_b32 s29, s29, 10
s_add_u32 s29, s29, {OF}
buffer_store_dwordx4 {vr(T+8,4)}, v{vL16}, s[{SRD_WS}:{SRD_WS+3}], s29 offen sc1
""")
        stamp(9)

    cSRC, cA, cW = 224, 225, 226
    SRD_C = 4
    def c_setup(self):
        a = self.a; L = self.L
        vS_ = self.cSRC; C4 = self.SRD_C
        a(f"""
v_lshrrev_b32 v165, 3, v0
v_lshrrev_b32 v166, 4, v0
v_and_b32 v166, 1, v166
v_lshlrev_b32 v166, 2, v166
v_and_b32 v167, 7, v0
v_xor_b32 v166, v166, v167
v_lshlrev_b32 v166, 4, v166
v_lshl_add_u32 v{vS_}, v165, 10, v166
s_lshl_b32 s29, s{sCB}, 7
v_add_u32 v{vS_}, s29, v{vS_}
s_mov_b32 s{SRD_WF}, s{pOUT}
s_mov_b32 s{SRD_WF+1}, s{pOUT+1}
s_mov_b32 s{SRD_WF+2}, {2048*1024}
s_mov_b32 s{C4}, s{pW2}
s_mov_b32 s{C4+1}, s{pW2+1}
s_mov_b32 s{C4+2}, {1376*1024}
s_mov_b32 s{C4+3}, 0x20000
s_lshr_b32 s29, s{sTB}, 1
s_lshl_b32 s30, s{sRB64}, 1
s_add_u32 s30, s30, s29
s_mul_i32 s31, s30, 86
s_and_b32 s32, s{sTB}, 1
s_lshl_b32 s32, s32, 2
s_add_u32 s31, s31, s32
s_lshl_b32 s31, s31, 10
s_add_u32 s{sAOFF}, s31, {HF}
s_lshl_b32 s30, s30, 5
s_add_u32 s30, s30, s32
s_lshl_b32 s30, s30, 10
s_add_u32 s{sALT}, s30, {OF}
s_lshl_b32 s29, s29, 15
s_lshl_b32 s32, s32, 10
s_add_u32 s{sLOFF}, s29, s32
s_add_u32 s{sWL}, s{sLOFF}, 65536
s_lshl_b32 s{sWOFF}, s{sTB}, 15
s_mov_b32 s{sISS}, 0
""")
    def c_pieces(self, q0=0, q1=8):
        a = self.a; L = self.L; vS_ = self.cSRC; C4 = self.SRD_C
        out = []
        for q in range(q0, q1):
            t = ""
            if q == 0:
                lns = a.newlabel(L('ns'))
                t += f"""s_cmp_lg_u32 s{sISS}, 11
s_cbranch_scc1 {lns}
s_mov_b32 s{sAOFF}, s{sALT}
s_lshl_b32 s{sWOFF}, s{sTB}, 15
s_mov_b32 s{C4}, s{pWO}
s_mov_b32 s{C4+1}, s{pWO+1}
s_mov_b32 s{C4+2}, {512*1024}
{lns}:
s_cmp_eq_u32 s{sISS}, 10
s_cselect_b32 s{sA2}, s{sTB}, 0
s_and_b32 s{sA2}, s{sA2}, 1
s_lshl_b32 s{sA2}, s{sA2}, 11
s_sub_u32 s{sA2}, s{sAOFF}, s{sA2}
s_and_b32 s{sTMP}, s{sISS}, 3
s_lshl_b32 s{sTMP}, s{sTMP}, 13
s_add_u32 m0, s{sTMP}, s{sLOFF}
s_add_u32 s{sISS}, s{sISS}, 1
"""
            if q < 4:
                t += f"buffer_load_dwordx4 v{vL16}, s[{SRD_WS}:{SRD_WS+3}], s{sAOFF if q < 2 else sA2} offen offset:{q*1024} sc1 lds"
                if q == 3: t += f"\ns_add_u32 s{sAOFF}, s{sAOFF}, 8192\ns_add_u32 s{sTMP}, s{sTMP}, s{sWL}"
            else:
                t += f"s_mov_b32 m0, s{sTMP}\ns_add_u32 s{sTMP}, s{sTMP}, 1024\n"
                t += f"buffer_load_dwordx4 v{vS_}, s[{C4}:{C4+3}], s{sWOFF} offen lds\n"
                t += f"s_add_u32 s{sWOFF}, s{sWOFF}, {8192 if q < 7 else 8192 + 96*1024}"
            out.append(t)
        return out

    def pst(self):
        if "pst" in self.opt:
            a = self.a
            for slot, stg in enumerate((0,2,4,7,8,10,13), 1):
                l = a.newlabel(self.L("ps"))
                a(f"s_cmp_lg_u32 s{sCST}, {stg}\ns_cbranch_scc1 {l}")
                a(f"s_memtime s[{70+2*slot}:{71+2*slot}]")
                a(f"{l}:")
    def phaseC(self):
        a = self.a; L = self.L; stamp = self.stamp
        vA, vW = self.cA, self.cW
        vA0, vW0 = 227, 228
        ACCc = 16; AF = [32+4*i for i in range(8)]; WFr = [64+4*i for i in range(8)]; T = 96
        NST = 15
        a(f"s_cmp_eq_u32 s{sUH}, 0")
        a(f"s_cbranch_scc0 {L('cprod')}")
        a(f"""
s_lshr_b32 s29, s{sW}, 1
s_lshl_b32 s30, s{sRB64}, 1
s_add_u32 s30, s30, s29
s_lshl_b32 s30, s30, 15
s_and_b32 s31, s{sW}, 1
s_lshl_b32 s31, s31, 6
s_lshl_b32 s32, s{sCB}, 7
s_add_u32 s30, s30, s31
s_add_u32 s34, s30, s32
v_and_b32 v8, 31, v0
v_lshlrev_b32 v8, 10, v8
v_lshrrev_b32 v6, 5, v0
v_lshl_add_u32 v8, v6, 4, v8
buffer_load_dwordx4 v[{T}:{T+3}], v8, s[{SRD_X}:{SRD_X+3}], s34 offen
buffer_load_dwordx4 v[{T+4}:{T+7}], v8, s[{SRD_X}:{SRD_X+3}], s34 offen offset:32
s_lshl_b32 s29, s29, 15
v_add_u32 v{vA0}, s29, v{vL16}
v_lshrrev_b32 v5, 5, v0
v_lshlrev_b32 v5, 2, v5
v_bfe_u32 v6, v0, 2, 2
v_add_u32 v5, v5, v6
v_lshlrev_b32 v5, 7, v5
v_lshrrev_b32 v6, 1, v6
s_and_b32 s30, s{sW}, 1
v_xor_b32 v6, s30, v6
v_lshl_add_u32 v5, v6, 6, v5
v_bfe_u32 v6, v0, 4, 1
v_lshl_add_u32 v5, v6, 5, v5
v_and_b32 v6, 3, v0
v_lshl_add_u32 v5, v6, 3, v5
v_add_u32 v{vW0}, 65536, v5
v_mov_b32 v{vA}, v{vA0}
v_mov_b32 v{vW}, v{vW0}
s_lshr_b32 s29, s{sRB64}, 2
s_lshl_b32 s29, s29, 7
s_add_u32 s29, s29, {F3}
v_and_b32 v7, 31, v0
v_lshl_add_u32 v7, v7, 2, s29
""")
        for i in range(16): a(f"v_mov_b32 v{ACCc+i}, 0")
        a(f"""
s_mov_b32 s{sVER}, 0
s_waitcnt vmcnt(2)
s_barrier
s_lshl_b32 s29, s{sQB}, 7
s_lshl_b32 s30, s{sHD}, 2
s_add_u32 s29, s29, s30
s_add_u32 s29, s29, {F3}
""")
        self.signal(29)
        a(f"s_mov_b32 s{sCST}, 0")
        a.label(L('cloop'))
        n1, n2, n3, n4 = L('c_n1'), L('c_n2'), L('c_n3'), L('c_n4')
        npoll, nchk = L('c_np'), L('c_nc')
        a(f"""
s_cmp_lg_u32 s{sW}, 0
s_cbranch_scc1 {n2}
s_cmp_eq_u32 s{sVER}, 1
s_cbranch_scc1 {n2}
s_cmp_lt_u32 s{sCST}, 3
s_cbranch_scc1 {n2}
s_cmp_eq_u32 s{sCST}, 3
s_cbranch_scc1 {npoll}
s_waitcnt vmcnt(0)
v_cmp_ne_u32 vcc, s{sTAG}, v{vPOLL}
s_nop 4
s_cmp_eq_u64 vcc, 0
s_cbranch_scc0 {nchk}
s_mov_b32 s{sVER}, 1
s_branch {n2}
{nchk}:
s_cmp_lt_u32 s{sCST}, 8
s_cbranch_scc1 {npoll}
""")
        self.poll_check(7, 2)
        a(f"""
s_mov_b32 s{sVER}, 1
s_branch {n2}
{npoll}:
global_load_dword v{vPOLL}, v7, s[{SRD_WS}:{SRD_WS+1}] sc1
{n2}:
s_barrier
""")
        self.pst()
        def rd(j):
            a(f"ds_read_b128 {vr(AF[j],4)}, v{vA} offset:{j*1024}")
            a(f"ds_read_b64_tr_b16 {vr(WFr[j],2)}, v{vW} offset:{(j>>2)*32768+(j&3)*2048}")
            a(f"ds_read_b64_tr_b16 {vr(WFr[j]+2,2)}, v{vW} offset:{(j>>2)*32768+(j&3)*2048+1024}")
        if "cnocomp" not in self.opt:
            for j in range(5): rd(j)
            for j in range(8):
                a(f"s_waitcnt lgkmcnt({min(12, 3*(7-j) if j >= 3 else 12)})")
                a(mfma(ACCc, WFr[j], AF[j], ACCc))
                if j + 5 < 8: rd(j+5)
        a(f"""
s_add_u32 s{sCST}, s{sCST}, 1
s_and_b32 s29, s{sCST}, 3
s_lshl_b32 s29, s29, 13
v_add_u32 v{vA}, s29, v{vA0}
v_add_u32 v{vW}, s29, v{vW0}
s_cmp_lt_u32 s{sCST}, {NST}
s_cbranch_scc1 {L('cloop')}
""")
        stamp(10)
        a("s_waitcnt vmcnt(0)")
        a.nop(9)
        for h_ in range(2):
            A_ = ACCc + 8*h_; Xr = T + 4*h_; U = T + 8
            for i in range(4): a(f"v_permlane32_swap_b32 v{A_+i}, v{A_+4+i}")
            for i in range(4):
                a(f"v_lshlrev_b32 v{U+2*i}, 16, v{Xr+i}")
                a(f"v_and_b32 v{U+2*i+1}, 0xffff0000, v{Xr+i}")
            for i in range(8): a(f"v_add_f32 v{A_+i}, v{A_+i}, v{U+i}")
            for i in range(4): a(f"v_cvt_pk_bf16_f32 v{Xr+i}, v{A_+2*i}, v{A_+2*i+1}")
            a(f"buffer_store_dwordx4 v[{Xr}:{Xr+3}], v8, s[{SRD_WF}:{SRD_WF+3}], s34 offen offset:{32*h_}")
        a(f"s_cmp_lg_u32 s2, 0")
        a(f"s_cbranch_scc1 {L('cdone')}")
        a(f"s_mov_b32 s29, {FW0}")
        self.signal(29)
        a(f"s_branch {L('cdone')}")
        a.label(L('cprod'))
        if "cearly" in self.opt:
            a("s_waitcnt vmcnt(0)")
            a("s_barrier")
        else:
            for g_ in self.c_pieces(): a(g_)
            a("s_waitcnt vmcnt(8)")
            a("s_barrier")
            for g_ in self.c_pieces(): a(g_)
        a(f"s_mov_b32 s{sCST}, 0")
        a.label(L('ploop'))
        a("s_waitcnt vmcnt(16)")
        a("s_barrier")
        self.pst()
        lskip = L('pskip')
        a(f"s_cmp_ge_u32 s{sISS}, {NST}\ns_cbranch_scc1 {lskip}")
        if "cnodma" in self.opt: a(f"s_add_u32 s{sISS}, s{sISS}, 1")
        else:
            for g_ in self.c_pieces(): a(g_)
        a(f"""
s_branch {L('pnext')}
{lskip}:
s_waitcnt vmcnt(0)
{L('pnext')}:
s_add_u32 s{sCST}, s{sCST}, 1
s_cmp_lt_u32 s{sCST}, {NST}
s_cbranch_scc1 {L('ploop')}
""")
        stamp(10)
        a.label(L('cdone'))

    def build(self):
        a = self.a; L = self.L
        self.prologue()
        a(f"s_cmp_eq_u32 s{sUH}, 0")
        a(f"s_cbranch_scc0 {L('uh1')}")
        self.phaseA(0)
        a(f"s_branch {L('join')}")
        a.label(L('uh1'))
        self.phaseA(1)
        a.label(L('join'))
        self.phaseB()
        self.phaseC()
        if self.stamps:
            a("s_waitcnt vmcnt(0)")
            self.stamp(11)
            a("s_memrealtime s[98:99]")
            a("s_waitcnt lgkmcnt(0)")
            for i in range(1,12): a(f"s_sub_u32 s{70+2*i}, s{70+2*i}, s70")
            a("s_sub_u32 s98, s98, s96")
            a("s_sub_u32 s94, s94, s70")
            a("s_mov_b32 s29, s96")
            a("s_mov_b32 s96, s94")
            a("s_mov_b32 s94, s29")
            a(f"""
s_lshl_b32 s29, s2, 3
s_add_u32 s29, s29, s{sW}
s_lshl_b32 s29, s29, 6
s_add_u32 s29, s29, 0xE00000
""")
            for i in range(1,12): a(f"v_mov_b32 v{7+i}, s{70+2*i}")
            a(f"""
v_mov_b32 v19, s98
v_mov_b32 v20, s96
v_mov_b32 v21, s94
v_mov_b32 v22, 0
v_mov_b32 v23, 0
v_mov_b32 v24, s29
s_mov_b64 exec, 1
global_store_dwordx4 v24, v[8:11], s[20:21]
global_store_dwordx4 v24, v[12:15], s[20:21] offset:16
global_store_dwordx4 v24, v[16:19], s[20:21] offset:32
global_store_dwordx4 v24, v[20:23], s[20:21] offset:48
""")
        a.label(L('bail'))
        a.label(L('end'))
        a("s_endpgm")
        return kernel_text(self.name, a.text(), vgpr=256, sgpr=100)

HDR = open("parallel_sum__mha_block__glu_gated_swiglu__prompt.s.ref").read().split("; Override launch geometry")[0]
def make(stamps=False, opt=(), name=KNAME):
    s = HDR + f"; @launch grid=(256,1,1) block=(512,1,1) lds={LDS_TOTAL}\n"
    s += '.amdgcn_target "amdgcn-amd-amdhsa--gfx950"\n'
    s += Gen(name, stamps, opt).build()
    return s
if __name__ == "__main__":
    open("pk.s","w").write(make())
```

```python
from asmlib import *
import struct
QF, KF, VF, HF, OF, WSEND = 0, 0x200000, 0x400000, 0x600000, 0xB60000, 0xD60000
SLOT = 28672
MISC = 131072
STAT = MISC
CSP  = MISC + 1024
VSCR = MISC + 4096
EX   = MISC
FLAG = MISC + 20480
LDS_TOTAL = MISC + 4096 + 4*6144
FL = 0xD60000
F1, F2, F3, FW0 = FL, FL + 4096, FL + 8192, FL + 12288
CQ_BITS = 0x3EB8AA3B
KNAME = "parallel_sum__mha_block__glu_gated_swiglu__prompt_kernel"

def mfma(d, a, b, c):
    cc = vr(c, 16) if c is not None else "0"
    return f"v_mfma_f32_32x32x16_bf16 {vr(d,16)}, {vr(a,4)}, {vr(b,4)}, {cc}"
def smf(d, a, b, idx):
    return f"v_smfmac_f32_32x32x32_bf16 {vr(d,16)}, {vr(a,4)}, {vr(b,8)}, v{idx}"
def mf4(d, a, b):
    return f"v_mfma_f32_4x4x4_16b_bf16 {vr(d,4)}, {vr(a,2)}, {vr(b,2)}, {vr(d,4)}"

SRD_X, SRD_WQ, SRD_WF, SRD_WS = 8, 12, 16, 20
SRD_W3 = 4
sW, sTB, sUH, sCS, sRB = 24, 25, 26, 27, 28
pOUT, pW2, pWO, pDBG = 36, 38, 40, 42
sXD, sWD, sFD, sFB, sTBG = 44, 45, 46, 47, 48
sHD, sQB, sSRC, sDST, sSTG, sREDO, sTB0 = 49, 50, 51, 52, 53, 54, 55
sMASK = 56
sRB64, sCB, sAOFF, sALT, sLOFF, sISS, sTMP, sCST = 58, 59, 60, 61, 62, 63, 64, 65
sSPIN = 66
sWOFF, sWL = 67, 68
sK0D, sK0S = 67, 68
sTAG = 3
sWB = 35
sVER = 42
sA2 = 43
X = 8; ACC = 136; WF = 200; CSA = 216; SEL = 232
AW = 236; AX = 240; VX = 244; VW = 246; VFo = 232
vNM, vS, vR = 251, 252, 253
vPOLL = 254
vL16 = 255

class Gen:
    def __init__(self, name=KNAME, stamps=False, opt=(), prefix="L"):
        self.a = Asm(); self.name = name; self.stamps = stamps; self.opt = set(opt); self.prefix = prefix
    def L(self, s): return f"{self.prefix}_{s}"
    def stamp(self, i, c=False):
        if ("cst2" in self.opt or "cst3" in self.opt or "pst" in self.opt) and 1 <= i <= 7: return
        if "cstamps" in self.opt and (1 <= i <= 7) != c:
            if not (i == 0 or i >= 8): return
            if c: return
        if self.stamps: self.a(f"{'s_memrealtime' if 'rt' in self.opt else 's_memtime'} s[{70+2*i}:{71+2*i}]")

    def signal(self, off_sgpr):
        a = self.a; l = a.newlabel(self.L("sig"))
        a(f"""
s_cmp_lg_u32 s{sW}, 0
s_cbranch_scc1 {l}
v_mov_b32 v5, s{off_sgpr}
v_mov_b32 v6, s{sTAG}
s_mov_b64 exec, 1
global_store_dword v5, v6, s[{SRD_WS}:{SRD_WS+1}] sc1
s_mov_b64 exec, -1
{l}:
""")
    def poll_issue(self, vaddr):
        a = self.a; l = a.newlabel(self.L("pi"))
        a(f"""
s_cmp_lg_u32 s{sW}, 0
s_cbranch_scc1 {l}
global_load_dword v{vPOLL}, v{vaddr}, s[{SRD_WS}:{SRD_WS+1}] sc1
{l}:
""")
    def poll_check(self, vaddr, site=0, wait=True):
        a = self.a; ok = a.newlabel(self.L("pok")); sp = a.newlabel(self.L("psp")); bail = self.L("bail")
        a(f"""
s_cmp_lg_u32 s{sW}, 0
s_cbranch_scc1 {ok}
s_mov_b32 s{sSPIN}, 0
""")
        if wait is True: a("s_waitcnt vmcnt(0)")
        elif wait: a(f"s_waitcnt vmcnt({wait})")
        a(f"""
{sp}:
v_cmp_ne_u32 vcc, s{sTAG}, v{vPOLL}
s_nop 4
s_cmp_eq_u64 vcc, 0
s_cbranch_scc1 {ok}
s_add_u32 s{sSPIN}, s{sSPIN}, 1
s_cmp_gt_u32 s{sSPIN}, 0x8000
s_cbranch_scc1 {bail}
s_sleep 1
global_load_dword v{vPOLL}, v{vaddr}, s[{SRD_WS}:{SRD_WS+1}] sc1
s_waitcnt vmcnt(0)
s_branch {sp}
{ok}:
""")
        if self.stamps:
            if site == 2: self.stamp(12)

    def prologue(self):
        a = self.a; L = self.L
        a(f"""
s_cmp_ge_u32 s2, 256
s_cbranch_scc1 {L('end')}
s_load_dwordx4 s[4:7], s[0:1], 0
s_load_dwordx4 s[60:63], s[0:1], 32
s_load_dwordx2 s[{pW2}:{pW2+1}], s[0:1], 48
s_load_dwordx2 s[{pWO}:{pWO+1}], s[0:1], 16
s_load_dwordx4 s[64:67], s[0:1], 56
s_load_dwordx2 s[68:69], s[0:1], 72
""")
        if self.stamps:
            a(f"{'s_memrealtime' if 'rt' in self.opt else 's_memtime'} s[70:71]")
            a("s_memrealtime s[96:97]")
        a(f"""
v_lshrrev_b32 v1, 6, v0
v_and_b32 v0, 63, v0
s_and_b32 s29, s2, 7
v_readfirstlane_b32 s{sW}, v1
s_lshr_b32 s30, s2, 3
s_and_b32 s31, s29, 1
s_lshl_b32 s31, s31, 3
s_and_b32 s32, s30, 7
s_add_u32 s{sRB}, s31, s32
s_lshr_b32 s31, s29, 1
s_lshl_b32 s31, s31, 2
s_lshr_b32 s33, s30, 3
s_add_u32 s{sCS}, s31, s33
s_lshl_b32 s31, s29, 2
s_add_u32 s{sHD}, s31, s33
s_mov_b32 s{sQB}, s32
s_mov_b32 s{sRB64}, s{sHD}
s_mov_b32 s{sCB}, s32
v_lshlrev_b32 v{vL16}, 4, v0
v_mov_b32 v7, 0
s_and_b32 s{sTB}, s{sW}, 3
s_lshr_b32 s{sUH}, s{sW}, 2
s_lshl_b32 s{sTBG}, s{sRB}, 2
s_add_u32 s{sTBG}, s{sTBG}, s{sTB}
""")
        a(f"""
v_lshrrev_b32 v1, 3, v0
s_lshl_b32 s29, s{sRB}, 7
s_lshl_b32 s30, s{sTB}, 5
s_add_u32 s29, s29, s30
v_add_u32 v1, s29, v1
v_lshlrev_b32 v1, 10, v1
v_lshrrev_b32 v2, 4, v0
v_and_b32 v3, 7, v0
v_xor_b32 v4, v2, v3
v_lshl_add_u32 v{VX}, v4, 4, v1
v_xor_b32 v4, 4, v4
v_lshl_add_u32 v{VX+1}, v4, 4, v1
v_add_u32 v{VX+1}, 8192, v{VX+1}
s_mul_i32 s31, s{sCS}, 192
s_mul_i32 s29, s{sTB}, {16*3072}
s_add_u32 s{sWB}, s29, s31
s_mov_b32 s32, 43691
s_movk_i32 s33, 3072
""")
        for q in range(3):
            a(f"""
v_add_u32 v1, {64*q}, v0
v_mul_u32_u24 v2, s32, v1
v_lshrrev_b32 v2, 19, v2
v_mul_u32_u24 v3, 12, v2
v_sub_u32 v3, v1, v3
v_mul_u32_u24 v2, s33, v2
v_lshl_add_u32 v{VW+q}, v3, 4, v2
""")
        a(f"""
s_mul_i32 s30, s{sTB}, 3072
s_add_u32 s{sWD}, s30, 16384
s_lshl_b32 s{sXD}, s{sTB}, 12
s_waitcnt lgkmcnt(0)
s_mov_b32 s{SRD_X}, s4
s_mov_b32 s{SRD_X+1}, s5
s_mov_b32 s{SRD_X+2}, {2048*1024}
s_mov_b32 s{SRD_X+3}, 0x20000
s_mov_b32 s{SRD_WQ}, s6
s_mov_b32 s{SRD_WQ+1}, s7
s_mov_b32 s{SRD_WQ+2}, {512*3072}
s_mov_b32 s{SRD_WQ+3}, 0x20000
s_mov_b32 s{SRD_WF}, s60
s_mov_b32 s{SRD_WF+1}, s61
s_mov_b32 s{SRD_WF+2}, {512*2752}
s_mov_b32 s{SRD_WF+3}, 0x20000
s_mov_b32 s{SRD_WS}, s68
s_mov_b32 s{SRD_WS+1}, s69
s_mov_b32 s{SRD_WS+2}, {WSEND}
s_mov_b32 s{SRD_WS+3}, 0x20000
s_mov_b32 s{pOUT}, s64
s_mov_b32 s{pOUT+1}, s65
s_mov_b32 s{sVER}, 0
s_add_u32 s30, s68, {FW0}
s_addc_u32 s31, s69, 0
s_load_dword s{sTAG}, s[30:31], 0
s_mov_b32 s{SRD_W3}, s62
s_mov_b32 s{SRD_W3+1}, s63
s_mov_b32 s{SRD_W3+2}, {512*2752}
s_mov_b32 s{SRD_W3+3}, 0x20000
""")

    def prologue2(self):
        a = self.a
        a(f"s_movk_i32 s33, 2752")
        a(f"s_mov_b32 s32, 43691")
        for q in range(3):
            a(f"""
v_add_u32 v1, {64*q}, v0
v_mul_u32_u24 v2, s32, v1
v_lshrrev_b32 v2, 19, v2
v_mul_u32_u24 v3, 12, v2
v_sub_u32 v3, v1, v3
v_mul_u32_u24 v2, s33, v2
v_lshl_add_u32 v{VFo+q}, v3, 4, v2
""")
            if "nozero" not in self.opt:
                a(f"""
v_lshrrev_b32 v3, 2, v3
s_mul_i32 s29, s{sCS}, 3
v_add_u32 v3, s29, v3
v_cmp_lt_u32 vcc, 42, v3
v_mov_b32 v2, 0x7ff00000
s_nop 0
v_cndmask_b32 v{VFo+q}, v{VFo+q}, v2, vcc
""")
        a(f"""
s_mul_i32 s31, s{sCS}, 192
s_mul_i32 s{sFD}, s{sTB}, 3072
s_mul_i32 s29, s{sTB}, {16*2752}
s_add_u32 s{sFB}, s29, s31
v_and_b32 v1, 31, v0
v_lshrrev_b32 v2, 5, v0
s_lshl_b32 s29, s{sTB}, 5
v_add_u32 v3, s29, v1
v_lshlrev_b32 v3, 7, v3
v_lshlrev_b32 v4, 2, v2
v_or_b32 v4, s{sTB}, v4
v_bfe_u32 v5, v1, 1, 3
v_xor_b32 v4, v4, v5
v_lshl_add_u32 v{AX}, v4, 4, v3
v_xor_b32 v{AX+1}, 16, v{AX}
v_xor_b32 v{AX+2}, 32, v{AX}
v_xor_b32 v{AX+3}, 48, v{AX}
v_lshlrev_b32 v3, 5, v2
v_bfe_u32 v4, v0, 2, 2
v_add_u32 v3, v3, v4
v_mul_u32_u24 v3, 0xc0, v3
v_bfe_u32 v4, v0, 4, 1
v_lshl_add_u32 v3, v4, 5, v3
v_and_b32 v4, 3, v0
v_lshl_add_u32 v3, v4, 3, v3
""")
        for j in range(4):
            a(f"s_xor_b32 s29, s{sTB}, {j}")
            a(f"s_mul_i32 s29, s29, 1536")
            a(f"v_add_u32 v{AW+j}, s29, v3")

    def mall_prefetch(self, which):
        a = self.a; L = self.L
        def one(tb, srd, n, glob=False):
            l = a.newlabel(L("mpf"))
            t = f"s_cmp_lg_u32 s{sTB}, {tb}\ns_cbranch_scc1 {l}\n"
            t += f"s_mul_i32 s29, s2, {n}\nv_add_u32 v1, s29, v0\nv_lshlrev_b32 v1, 7, v1\n"
            if n < 64: t += f"s_mov_b32 s30, {hex((1 << min(n,32)) - 1)}\ns_mov_b32 s31, {hex((1 << max(n-32,0)) - 1)}\ns_mov_b64 exec, s[30:31]\n"
            if glob: t += f"global_load_dword v250, v1, s[{srd}:{srd+1}]\n"
            else: t += f"buffer_load_dword v250, v1, s[{srd}:{srd+3}], 0 offen {'nt' if 'pnt' in self.opt else ''}\n"
            t += f"s_mov_b64 exec, -1\n{l}:"
            a(t)
        if "x" in which: one(0, SRD_X, 64); one(1, SRD_WQ, 48)
        if "f" in which: one(2, SRD_WF, 43); one(3, SRD_W3, 43)

    def code_prefetch(self):
        a = self.a; L = self.L
        l, here = a.newlabel(L("cpf")), a.newlabel(L("here"))
        a(f"""
s_cmp_lg_u32 s{sTB}, 2
s_cbranch_scc1 {l}
s_getpc_b64 s[30:31]
{here}:
s_sub_u32 s30, s30, {here}-{self.name}
s_subb_u32 s31, s31, 0
s_lshr_b32 s29, s2, 3
s_mul_i32 s29, s29, 10
v_add_u32 v1, s29, v0
v_min_u32 v1, ({L('end')}-{self.name})/128, v1
v_lshlrev_b32 v1, 7, v1
s_mov_b64 exec, 0x3ff
global_load_dword v250, v1, s[30:31]
s_mov_b64 exec, -1
{l}:
""")

    def l2_pf_qkv(self):
        a = self.a; D = 250
        l3, ld = a.newlabel(self.L("pf3")), a.newlabel(self.L("pfd"))
        a(f"""
s_cmp_eq_u32 s{sTB}, 3
s_cbranch_scc1 {l3}
s_and_b32 s29, s{sCS}, 3
s_lshl_b32 s29, s29, 5
s_lshl_b32 s30, s{sRB}, 7
s_add_u32 s29, s29, s30
v_and_b32 v1, 31, v0
v_add_u32 v1, s29, v1
v_lshlrev_b32 v1, 10, v1
v_lshrrev_b32 v2, 5, v0
s_lshl_b32 s30, s{sTB}, 1
s_add_u32 s30, s30, 3
v_add_u32 v2, s30, v2
v_min_u32 v2, 7, v2
v_lshl_add_u32 v1, v2, 7, v1
buffer_load_dword v{D}, v1, s[{SRD_X}:{SRD_X+3}], 0 offen
s_branch {ld}
{l3}:
s_and_b32 s29, s{sRB}, 7
s_mul_i32 s29, s29, 40
s_add_u32 s29, s29, 192
v_lshrrev_b32 v1, 1, v0
v_add_u32 v1, s29, v1
s_movk_i32 s30, 3072
v_mul_lo_u32 v1, s30, v1
v_and_b32 v2, 1, v0
v_lshl_add_u32 v1, v2, 7, v1
s_mul_i32 s30, s{sCS}, 192
buffer_load_dword v{D}, v1, s[{SRD_WQ}:{SRD_WQ+3}], s30 offen
v_add_u32 v1, {32*3072}, v1
s_mov_b32 exec_hi, 0
s_mov_b32 exec_lo, 0xffff
buffer_load_dword v{D}, v1, s[{SRD_WQ}:{SRD_WQ+3}], s30 offen
s_mov_b64 exec, -1
{ld}:
""")
    def l2_pf_ffn(self):
        a = self.a; D = 250
        a(f"""
s_and_b32 s29, s{sRB}, 7
s_lshl_b32 s29, s29, 6
s_lshl_b32 s30, s{sTB}, 4
s_add_u32 s29, s29, s30
v_bfe_u32 v1, v0, 1, 4
v_add_u32 v1, s29, v1
s_movk_i32 s30, 2752
v_mul_lo_u32 v1, s30, v1
v_and_b32 v2, 1, v0
v_lshl_add_u32 v1, v2, 7, v1
s_mul_i32 s30, s{sCS}, 192
s_mov_b32 exec_hi, 0
buffer_load_dword v{D}, v1, s[{SRD_WF}:{SRD_WF+3}], s30 offen
buffer_load_dword v{D}, v1, s[{SRD_W3}:{SRD_W3+3}], s30 offen
s_mov_b64 exec, -1
""")

    def phaseA(self, uh):
        a = self.a; L = self.L; opt = self.opt; stamp = self.stamp
        lg, vm = a.lg, a.vm
        lg.reset(); vm.reset()
        P = f"u{uh}"
        CS = CSA
        CT = CSA + 8
        def dma_pieces(gs):
            if gs > 15 or ("nodma" in opt and gs >= 3): return []
            sb = (gs % 4) * SLOT
            out = []
            def piece(m0base, m0off, static_soff, sreg_base, vreg, srd):
                def f():
                    a(f"s_add_u32 m0, s{m0base}, {m0off}")
                    if sreg_base is None: a(f"s_mov_b32 s29, {static_soff}")
                    else: a(f"s_add_u32 s29, s{sreg_base}, {static_soff}")
                    a(f"buffer_load_dwordx4 v{vreg}, s[{srd}:{srd+3}], s29 offen {'nt ' if ('ant' in opt or ('antq' in opt and gs < 8) or ('antf' in opt and gs >= 8)) else ''}lds"); vm.issue(f"d{gs}")
                return f
            if uh == 0: return []
            if gs < 8:
                c = gs
                xs = [piece(sXD, sb+q2*2048+p*1024, c*128+q2*16384, None, VX+p, SRD_X) for q2 in range(2) for p in range(2)]
                ws = [piece(sWD, sb+q*1024, c*64*3072, sWB, VW+q, SRD_WQ) for q in range(3)]
                out = [xs[0], ws[0], xs[1], ws[1], xs[2], ws[2], xs[3]]
            else:
                f_ = gs - 8
                for q in range(3):
                    out.append(piece(sFD, sb+q*1024, f_*64*2752, sFB, VFo+q, SRD_WF))
                    out.append(piece(sFD, sb+12288+q*1024, f_*64*2752, sFB, VFo+q, SRD_W3))
            return out
        pending = []
        def dma(gs):
            for p in dma_pieces(gs): p()
        def dma_one():
            if pending: pending.pop(0)()
        def xreg(ks): return X + 4*ks
        def bump(reg, gs):
            if gs % 4 == 1: a(f"v_add_u32 v{reg}, {2*SLOT}, v{reg}")
            if gs % 4 == 3: a(f"v_subrev_u32 v{reg}, {2*SLOT}, v{reg}")
        def wread(dst, gs, j, off, tag):
            imm = (gs & 1)*SLOT + off
            a(f"ds_read_b64_tr_b16 {vr(dst,2)}, v{AW+j} offset:{imm}"); lg.issue(tag)
            a(f"ds_read_b64_tr_b16 {vr(dst+2,2)}, v{AW+j} offset:{imm+768}"); lg.issue(tag)
        SELR = CSA + 12 if uh == 0 else ACC + 48
        def sel_init(r):
            a(f"""
v_and_b32 v1, 15, v0
v_bfe_u32 v2, v0, 4, 1
v_cmp_eq_u32 vcc, v1, v2
v_mov_b32 v3, 0x3f803f80
s_nop 0
v_cndmask_b32 v{r}, 0, v3, vcc
v_mov_b32 v{r+1}, v{r}
v_mov_b32 v{r+2}, v{r}
v_mov_b32 v{r+3}, v{r}
""")
        def sel(t, frag, selr):
            if "nocs" in opt: return
            a(f"v_mfma_f32_16x16x32_bf16 {vr(CS+4*t,4)}, {vr(selr,4)}, {vr(frag,4)}, {vr(CS+4*t,4)}")
        def midbar(gs):
            vm.wait(f"d{gs+1}")
            if gs == 10: vm.wait("st")
            if "nobar" not in opt: a("s_barrier")
            if gs == 10:
                a(f"s_lshl_b32 s29, s{sCS}, 7")
                a(f"s_lshl_b32 s30, s{sRB}, 2")
                a(f"s_add_u32 s29, s29, s30")
                a(f"s_add_u32 s29, s29, {F1}")
                self.signal(29)
            assert not pending
            pending.extend(dma_pieces(gs+3))
            if gs == 14 and uh == 0 and "nokvpf" not in opt:
                l = a.newlabel(L("kvpf"))
                a(f"""
s_cmp_lg_u32 s{sW}, 0
s_cbranch_scc1 {l}
s_waitcnt vmcnt(0)
v_cmp_ne_u32 vcc, s{sTAG}, v{vPOLL}
s_nop 4
s_cmp_eq_u64 vcc, 0
s_cbranch_scc0 {l}
s_lshl_b32 s29, s{sHD}, 16
s_lshl_b32 s30, s{sQB}, 13
s_add_u32 s29, s29, s30
v_lshlrev_b32 v1, 7, v0
buffer_load_dword v244, v1, s[{SRD_WS}:{SRD_WS+3}], s29 offen
s_add_u32 s29, s29, {KF}
buffer_load_dword v245, v1, s[{SRD_WS}:{SRD_WS+3}], s29 offen
s_add_u32 s29, s29, {VF-KF}
buffer_load_dword v246, v1, s[{SRD_WS}:{SRD_WS+3}], s29 offen
s_mov_b32 s{sVER}, 1
{l}:
""")
            if gs == 12 and uh == 0:
                a(f"""
s_lshr_b32 s29, s{sHD}, 1
v_and_b32 v1, 48, v0
v_min_u32 v1, 32, v1
v_add_u32 v1, s29, v1
v_mul_u32_u24 v1, 0x5556, v1
v_lshrrev_b32 v1, 16, v1
v_lshlrev_b32 v1, 7, v1
v_and_b32 v7, 15, v0
v_lshl_add_u32 v7, v7, 2, v1
v_add_u32 v7, {F1}, v7
""")
                self.poll_issue(7)
        def csp_write(tiles, t0):
            a(f"v_lshlrev_b32 v1, 4, v0")
            a(f"s_lshl_b32 s29, s{sTB}, 2")
            a(f"s_add_u32 s29, s29, {CSP + t0*512}")
            a(f"v_add_u32 v1, s29, v1")
            a("s_mov_b64 exec, 0xffff")
            for t in range(tiles):
                a(f"ds_write_b32 v1, v{CS+4*t} offset:{t*512}"); lg.issue("csp")
                a(f"ds_write_b32 v1, v{CS+4*t+1} offset:{t*512+256}"); lg.issue("csp")
            a("s_mov_b64 exec, -1")

        S2, S2b, S1, S1b, ONES = ACC+48, ACC+52, ACC+56, ACC+60, 248
        sHI = 34
        for gs in range(3): dma(gs)
        if uh == 0 and "tlb" in opt:
            a(f"""
v_and_b32 v1, 1, v0
v_lshlrev_b32 v1, 20, v1
s_mov_b64 exec, 3
buffer_load_dword v250, v1, s[{SRD_WF}:{SRD_WF+3}], 0 offen
buffer_load_dword v250, v1, s[{SRD_W3}:{SRD_W3+3}], 0 offen
global_load_dword v250, v1, s[{pW2}:{pW2+1}]
s_mov_b64 exec, 1
global_load_dword v250, v1, s[{pWO}:{pWO+1}]
global_load_dword v250, v1, s[{pOUT}:{pOUT+1}]
s_mov_b64 exec, -1
""")
        if uh == 0 and "nompx" not in opt and "mpx1" not in opt: self.mall_prefetch("x")
        if uh == 0 and "nocode" not in opt: self.code_prefetch()
        self.prologue2()
        a(f"s_mov_b32 s{sHI}, 0xffff0000")
        if uh == 0:
            for i in range(64): a(f"v_mov_b32 v{ACC+i}, 0")
            for i in range(12): a(f"v_mov_b32 v{CS+i}, 0")
            for i in range(2): a(f"v_mov_b32 v{ONES+i}, 0x3f803f80")
            sel_init(SELR)
        a(f"""
s_waitcnt lgkmcnt(0)
s_mul_i32 s{sTAG}, s{sTAG}, 0x9E3779B1
s_add_u32 s{sTAG}, s{sTAG}, 0x7F4A7C15
""")
        vm.wait("d0")
        a("s_barrier")
        stamp(1)
        def xread(ks):
            c, j = ks >> 2, ks & 3
            a(f"ds_read_b128 {vr(xreg(ks),4)}, v{AX+j} offset:{(c&1)*SLOT}"); lg.issue(f"x{ks}")
            bump(AX+j, c)
        if uh == 1:
            for ks in range(32):
                c, j = ks >> 2, ks & 3
                if j == 2:
                    if c > 0: lg.wait(f"x{4*c-1}")
                    midbar(c)
                xread(ks)
                dma_one(); dma_one()
            while pending: dma_one()
            stamp(2)
            a("s_waitcnt lgkmcnt(0)"); lg.reset()
            a("s_barrier")
            a(f"""
v_and_b32 v1, 31, v0
s_lshl_b32 s29, s{sTB}, 5
v_add_u32 v1, s29, v1
v_lshlrev_b32 v1, 3, v1
v_add_u32 v1, {STAT}, v1
ds_read_b64 v[2:3], v1
v_cmp_gt_u32 vcc, 32, v0
s_waitcnt lgkmcnt(0)
v_mov_b32 v{vS}, v3
v_rcp_f32 v{vR}, v3
v_cndmask_b32 v{vNM}, 0, v2, vcc
""")
        else:
            QS = [[WF, WF+4, WF+8], [WF+12, SEL, 244]]
            def qread(ks, part):
                c, j = ks >> 2, ks & 3
                if part == 0: xread(ks)
                wread(QS[ks & 1][part], c, j, 16384 + part*64, f"w{ks}_{part}")
                if part == 2: bump(AW+j, c)
            for p_ in range(3): qread(0, p_)
            if "mpx1" in opt: self.mall_prefetch("x")
            if "pf" in opt: self.l2_pf_qkv()
            for ks in range(32):
                c, j = ks >> 2, ks & 3
                if ks == 8 and ("pf" in opt or "pff" in opt): self.l2_pf_ffn()
                if ks == (8 if "mf8" in opt else 4) and "nomf" not in opt: self.mall_prefetch("f")
                if j == 3: midbar(c)
                fr = QS[ks & 1]; xr = xreg(ks)
                for t in range(3):
                    lg.wait(f"x{ks}", f"w{ks}_{t}")
                    a(mfma(ACC+16*t, fr[t], xr, ACC+16*t))
                    if ks + 1 < 32: qread(ks+1, t)
                if j < 3: sel(j, fr[j], SELR)
                if j == 3 and "nomf4" not in opt:
                    for q in range(4):
                        x4 = xreg(4*c+q)
                        a(mf4(S2, x4, x4)); a(mf4(S1, x4, ONES)); a(mf4(S2b, x4+2, x4+2)); a(mf4(S1b, x4+2, ONES))
            a.nop(2)
            csp_write(3, 0)
            if "pfdummy" in opt: pass
            stamp(2)
            T = WF
            a.nop(4)
            for i in range(4):
                a(f"v_add_f32 v{S2+i}, v{S2+i}, v{S2b+i}")
                a(f"v_add_f32 v{S1+i}, v{S1+i}, v{S1b+i}")
            a(f"""
v_and_b32 v1, 3, v0
v_cmp_eq_u32 vcc, 1, v1
v_cmp_eq_u32 s[30:31], 2, v1
v_cmp_eq_u32 s[32:33], 3, v1
s_nop 1
v_cndmask_b32 v{S2}, v{S2}, v{S2+1}, vcc
v_cndmask_b32 v{S1}, v{S1}, v{S1+1}, vcc
v_cndmask_b32 v{S2}, v{S2}, v{S2+2}, s[30:31]
v_cndmask_b32 v{S1}, v{S1}, v{S1+2}, s[30:31]
v_cndmask_b32 v{S2}, v{S2}, v{S2+3}, s[32:33]
v_cndmask_b32 v{S1}, v{S1}, v{S1+3}, s[32:33]
v_and_b32 v1, 31, v0
s_lshl_b32 s29, s{sTB}, 5
v_mov_b32 v{S1+1}, v{S1}
v_mov_b32 v{S2+1}, v{S2}
v_add_u32 v1, s29, v1
v_lshlrev_b32 v1, 3, v1
v_permlane32_swap_b32 v{S1}, v{S1+1}
v_permlane32_swap_b32 v{S2}, v{S2+1}
v_add_u32 v1, {STAT}, v1
s_nop 0
v_add_f32 v{S1}, v{S1}, v{S1+1}
v_add_f32 v{S2}, v{S2}, v{S2+1}
v_mul_f32 v{S1}, 0x3b000000, v{S1}
v_mul_f32 v{S2}, 0x3b000000, v{S2}
v_fma_f32 v{S2}, -v{S1}, v{S1}, v{S2}
v_max_f32 v{S2}, 0, v{S2}
v_cvt_pk_bf16_f32 v{T}, v{S1}, v{S1}
v_cvt_pk_bf16_f32 v{T+1}, v{S2}, v{S2}
v_xor_b32 v{T}, 0x80008000, v{T}
v_lshlrev_b32 v{T+1}, 16, v{T+1}
v_add_f32 v{T+1}, 0x3727c5ac, v{T+1}
v_cvt_pk_bf16_f32 v{T+1}, v{T+1}, v{T+1}
v_lshlrev_b32 v{T+1}, 16, v{T+1}
v_sqrt_f32 v{T+1}, v{T+1}
v_cmp_gt_u32 vcc, 32, v0
v_cvt_pk_bf16_f32 v{T+1}, v{T+1}, v{T+1}
v_lshlrev_b32 v{T+1}, 16, v{T+1}
s_mov_b32 exec_hi, 0
ds_write_b64 v1, {vr(T,2)}
s_mov_b64 exec, -1
v_mov_b32 v{vS}, v{T+1}
v_rcp_f32 v{vR}, v{T+1}
v_cndmask_b32 v{vNM}, 0, v{T}, vcc
v_and_b32 v4, 31, v0
v_lshlrev_b32 v4, 4, v4
v_add_u32 v4, {CSP}, v4
""")
            a("s_waitcnt lgkmcnt(0)"); lg.reset()
            a("s_barrier")
        def rank1(tiles, t0, accs, frs, xn):
            for t in range(tiles):
                a(f"ds_read_b128 {vr(frs[t],4)}, v4 offset:{(t0+t)*512}")
            a(f"""
v_mov_b32 v{xn+1}, 0
v_mov_b32 v{xn+2}, 0
v_mov_b32 v{xn+3}, 0
v_mov_b32 v{xn}, v{vNM}
""")
            for t in range(tiles):
                f = frs[t]
                a(f"s_waitcnt lgkmcnt({tiles-1-t})")
                a(f"v_add_f32 v{f}, v{f}, v{f+1}")
                a(f"v_add_f32 v{f+2}, v{f+2}, v{f+3}")
                a(f"v_mov_b32 v{f+3}, 0")
                a(f"v_add_f32 v{f}, v{f}, v{f+2}")
                a(f"v_cvt_pk_bf16_f32 v{f+1}, v{f}, v{f}")
                a(f"v_lshlrev_b32 v{f+1}, 16, v{f+1}")
                a(f"v_sub_f32 v{f+2}, v{f}, v{f+1}")
                a(f"v_cvt_pk_bf16_f32 v{f}, v{f+1}, v{f+2}")
                a(f"v_mov_b32 v{f+1}, 0")
                a(f"v_mov_b32 v{f+2}, 0")
                a("s_nop 1")
                a(mfma(accs[t], frs[t], xn, accs[t]))
        if uh == 0:
            rank1(3, 0, [ACC, ACC+16, ACC+32], [WF, WF+4, WF+8], WF+12)
            a.nop(6)
            PK = [WF, WF+8, CSA]
            sB = [66, 69, 43]
            a(f"""
s_mul_i32 s33, s{sTB}, 6144
s_add_u32 s33, s33, {VSCR}
v_and_b32 v1, 31, v0
v_lshlrev_b32 v1, 6, v1
v_lshrrev_b32 v2, 5, v0
v_lshl_add_u32 v1, v2, 3, v1
v_bfe_u32 v7, v0, 1, 2
v_lshl_add_u32 v1, v7, 4, v1
v_add_u32 v1, s33, v1
v_lshlrev_b32 v5, 3, v2
v_bfe_u32 v3, v0, 2, 2
v_add_u32 v5, v5, v3
v_lshlrev_b32 v5, 6, v5
v_bfe_u32 v3, v0, 4, 1
v_lshl_add_u32 v5, v3, 5, v5
v_and_b32 v7, 3, v0
v_lshl_add_u32 v5, v7, 3, v5
v_bfe_u32 v7, v0, 3, 1
v_lshlrev_b32 v7, 4, v7
v_xor_b32 v5, v7, v5
v_lshlrev_b32 v3, 16, v3
v_lshl_add_u32 v3, v2, 8, v3
v_and_b32 v7, 15, v0
v_lshl_add_u32 v3, v7, 4, v3
v_add_u32 v2, s33, v5
v_xor_b32 v4, 32, v5
v_add_u32 v4, s33, v4
s_mul_i32 s31, s{sCS}, 3
""")
            for t in range(3):
                A_ = ACC + 16*t; Pk = PK[t]
                lv, ld = L(f"{P}_v{t}"), L(f"{P}_d{t}")
                a(f"""
s_add_u32 s30, s31, {t}
s_cmp_lt_u32 s30, 16
s_cselect_b32 s29, {CQ_BITS}, 1.0
v_mul_f32 v6, s29, v{vR}
s_lshl_b32 s{sB[t]}, s30, 17
s_lshl_b32 s32, s{sTBG}, 10
s_add_u32 s{sB[t]}, s{sB[t]}, s32
""")
                if t == 2: a.nop(4)
                for i in range(16): a(f"v_mul_f32 v{A_+i}, v{A_+i}, v6")
                for i in range(8): a(f"v_cvt_pk_bf16_f32 v{Pk+i}, v{A_+2*i}, v{A_+2*i+1}")
                a(f"""
s_cmp_ge_u32 s30, 32
s_cbranch_scc1 {lv}
s_add_u32 s32, s{sB[t]}, 65536
buffer_store_dwordx4 {vr(Pk,4)}, v{vL16}, s[{SRD_WS}:{SRD_WS+3}], s{sB[t]} offen sc1
buffer_store_dwordx4 {vr(Pk+4,4)}, v{vL16}, s[{SRD_WS}:{SRD_WS+3}], s32 offen sc1
s_branch {ld}
{lv}:
""")
                for j in range(4):
                    if j: a(f"v_xor_b32 v5, {16*j}, v1")
                    a(f"ds_write_b64 v{5 if j else 1}, {vr(Pk+2*j,2)} offset:{2048*t}")
                a(f"{ld}:")
            nov = L(f"{P}_nov")
            a(f"""
s_cmp_lt_u32 s{sCS}, 10
s_cbranch_scc1 {nov}
s_waitcnt lgkmcnt(0)
""")
            for t in range(3):
                Pk = PK[t]; l = L(f"{P}_vr{t}")
                if t < 2: a(f"s_cmp_eq_u32 s{sCS}, 10\ns_cbranch_scc1 {l}")
                for q, off in enumerate((0, 256, 1024, 1280)):
                    a(f"ds_read_b64_tr_b16 {vr(Pk+2*q,2)}, v{4 if q & 1 else 2} offset:{2048*t+off}")
                if t < 2: a(f"{l}:")
            a("s_waitcnt lgkmcnt(0)")
            for t in range(3):
                Pk = PK[t]; l = L(f"{P}_vs{t}")
                if t < 2: a(f"s_cmp_eq_u32 s{sCS}, 10\ns_cbranch_scc1 {l}")
                a(f"buffer_store_dwordx4 {vr(Pk,4)}, v3, s[{SRD_WS}:{SRD_WS+3}], s{sB[t]} offen sc1")
                a(f"buffer_store_dwordx4 {vr(Pk+4,4)}, v3, s[{SRD_WS}:{SRD_WS+3}], s{sB[t]} offen offset:512 sc1")
                if t < 2: a(f"{l}:")
            a(f"{nov}:")
            vm.issue("st", 6)
        stamp(3)
        nf = 4 if uh == 0 else 2
        tf0 = 0 if uh == 0 else 4
        def foff(t):
            tt = tf0 + t
            return (tt & 1)*12288 + (tt >> 1)*64
        a("s_nop 1")
        if uh == 0:
            for t in range(4): wread(WF+4*t, 8, 0, foff(t), f"f0_{t}")
        else:
            FS = [[WF, WF+4], [WF+8, WF+12], [ACC+40, ACC+44]]
            def freads(ks):
                f, j = ks >> 2, ks & 3
                for t in range(2): wread(FS[ks % 3][t], 8+f, j, foff(t), f"f{ks}")
                bump(AW+j, 8+f)
            freads(0); freads(1)
        for i in range(16*nf): a(f"v_mov_b32 v{ACC+i}, 0")
        if uh == 0:
            for i in range(12): a(f"v_mov_b32 v{CS+i}, 0")
            for i in range(4): a(f"v_mov_b32 v{SEL+i}, v{CSA+12+i}")
            for i in range(4): a(f"v_mov_b32 v{CS+12+i}, 0")
            SELR = SEL
        else:
            for i in range(8): a(f"v_mov_b32 v{CS+i}, 0")
            sel_init(SELR)
        adds = []
        def flush_adds(n):
            for _ in range(n):
                if adds: a(adds.pop(0))
        for ks in range(32):
            f, j = ks >> 2, ks & 3
            gs = 8 + f
            if j == 2 and f < 7: midbar(gs)
            if uh == 0:
                for t in range(4):
                    lg.wait(f"f{ks}_{t}")
                    a(mfma(ACC+16*t, WF+4*t, xreg(ks), ACC+16*t))
                    if j == t: sel(t, WF+4*t, SELR)
                    if ks + 1 < 32:
                        k2 = ks + 1
                        wread(WF+4*t, 8+(k2>>2), k2&3, foff(t), f"f{k2}_{t}")
                k2 = ks + 1
                if k2 < 32: bump(AW+(k2&3), 8+(k2>>2))
            else:
                if ks + 2 < 32: freads(ks+2)
                lg.wait(f"f{ks}")
                for t in range(2):
                    a(mfma(ACC+16*t, FS[ks % 3][t], xreg(ks), ACC+16*t))
                    dma_one()
                if j < 2: sel(j, FS[ks % 3][j], SELR)
        a.nop(8)
        csp_write(nf, tf0)
        stamp(4)
        if uh == 0:
            lv_ = a.newlabel(L("ver"))
            a(f"s_cmp_eq_u32 s{sVER}, 1\ns_cbranch_scc1 {lv_}")
            self.poll_check(7, 0)
            a(f"{lv_}:")
        a("s_waitcnt lgkmcnt(0)"); lg.reset()
        a("s_barrier")
        kv = self.attn_loads(uh)
        def kv_one(n=1):
            for _ in range(n):
                if kv: a(kv.pop(0))
        XN2 = X
        a(f"""
v_and_b32 v4, 31, v0
v_lshlrev_b32 v4, 4, v4
v_add_u32 v4, {CSP}, v4
""")
        kv_one(2 if uh == 0 else 10)
        rank1(nf, tf0, [ACC+16*t for t in range(nf)], [WF+4*t for t in range(nf)], XN2)
        cA, cB = X+4, X+6
        a(f"""
v_mul_f32 v{cA}, 0xbfb8aa3b, v{vR}
v_mul_f32 v{cB}, v{vS}, v{vS}
""")
        a.nop(12)
        stores = []
        npairs = nf//2
        for i in range(npairs):
            G, U = ACC+32*i, ACC+32*i+16
            T = X + 8 + 32*i; Pk = X + 8 + 32*i + 16
            body = []
            body += [f"v_pk_mul_f32 {vr(T+r,2)}, {vr(G+r,2)}, {vr(cA,2)} op_sel_hi:[1,0]" for r in range(0,16,2)]
            body += [f"v_exp_f32 v{T+r}, v{T+r}" for r in range(16)]
            body += [f"v_pk_mul_f32 {vr(G+r,2)}, {vr(G+r,2)}, {vr(U+r,2)}" for r in range(0,16,2)]
            body += [f"v_pk_fma_f32 {vr(T+r,2)}, {vr(T+r,2)}, {vr(cB,2)}, {vr(cB,2)} op_sel_hi:[1,0,0]" for r in range(0,16,2)]
            body += [f"v_rcp_f32 v{T+r}, v{T+r}" for r in range(16)]
            body += ["s_nop 0"]
            body += [f"v_pk_mul_f32 {vr(G+r,2)}, {vr(G+r,2)}, {vr(T+r,2)}" for r in range(0,16,2)]
            body += [f"v_cvt_pk_bf16_f32 v{Pk+r}, v{G+2*r}, v{G+2*r+1}" for r in range(8)]
            for ins in body: a(ins)
            stores.append((i, Pk))
        for (i, Pk) in stores:
            a(f"""
s_mul_i32 s29, s{sCS}, 3
s_add_u32 s29, s29, {(tf0>>1)+i}
s_mul_i32 s30, s{sTBG}, 86
s_lshl_b32 s31, s29, 1
s_add_u32 s30, s30, s31
s_lshl_b32 s30, s30, 10
s_add_u32 s30, s30, {HF}
s_cmp_ge_u32 s29, 43
s_cselect_b32 s30, {WSEND}, s30
buffer_store_dwordx4 {vr(Pk,4)}, v{vL16}, s[{SRD_WS}:{SRD_WS+3}], s30 offen sc1
buffer_store_dwordx4 {vr(Pk+4,4)}, v{vL16}, s[{SRD_WS}:{SRD_WS+3}], s30 offen offset:1024 sc1
""")
        if uh == 1: self.kv_stage1 = list(kv)
        stamp(5)

    BQ = [216, 220]
    def kv_scalars(self):
        self.a(f"""
s_lshl_b32 s33, s{sHD}, 16
s_lshr_b32 s29, s{sW}, 1
s_and_b32 s29, s29, 1
s_and_b32 s30, s{sW}, 1
s_lshl_b32 s30, s30, 2
s_lshl_b32 s31, s{sUH}, 5
s_add_u32 s30, s30, s31
s_lshl_b32 s30, s30, 10
s_lshl_b32 s31, s29, 16
s_add_u32 s{sDST}, s31, s30
s_lshl_b32 s31, s29, 21
s_add_u32 s{sSRC}, s31, s30
s_add_u32 s{sSRC}, s{sSRC}, s33
s_add_u32 s{sSRC}, s{sSRC}, {KF}
""")
    def attn_loads(self, uh):
        a = self.a; Q = self.BQ
        a(f"""
s_lshl_b32 s33, s{sHD}, 16
s_lshl_b32 s{sTB0}, s{sQB}, 3
s_lshl_b32 s29, s{sTB}, 1
s_add_u32 s{sTB0}, s{sTB0}, s29
s_lshl_b32 s29, s{sTB0}, 10
s_add_u32 s69, s33, s29
""")
        self.kv_scalars()
        a(f"s_add_u32 s{sSRC}, s{sSRC}, 16384\ns_add_u32 s{sDST}, s{sDST}, 16384")
        g = []
        g.append(f"buffer_load_dwordx4 {vr(Q[0],4)}, v{vL16}, s[{SRD_WS}:{SRD_WS+3}], s69 offen sc1")
        g.append(f"buffer_load_dwordx4 {vr(Q[1],4)}, v{vL16}, s[{SRD_WS}:{SRD_WS+3}], s69 offen offset:1024 sc1")
        if uh == 1:
            a(f"""
s_and_b32 s29, s{sTB}, 1
s_lshr_b32 s30, s{sTB}, 1
s_lshl_b32 s30, s30, 15
s_lshl_b32 s31, s29, 16
s_add_u32 s{sK0D}, s31, s30
s_lshl_b32 s31, s29, 21
s_add_u32 s{sK0S}, s31, s30
s_add_u32 s{sK0S}, s{sK0S}, s33
s_add_u32 s{sK0S}, s{sK0S}, {KF}
""")
            for h_ in range(4):
                for q in range(4):
                    t = ""
                    if q == 0: t += f"s_mov_b32 m0, s{sK0D}\ns_add_u32 s{sK0D}, s{sK0D}, 4096\n"
                    t += f"buffer_load_dwordx4 v{vL16}, s[{SRD_WS}:{SRD_WS+3}], s{sK0S} offen offset:{q*1024} sc1 lds"
                    if q == 3: t += f"\ns_add_u32 s{sK0S}, s{sK0S}, 4096"
                    g.append(t)
        return g

    def phaseB(self):
        a = self.a; L = self.L; opt = self.opt; stamp = self.stamp
        vAK, vAV, vIDX = 2, 3, 4
        Q = self.BQ; K = [16, 20]; V = [24, 32]; S = [40, 56]; O = [72, 88]; C = [104, 120]; T = 136
        NST = 4
        a("s_nop 1")
        a(f"""
v_mov_b32 v{vIDX}, 0xdddddddd
v_and_b32 v5, 27, v0
v_cmp_eq_u32 vcc, 16, v5
v_mov_b32 v6, 0x3f803f80
s_mov_b32 s{sMASK}, 0x0000ffff
v_cndmask_b32 v{V[0]}, 0, v6, vcc
""")
        for i in range(1,16): a(f"v_mov_b32 v{V[0]+i}, v{V[0]}")
        a(f"""
s_mov_b32 s{sMASK+1}, 0x0000ffff
s_mov_b32 s{sREDO}, 0
s_lshl_b32 s35, s{sUH}, 15
v_lshrrev_b32 v5, 5, v0
v_lshlrev_b32 v5, 8, v5
v_and_b32 v6, 15, v0
v_lshl_add_u32 v5, v6, 4, v5
s_add_u32 s29, s35, 65536
v_add_u32 v1, s29, v5
v_mov_b32 v5, {FLAG}
v_mov_b32 v6, 0
ds_write_b32 v5, v6
s_waitcnt vmcnt(4) lgkmcnt(0)
s_cmp_eq_u32 s{sUH}, 0
s_cbranch_scc1 {L('bw0')}
s_waitcnt vmcnt(2)
{L('bw0')}:
s_barrier
""")
        stamp(6)
        a.label(L('redo'))
        a(f"""
s_cmp_eq_u32 s{sREDO}, 0
s_cselect_b32 s29, 1, 32
v_add_u32 v{vAK}, s35, v{vL16}
v_mov_b32 v{T}, 0xff800000
v_mov_b32 v{T+1}, 0xff800000
""")
        a.label(L('maxloop'))
        a(f"""
ds_read_b128 {vr(K[0],4)}, v{vAK}
v_add_u32 v{vAK}, 1024, v{vAK}
s_waitcnt lgkmcnt(0)
{mfma(S[0],K[0],Q[0],None)}
{mfma(S[1],K[0],Q[1],None)}
s_sub_u32 s29, s29, 1
""")
        a.nop(12)
        for i in range(8):
            for t in range(2):
                a(f"v_max3_f32 v{T+t}, v{T+t}, v{S[t]+2*i}, v{S[t]+2*i+1}")
        a(f"""
s_cmp_lg_u32 s29, 0
s_cbranch_scc1 {L('maxloop')}
v_mov_b32 v{T+2}, v{T}
v_mov_b32 v{T+3}, v{T+1}
v_add_u32 v{vAK}, s35, v{vL16}
v_mov_b32 v{vAV}, v1
v_permlane32_swap_b32 v{T}, v{T+2}
v_permlane32_swap_b32 v{T+1}, v{T+3}
s_mov_b64 exec, s[{sMASK}:{sMASK+1}]
ds_read_b128 {vr(V[0],4)}, v{vAV}
ds_read_b128 {vr(V[0]+4,4)}, v{vAV} offset:512
s_mov_b64 exec, -1
v_max_f32 v{T}, v{T}, v{T+2}
v_max_f32 v{T+1}, v{T+1}, v{T+3}
""")
        a(f"ds_read_b128 {vr(K[0],4)}, v{vAK}")
        for i in range(16): a(f"v_sub_f32 v{C[0]+i}, 0, v{T}")
        a("s_waitcnt lgkmcnt(0)")
        a("s_nop 0")
        a(mfma(S[0],K[0],Q[0],C[0]))
        for i in range(16): a(f"v_sub_f32 v{C[1]+i}, 0, v{T+1}")
        for t in range(2):
            for i in range(16): a(f"v_mov_b32 v{O[t]+i}, 0")
        for i in range(8,16): a(f"v_mov_b32 v{S[1]+i}, 0")
        def tile(p, off):
            exA = [f"v_exp_f32 v{S[0]+i}, v{S[0]+i}" for i in range(16)]
            exB = [f"v_exp_f32 v{S[1]+i}, v{S[1]+i}" for i in range(16)]
            insA = [
                (3, smf(O[1], V[p^1]+4, S[1]+8, vIDX)),
                (5, mfma(S[1], K[p], Q[1], C[1])),
                (8, f"ds_read_b128 {vr(K[p^1],4)}, v{vAK} offset:{off}"),
                (8, f"s_mov_b64 exec, s[{sMASK}:{sMASK+1}]"),
                (8, f"ds_read_b128 {vr(V[p^1],4)}, v{vAV} offset:{off}"),
                (8, f"ds_read_b128 {vr(V[p^1]+4,4)}, v{vAV} offset:{off+512}"),
                (8, f"s_mov_b64 exec, -1"),
                (11, smf(O[0], V[p], S[0], vIDX)),
            ]
            insB = [
                (3, smf(O[0], V[p]+4, S[0]+8, vIDX)),
                (5, "s_waitcnt lgkmcnt(0)"),
                (5, mfma(S[0], K[p^1], Q[0], C[0])),
                (11, smf(O[1], V[p], S[1], vIDX)),
            ]
            for l in interleave(exA, insA): a(l)
            for l in interleave(exB, insB): a(l)
        def kv_stage():
            a(f"s_mov_b32 m0, s{sDST}\ns_add_u32 s{sDST}, s{sDST}, 8192")
            for q in range(4):
                a(f"buffer_load_dwordx4 v{vL16}, s[{SRD_WS}:{SRD_WS+3}], s{sSRC} offen offset:{q*1024} sc1 lds")
            a(f"s_add_u32 s{sSRC}, s{sSRC}, 8192")
        a(f"s_cmp_lg_u32 s{sREDO}, 0")
        a(f"s_cbranch_scc1 {L('rloop0')}")
        stamp(7)
        for T_ in range(32):
            st_, t = T_ >> 3, T_ & 7
            if T_ == 0:
                l1_ = L('kv1')
                a(f"s_cmp_eq_u32 s{sUH}, 0\ns_cbranch_scc1 {l1_}")
                for g_ in self.kv_stage1: a(g_)
                a(f"{l1_}:")
            if st_ == 0 and t in (2, 4): kv_stage()
            if st_ == 0 and t == 6:
                a("s_waitcnt vmcnt(8)\ns_barrier")
                a(f"""
s_lshl_b32 s29, s{sRB}, 7
s_lshl_b32 s30, s{sCS}, 2
s_add_u32 s29, s29, s30
s_add_u32 s29, s29, {F2}
""")
                self.signal(29)
                a(f"""
s_lshr_b32 s29, s{sRB64}, 1
s_lshl_b32 s29, s29, 7
s_add_u32 s29, s29, {F2}
v_and_b32 v7, 15, v0
v_lshl_add_u32 v7, v7, 2, s29
""")
            if st_ == 1 and t == 6:
                a("s_waitcnt vmcnt(0)\ns_barrier")
                self.poll_issue(7)
            if st_ == 2 and t < 4 and "nocpf" not in opt:
                lp = L(f'cpf{t}')
                a(f"""
s_cmp_lg_u32 s{sTB}, {t}
s_cbranch_scc1 {lp}
s_lshr_b32 s29, s2, 3
s_lshl_b32 s29, s29, 9
s_lshl_b32 s30, s{sW}, 6
s_add_u32 s29, s29, s30
v_add_u32 v5, s29, v0
v_lshlrev_b32 v5, 7, v5
s_mov_b32 s{SRD_WQ}, s{pW2}
s_mov_b32 s{SRD_WQ+1}, s{pW2+1}
s_mov_b32 s{SRD_WQ+2}, {1376*1024}
buffer_load_dword v163, v5, s[{SRD_WQ}:{SRD_WQ+3}], 0 offen
v_subrev_u32 v6, {1376*1024}, v5
s_mov_b32 s{SRD_WF}, s{pWO}
s_mov_b32 s{SRD_WF+1}, s{pWO+1}
s_mov_b32 s{SRD_WF+2}, {512*1024}
buffer_load_dword v164, v6, s[{SRD_WF}:{SRD_WF+3}], 0 offen
{lp}:
""")
            early = "cearly" in opt
            if st_ == 2 and t == 5: self.c_setup()
            if early and st_ == 2 and t == 6:
                self.poll_check(7, 1, wait=(True if "nocpf" in opt else 2))
                a("s_barrier")
                cq = self.c_pieces() + self.c_pieces()
            if early and st_ == 3 and t == 6:
                a("s_barrier")
                cq = self.c_pieces()
            if early and ((st_ == 2 and t >= 6) or (st_ == 3 and (t < 2 or t >= 6))):
                lq = a.newlabel(L("cq"))
                a(f"s_cmp_eq_u32 s{sUH}, 0\ns_cbranch_scc1 {lq}")
                for _ in range(4): a(cq.pop(0))
                a(f"{lq}:")
            if not early and st_ == 2 and t == 6 and "nohpf" not in opt:
                l3 = L('hpf')
                a(f"""
s_cmp_lg_u32 s{sW}, 0
s_cbranch_scc1 {l3}
s_waitcnt vmcnt({0 if "nocpf" in opt else 2})
v_cmp_ne_u32 vcc, s{sTAG}, v{vPOLL}
s_nop 4
s_cmp_eq_u64 vcc, 0
s_cbranch_scc0 {l3}
s_mul_i32 s29, s{sRB64}, 176128
s_mul_i32 s30, s{sCB}, {172*128}
s_add_u32 s29, s29, s30
s_add_u32 s29, s29, {HF}
v_lshlrev_b32 v5, 7, v0
buffer_load_dword v160, v5, s[{SRD_WS}:{SRD_WS+3}], s29 offen
v_add_u32 v5, 8192, v5
buffer_load_dword v161, v5, s[{SRD_WS}:{SRD_WS+3}], s29 offen
v_add_u32 v5, 8192, v5
v_min_u32 v5, {171*128}, v5
buffer_load_dword v162, v5, s[{SRD_WS}:{SRD_WS+3}], s29 offen
{l3}:
""")
            tile(T_ & 1, (T_+1)*1024)
        a(f"s_branch {L('mdone')}")
        a.label(L('rloop0'))
        a(f"s_mov_b32 s{sSTG}, 0")
        a.label(L('rloop'))
        tile(0, 1024); tile(1, 2048)
        a(f"""
v_add_u32 v{vAK}, 2048, v{vAK}
v_add_u32 v{vAV}, 2048, v{vAV}
s_add_u32 s{sSTG}, s{sSTG}, 1
s_cmp_lt_u32 s{sSTG}, 16
s_cbranch_scc1 {L('rloop')}
""")
        a.label(L('mdone'))
        a(smf(O[1], V[1]+4, S[1]+8, vIDX))
        stamp(8)
        a(f"""
s_cmp_lg_u32 s{sREDO}, 0
s_cbranch_scc1 {L('vote')}
""")
        a.nop(12)
        a(f"v_mul_f32 v{T}, 0, v{O[0]}")
        for t in range(2):
            for i in range(8):
                if t == 0 and i == 0: continue
                a(f"v_fma_f32 v{T}, v{O[t]+i}, 0, v{T}")
        a(f"""
v_max_f32 v{T+1}, v{O[0]+8}, v{O[1]+8}
v_add_f32 v{T+2}, v{O[0]+8}, v{O[1]+8}
v_add_f32 v{T+1}, v{T+1}, v{T}
v_mul_f32 v{T+2}, 0, v{T+2}
v_add_f32 v{T+1}, v{T+1}, v{T+2}
v_mov_b32 v{T+3}, 0x4e800000
v_mov_b32 v5, {FLAG}
v_cmp_nle_f32 vcc, v{T+1}, v{T+3}
v_mov_b32 v6, 1
s_nop 3
s_cmp_eq_u64 vcc, 0
s_cbranch_scc1 {L('vote')}
ds_write_b32 v5, v6
s_waitcnt lgkmcnt(0)
{L('vote')}:
""")
        if "cearly" not in opt: self.poll_check(7, 1)
        a(f"""
s_barrier
s_cmp_lg_u32 s{sREDO}, 0
s_cbranch_scc1 {L('redone')}
v_mov_b32 v5, {FLAG}
ds_read_b32 v6, v5
s_waitcnt lgkmcnt(0)
v_readfirstlane_b32 s29, v6
s_nop 3
s_cmp_eq_u32 s29, 0
s_cbranch_scc1 {L('ok')}
s_mov_b32 s{sREDO}, 1
""")
        a("s_waitcnt vmcnt(0)")
        a("s_barrier")
        self.kv_scalars()
        for st_ in range(4):
            a(f"s_mov_b32 m0, s{sDST}\ns_add_u32 s{sDST}, s{sDST}, 8192")
            for q in range(4):
                a(f"buffer_load_dwordx4 v{vL16}, s[{SRD_WS}:{SRD_WS+3}], s{sSRC} offen offset:{q*1024} sc1 lds")
            a(f"s_add_u32 s{sSRC}, s{sSRC}, 8192")
        a(f"""
s_waitcnt vmcnt(0)
s_barrier
s_branch {L('redo')}
{L('redone')}:
""")
        if "cearly" in opt:
            self.c_setup()
            lr = L('rc')
            a(f"s_cmp_eq_u32 s{sUH}, 0\ns_cbranch_scc1 {lr}")
            for st_ in range(3):
                for g_ in self.c_pieces(): a(g_)
            a(f"{lr}:")
        a(f"{L('ok')}:")
        def c_some(q0, q1):
            if "cearly" in opt: return
            l = a.newlabel(L("cp"))
            a(f"s_cmp_eq_u32 s{sUH}, 0\ns_cbranch_scc1 {l}")
            for g_ in self.c_pieces(q0, q1): a(g_)
            a(f"{l}:")
        a(f"""
s_cmp_eq_u32 s{sUH}, 0
s_cbranch_scc1 {L('noswap')}
""")
        for i in range(9): a(f"v_swap_b32 v{O[0]+i}, v{O[1]+i}")
        a(f"v_swap_b32 v{C[0]}, v{C[1]}")
        a.label(L('noswap'))
        a(f"""
s_mul_i32 s29, s{sW}, 2560
s_add_u32 s29, s29, {EX}
s_xor_b32 s30, s{sW}, 4
s_mul_i32 s30, s30, 2560
s_add_u32 s30, s30, {EX}
v_add_u32 v5, s29, v{vL16}
v_lshlrev_b32 v6, 3, v0
v_add_u32 v6, s29, v6
v_mov_b32 v{T}, v{O[1]+8}
v_mov_b32 v{T+1}, v{C[1]}
ds_write_b128 v5, {vr(O[1],4)}
ds_write_b128 v5, {vr(O[1]+4,4)} offset:1024
ds_write_b64 v6, {vr(T,2)} offset:2048
v_add_u32 v5, s30, v{vL16}
v_lshlrev_b32 v6, 3, v0
v_add_u32 v6, s30, v6
""")
        c_some(0, 4)
        a(f"""
s_waitcnt lgkmcnt(0)
s_barrier
ds_read_b64 {vr(T,2)}, v6 offset:2048
ds_read_b128 {vr(O[1],4)}, v5
ds_read_b128 {vr(O[1]+4,4)}, v5 offset:1024
""")
        c_some(4, 8)
        a(f"""
s_waitcnt lgkmcnt(2)
v_min_f32 v{T+2}, v{T+1}, v{C[0]}
v_sub_f32 v{T+3}, v{T+2}, v{C[0]}
v_sub_f32 v{T+4}, v{T+2}, v{T+1}
v_exp_f32 v{T+3}, v{T+3}
v_exp_f32 v{T+4}, v{T+4}
s_nop 0
v_mul_f32 v{T+5}, v{T+3}, v{O[0]+8}
v_fma_f32 v{T+5}, v{T+4}, v{T}, v{T+5}
v_rcp_f32 v{T+5}, v{T+5}
s_nop 0
v_mul_f32 v{T+3}, v{T+3}, v{T+5}
v_mul_f32 v{T+4}, v{T+4}, v{T+5}
s_waitcnt lgkmcnt(0)
""")
        for i in range(8): a(f"v_mul_f32 v{O[0]+i}, v{O[0]+i}, v{T+3}")
        for i in range(8): a(f"v_fma_f32 v{O[0]+i}, v{O[1]+i}, v{T+4}, v{O[0]+i}")
        for i in range(4): a(f"v_cvt_pk_bf16_f32 v{T+8+i}, v{O[0]+2*i}, v{O[0]+2*i+1}")
        a(f"""
s_add_u32 s29, s{sTB0}, s{sUH}
s_lshl_b32 s29, s29, 5
s_add_u32 s29, s29, s{sHD}
s_lshl_b32 s29, s29, 10
s_add_u32 s29, s29, {OF}
buffer_store_dwordx4 {vr(T+8,4)}, v{vL16}, s[{SRD_WS}:{SRD_WS+3}], s29 offen sc1
""")
        stamp(9)

    cSRC, cA, cW = 224, 225, 226
    SRD_C = 4
    def c_setup(self):
        a = self.a; L = self.L
        vS_ = self.cSRC; C4 = self.SRD_C
        a(f"""
v_lshrrev_b32 v165, 3, v0
v_lshrrev_b32 v166, 4, v0
v_and_b32 v166, 1, v166
v_lshlrev_b32 v166, 2, v166
v_and_b32 v167, 7, v0
v_xor_b32 v166, v166, v167
v_lshlrev_b32 v166, 4, v166
v_lshl_add_u32 v{vS_}, v165, 10, v166
s_lshl_b32 s29, s{sCB}, 7
v_add_u32 v{vS_}, s29, v{vS_}
s_mov_b32 s{SRD_WF}, s{pOUT}
s_mov_b32 s{SRD_WF+1}, s{pOUT+1}
s_mov_b32 s{SRD_WF+2}, {2048*1024}
s_mov_b32 s{C4}, s{pW2}
s_mov_b32 s{C4+1}, s{pW2+1}
s_mov_b32 s{C4+2}, {1376*1024}
s_mov_b32 s{C4+3}, 0x20000
s_lshr_b32 s29, s{sTB}, 1
s_lshl_b32 s30, s{sRB64}, 1
s_add_u32 s30, s30, s29
s_mul_i32 s31, s30, 86
s_and_b32 s32, s{sTB}, 1
s_lshl_b32 s32, s32, 2
s_add_u32 s31, s31, s32
s_lshl_b32 s31, s31, 10
s_add_u32 s{sAOFF}, s31, {HF}
s_lshl_b32 s30, s30, 5
s_add_u32 s30, s30, s32
s_lshl_b32 s30, s30, 10
s_add_u32 s{sALT}, s30, {OF}
s_lshl_b32 s29, s29, 15
s_lshl_b32 s32, s32, 10
s_add_u32 s{sLOFF}, s29, s32
s_add_u32 s{sWL}, s{sLOFF}, 65536
s_lshl_b32 s{sWOFF}, s{sTB}, 15
s_mov_b32 s{sISS}, 0
""")
    def c_pieces(self, q0=0, q1=8):
        a = self.a; L = self.L; vS_ = self.cSRC; C4 = self.SRD_C
        out = []
        for q in range(q0, q1):
            t = ""
            if q == 0:
                lns = a.newlabel(L('ns'))
                t += f"""s_cmp_lg_u32 s{sISS}, 11
s_cbranch_scc1 {lns}
s_mov_b32 s{sAOFF}, s{sALT}
s_lshl_b32 s{sWOFF}, s{sTB}, 15
s_mov_b32 s{C4}, s{pWO}
s_mov_b32 s{C4+1}, s{pWO+1}
s_mov_b32 s{C4+2}, {512*1024}
{lns}:
s_cmp_eq_u32 s{sISS}, 10
s_cselect_b32 s{sA2}, s{sTB}, 0
s_and_b32 s{sA2}, s{sA2}, 1
s_lshl_b32 s{sA2}, s{sA2}, 11
s_sub_u32 s{sA2}, s{sAOFF}, s{sA2}
s_and_b32 s{sTMP}, s{sISS}, 3
s_lshl_b32 s{sTMP}, s{sTMP}, 13
s_add_u32 m0, s{sTMP}, s{sLOFF}
s_add_u32 s{sISS}, s{sISS}, 1
"""
            if q < 4:
                t += f"buffer_load_dwordx4 v{vL16}, s[{SRD_WS}:{SRD_WS+3}], s{sAOFF if q < 2 else sA2} offen offset:{q*1024} sc1 lds"
                if q == 3: t += f"\ns_add_u32 s{sAOFF}, s{sAOFF}, 8192\ns_add_u32 s{sTMP}, s{sTMP}, s{sWL}"
            else:
                t += f"s_mov_b32 m0, s{sTMP}\ns_add_u32 s{sTMP}, s{sTMP}, 1024\n"
                t += f"buffer_load_dwordx4 v{vS_}, s[{C4}:{C4+3}], s{sWOFF} offen lds\n"
                t += f"s_add_u32 s{sWOFF}, s{sWOFF}, {8192 if q < 7 else 8192 + 96*1024}"
            out.append(t)
        return out

    def pst(self):
        if "pst" in self.opt:
            a = self.a
            for slot, stg in enumerate(((0,11) if "pst2" in self.opt else (0,2,4,7,8,10,13)), 1):
                l = a.newlabel(self.L("ps"))
                a(f"s_cmp_lg_u32 s{sCST}, {stg}\ns_cbranch_scc1 {l}")
                a(f"s_memtime s[{70+2*slot}:{71+2*slot}]")
                a(f"{l}:")
    def phaseC(self):
        a = self.a; L = self.L; stamp = self.stamp
        vA, vW = self.cA, self.cW
        vA0, vW0, vAn, vWn = 227, 228, 229, 230
        ACCc = 16; AF = [32+4*i for i in range(8)]; WFr = [64+4*i for i in range(8)]; T = 96
        NST = 15
        a(f"s_cmp_eq_u32 s{sUH}, 0")
        a(f"s_cbranch_scc0 {L('cprod')}")
        a(f"""
s_lshr_b32 s29, s{sW}, 1
s_lshl_b32 s30, s{sRB64}, 1
s_add_u32 s30, s30, s29
s_lshl_b32 s30, s30, 15
s_and_b32 s31, s{sW}, 1
s_lshl_b32 s31, s31, 6
s_lshl_b32 s32, s{sCB}, 7
s_add_u32 s30, s30, s31
s_add_u32 s34, s30, s32
v_and_b32 v8, 31, v0
v_lshlrev_b32 v8, 10, v8
v_lshrrev_b32 v6, 5, v0
v_lshl_add_u32 v8, v6, 4, v8
buffer_load_dwordx4 v[{T}:{T+3}], v8, s[{SRD_X}:{SRD_X+3}], s34 offen
buffer_load_dwordx4 v[{T+4}:{T+7}], v8, s[{SRD_X}:{SRD_X+3}], s34 offen offset:32
s_lshl_b32 s29, s29, 15
v_add_u32 v{vA0}, s29, v{vL16}
v_lshrrev_b32 v5, 5, v0
v_lshlrev_b32 v5, 2, v5
v_bfe_u32 v6, v0, 2, 2
v_add_u32 v5, v5, v6
v_lshlrev_b32 v5, 7, v5
v_lshrrev_b32 v6, 1, v6
s_and_b32 s30, s{sW}, 1
v_xor_b32 v6, s30, v6
v_lshl_add_u32 v5, v6, 6, v5
v_bfe_u32 v6, v0, 4, 1
v_lshl_add_u32 v5, v6, 5, v5
v_and_b32 v6, 3, v0
v_lshl_add_u32 v5, v6, 3, v5
v_add_u32 v{vW0}, 65536, v5
v_mov_b32 v{vA}, v{vA0}
v_mov_b32 v{vW}, v{vW0}
s_lshr_b32 s29, s{sRB64}, 2
s_lshl_b32 s29, s29, 7
s_add_u32 s29, s29, {F3}
v_and_b32 v7, 31, v0
v_lshl_add_u32 v7, v7, 2, s29
""")
        for i in range(16): a(f"v_mov_b32 v{ACCc+i}, 0")
        def rd(j, ra, rw):
            a(f"ds_read_b128 {vr(AF[j],4)}, v{ra} offset:{j*1024}")
            a(f"ds_read_b64_tr_b16 {vr(WFr[j],2)}, v{rw} offset:{(j>>2)*32768+(j&3)*2048}")
            a(f"ds_read_b64_tr_b16 {vr(WFr[j]+2,2)}, v{rw} offset:{(j>>2)*32768+(j&3)*2048+1024}")
        a(f"s_mov_b32 s{sVER}, 0")
        a(f"s_mov_b32 s{sCST}, 0")
        a("s_barrier")
        for j in range(3): rd(j, vA, vW)
        a.label(L('cloop'))
        n1, n2, n3, n4 = L('c_n1'), L('c_n2'), L('c_n3'), L('c_n4')
        npoll, nchk = L('c_np'), L('c_nc')
        a(f"""
s_cmp_lg_u32 s{sCST}, 0
s_cbranch_scc1 {n4}
s_waitcnt vmcnt(2)
{n4}:
s_add_u32 s29, s{sCST}, 1
s_and_b32 s29, s29, 3
s_lshl_b32 s29, s29, 13
v_add_u32 v{vAn}, s29, v{vA0}
v_add_u32 v{vWn}, s29, v{vW0}
s_cmp_lg_u32 s{sW}, 0
s_cbranch_scc1 {n2}
s_cmp_eq_u32 s{sVER}, 1
s_cbranch_scc1 {n2}
s_cmp_lt_u32 s{sCST}, 3
s_cbranch_scc1 {n2}
s_cmp_eq_u32 s{sCST}, 3
s_cbranch_scc1 {npoll}
s_waitcnt vmcnt(0)
v_cmp_ne_u32 vcc, s{sTAG}, v{vPOLL}
s_nop 4
s_cmp_eq_u64 vcc, 0
s_cbranch_scc0 {nchk}
s_mov_b32 s{sVER}, 1
""")
        if self.stamps:
            self.stamp(12); a(f"s_mov_b32 s69, s{sCST}")
        a(f"""
s_branch {n2}
{nchk}:
s_cmp_lt_u32 s{sCST}, 8
s_cbranch_scc1 {npoll}
""")
        self.poll_check(7, 2)
        if self.stamps: a(f"s_add_u32 s69, s{sSPIN}, 100")
        a(f"""
s_mov_b32 s{sVER}, 1
s_branch {n2}
{npoll}:
global_load_dword v{vPOLL}, v7, s[{SRD_WS}:{SRD_WS+1}] sc1
{n2}:
s_barrier
s_cmp_lg_u32 s{sCST}, 0
s_cbranch_scc1 {n1}
s_lshl_b32 s29, s{sQB}, 7
s_lshl_b32 s30, s{sHD}, 2
s_add_u32 s29, s29, s30
s_add_u32 s29, s29, {F3}
""")
        self.signal(29)
        a(f"{n1}:")
        self.pst()
        if "cnocomp" not in self.opt:
            for j in range(8):
                a("s_waitcnt lgkmcnt(6)")
                a(mfma(ACCc, WFr[j], AF[j], ACCc))
                if j + 3 < 8: rd(j+3, vA, vW)
                else: rd(j-5, vAn, vWn)
        a(f"""
v_mov_b32 v{vA}, v{vAn}
v_mov_b32 v{vW}, v{vWn}
s_add_u32 s{sCST}, s{sCST}, 1
s_cmp_lt_u32 s{sCST}, {NST}
s_cbranch_scc1 {L('cloop')}
s_waitcnt lgkmcnt(0)
""")
        stamp(10)
        a("s_waitcnt vmcnt(0)")
        a.nop(9)
        for h_ in range(2):
            A_ = ACCc + 8*h_; Xr = T + 4*h_; U = T + 8
            for i in range(4): a(f"v_permlane32_swap_b32 v{A_+i}, v{A_+4+i}")
            for i in range(4):
                a(f"v_lshlrev_b32 v{U+2*i}, 16, v{Xr+i}")
                a(f"v_and_b32 v{U+2*i+1}, 0xffff0000, v{Xr+i}")
            for i in range(8): a(f"v_add_f32 v{A_+i}, v{A_+i}, v{U+i}")
            for i in range(4): a(f"v_cvt_pk_bf16_f32 v{Xr+i}, v{A_+2*i}, v{A_+2*i+1}")
            fl_ = "sc1" if "outsc1" in self.opt else ("nt" if "outnt" in self.opt else ("sc0 sc1" if "outsys" in self.opt else ""))
            a(f"buffer_store_dwordx4 v[{Xr}:{Xr+3}], v8, s[{SRD_WF}:{SRD_WF+3}], s34 offen offset:{32*h_} {fl_}")
        a(f"s_cmp_lg_u32 s2, 0")
        a(f"s_cbranch_scc1 {L('cdone')}")
        a(f"s_mov_b32 s29, {FW0}")
        self.signal(29)
        a(f"s_branch {L('cdone')}")
        a.label(L('cprod'))
        for g_ in self.c_pieces(): a(g_)
        a(f"s_mov_b32 s{sCST}, 0")
        a("s_waitcnt vmcnt(9)")
        a("s_barrier")
        for g_ in self.c_pieces(): a(g_)
        a.label(L('ploop'))
        a("s_waitcnt vmcnt(8)")
        a("s_barrier")
        self.pst()
        lskip = L('pskip')
        a(f"s_cmp_ge_u32 s{sISS}, {NST}\ns_cbranch_scc1 {lskip}")
        if "cnodma" in self.opt: a(f"s_add_u32 s{sISS}, s{sISS}, 1")
        else:
            for g_ in self.c_pieces(): a(g_)
        a(f"""
s_branch {L('pnext')}
{lskip}:
s_waitcnt vmcnt(0)
{L('pnext')}:
s_add_u32 s{sCST}, s{sCST}, 1
s_cmp_lt_u32 s{sCST}, {NST}
s_cbranch_scc1 {L('ploop')}
""")
        stamp(10)
        a.label(L('cdone'))

    def build(self):
        a = self.a; L = self.L
        self.prologue()
        a(f"s_cmp_eq_u32 s{sUH}, 0")
        a(f"s_cbranch_scc0 {L('uh1')}")
        self.phaseA(0)
        a(f"s_branch {L('join')}")
        a.label(L('uh1'))
        self.phaseA(1)
        a.label(L('join'))
        self.phaseB()
        self.phaseC()
        if self.stamps:
            a("s_waitcnt vmcnt(0)")
            self.stamp(11)
            a("s_memrealtime s[98:99]")
            a("s_waitcnt lgkmcnt(0)")
            for i in range(1,12): a(f"s_sub_u32 s{70+2*i}, s{70+2*i}, s70")
            a("s_sub_u32 s98, s98, s96")
            a("s_sub_u32 s94, s94, s70")
            a("s_mov_b32 s29, s96")
            a("s_mov_b32 s96, s94")
            a("s_mov_b32 s94, s29")
            a(f"""
s_lshl_b32 s29, s2, 3
s_add_u32 s29, s29, s{sW}
s_lshl_b32 s29, s29, 6
s_add_u32 s29, s29, 0xE00000
""")
            for i in range(1,12): a(f"v_mov_b32 v{7+i}, s{70+2*i}")
            a(f"""
v_mov_b32 v19, s98
v_mov_b32 v20, s96
v_mov_b32 v21, s94
v_mov_b32 v22, s69
v_mov_b32 v23, 0
v_mov_b32 v24, s29
s_mov_b64 exec, 1
global_store_dwordx4 v24, v[8:11], s[20:21]
global_store_dwordx4 v24, v[12:15], s[20:21] offset:16
global_store_dwordx4 v24, v[16:19], s[20:21] offset:32
global_store_dwordx4 v24, v[20:23], s[20:21] offset:48
""")
        a.label(L('bail'))
        a.label(L('end'))
        a("s_endpgm")
        return kernel_text(self.name, a.text(), vgpr=256, sgpr=100)

HDR = open("parallel_sum__mha_block__glu_gated_swiglu__prompt.s.ref").read().split("; Override launch geometry")[0]
def make(stamps=False, opt=(), name=KNAME):
    s = HDR + f"; @launch grid=(256,1,1) block=(512,1,1) lds={LDS_TOTAL}\n"
    s += '.amdgcn_target "amdgcn-amd-amdhsa--gfx950"\n'
    s += Gen(name, stamps, opt).build()
    return s
if __name__ == "__main__":
    open("pk.s","w").write(make())
```

```python
from asmlib import *
import struct
QF, KF, VF, HF, OF, WSEND = 0, 0x200000, 0x400000, 0x600000, 0xB60000, 0xD60000
SLOT = 28672
MISC = 131072
STAT = MISC
CSP  = MISC + 1024
VSCR = MISC + 4096
EX   = MISC
FLAG = MISC + 20480
LDS_TOTAL = MISC + 4096 + 4*6144
FL = 0xD60000
F1, F2, F3, FW0 = FL, FL + 4096, FL + 8192, FL + 12288
CQ_BITS = 0x3EB8AA3B
KNAME = "parallel_sum__mha_block__glu_gated_swiglu__prompt_kernel"

def mfma(d, a, b, c):
    cc = vr(c, 16) if c is not None else "0"
    return f"v_mfma_f32_32x32x16_bf16 {vr(d,16)}, {vr(a,4)}, {vr(b,4)}, {cc}"
def smf(d, a, b, idx):
    return f"v_smfmac_f32_32x32x32_bf16 {vr(d,16)}, {vr(a,4)}, {vr(b,8)}, v{idx}"
def mf4(d, a, b):
    return f"v_mfma_f32_4x4x4_16b_bf16 {vr(d,4)}, {vr(a,2)}, {vr(b,2)}, {vr(d,4)}"

SRD_X, SRD_WQ, SRD_WF, SRD_WS = 8, 12, 16, 20
SRD_W3 = 4
sW, sTB, sUH, sCS, sRB = 24, 25, 26, 27, 28
pOUT, pW2, pWO, pDBG = 36, 38, 40, 42
sXD, sWD, sFD, sFB, sTBG = 44, 45, 46, 47, 48
sHD, sQB, sSRC, sDST, sSTG, sREDO, sTB0 = 49, 50, 51, 52, 53, 54, 55
sMASK = 56
sRB64, sCB, sAOFF, sALT, sLOFF, sISS, sTMP, sCST = 58, 59, 60, 61, 62, 63, 64, 65
sSPIN = 66
sWOFF, sWL = 67, 68
sK0D, sK0S = 67, 68
sTAG = 3
sWB = 35
sVER = 42
sWM = 33
sA2 = 43
X = 8; ACC = 136; WF = 200; CSA = 216; SEL = 232
AW = 236; AX = 240; VX = 244; VW = 246; VFo = 232
vNM, vS, vR = 251, 252, 253
vPOLL = 254
vL16 = 255

class Gen:
    def __init__(self, name=KNAME, stamps=False, opt=(), prefix="L"):
        self.a = Asm(); self.name = name; self.stamps = stamps; self.opt = set(opt); self.prefix = prefix
    def L(self, s): return f"{self.prefix}_{s}"
    def stamp(self, i, c=False):
        if ("cst2" in self.opt or "cst3" in self.opt or "pst" in self.opt) and 1 <= i <= 7: return
        if "cstamps" in self.opt and (1 <= i <= 7) != c:
            if not (i == 0 or i >= 8): return
            if c: return
        if self.stamps: self.a(f"{'s_memrealtime' if 'rt' in self.opt else 's_memtime'} s[{70+2*i}:{71+2*i}]")

    def signal(self, off_sgpr):
        a = self.a; l = a.newlabel(self.L("sig"))
        a(f"""
s_cmp_lg_u32 s{sW}, 0
s_cbranch_scc1 {l}
v_mov_b32 v5, s{off_sgpr}
v_mov_b32 v6, s{sTAG}
s_mov_b64 exec, 1
global_store_dword v5, v6, s[{SRD_WS}:{SRD_WS+1}] sc1
s_mov_b64 exec, -1
{l}:
""")
    def poll_issue(self, vaddr):
        a = self.a; l = a.newlabel(self.L("pi"))
        a(f"""
s_cmp_lg_u32 s{sW}, 0
s_cbranch_scc1 {l}
global_load_dword v{vPOLL}, v{vaddr}, s[{SRD_WS}:{SRD_WS+1}] sc1
{l}:
""")
    def poll_check(self, vaddr, site=0, wait=True):
        a = self.a; ok = a.newlabel(self.L("pok")); sp = a.newlabel(self.L("psp")); bail = self.L("bail")
        a(f"""
s_cmp_lg_u32 s{sW}, 0
s_cbranch_scc1 {ok}
s_mov_b32 s{sSPIN}, 0
""")
        if wait is True: a("s_waitcnt vmcnt(0)")
        elif wait: a(f"s_waitcnt vmcnt({wait})")
        a(f"""
{sp}:
v_cmp_ne_u32 vcc, s{sTAG}, v{vPOLL}
s_nop 4
s_cmp_eq_u64 vcc, 0
s_cbranch_scc1 {ok}
s_add_u32 s{sSPIN}, s{sSPIN}, 1
s_cmp_gt_u32 s{sSPIN}, 0x8000
s_cbranch_scc1 {bail}
s_sleep 1
global_load_dword v{vPOLL}, v{vaddr}, s[{SRD_WS}:{SRD_WS+1}] sc1
s_waitcnt vmcnt(0)
s_branch {sp}
{ok}:
""")
        if self.stamps:
            if site == 2: self.stamp(12)

    def prologue(self):
        a = self.a; L = self.L
        a(f"""
s_cmp_ge_u32 s2, 256
s_cbranch_scc1 {L('end')}
s_load_dwordx4 s[4:7], s[0:1], 0
s_load_dwordx4 s[60:63], s[0:1], 32
s_load_dwordx2 s[{pW2}:{pW2+1}], s[0:1], 48
s_load_dwordx2 s[{pWO}:{pWO+1}], s[0:1], 16
s_load_dwordx4 s[64:67], s[0:1], 56
s_load_dwordx2 s[68:69], s[0:1], 72
""")
        if self.stamps:
            a(f"{'s_memrealtime' if 'rt' in self.opt else 's_memtime'} s[70:71]")
            a("s_memrealtime s[96:97]")
        a(f"""
v_lshrrev_b32 v1, 6, v0
v_and_b32 v0, 63, v0
s_and_b32 s29, s2, 7
v_readfirstlane_b32 s{sW}, v1
s_lshr_b32 s30, s2, 3
s_and_b32 s31, s29, 1
s_lshl_b32 s31, s31, 3
s_and_b32 s32, s30, 7
s_add_u32 s{sRB}, s31, s32
s_lshr_b32 s31, s29, 1
s_lshl_b32 s31, s31, 2
s_lshr_b32 s33, s30, 3
s_add_u32 s{sCS}, s31, s33
s_lshl_b32 s31, s29, 2
s_add_u32 s{sHD}, s31, s33
s_mov_b32 s{sQB}, s32
s_mov_b32 s{sRB64}, s{sHD}
s_mov_b32 s{sCB}, s32
v_lshlrev_b32 v{vL16}, 4, v0
v_mov_b32 v7, 0
s_and_b32 s{sTB}, s{sW}, 3
s_lshr_b32 s{sUH}, s{sW}, 2
s_lshl_b32 s{sTBG}, s{sRB}, 2
s_add_u32 s{sTBG}, s{sTBG}, s{sTB}
""")
        a(f"""
v_lshrrev_b32 v1, 3, v0
s_lshl_b32 s29, s{sRB}, 7
s_lshl_b32 s30, s{sTB}, 5
s_add_u32 s29, s29, s30
v_add_u32 v1, s29, v1
v_lshlrev_b32 v1, 10, v1
v_lshrrev_b32 v2, 4, v0
v_and_b32 v3, 7, v0
v_xor_b32 v4, v2, v3
v_lshl_add_u32 v{VX}, v4, 4, v1
v_xor_b32 v4, 4, v4
v_lshl_add_u32 v{VX+1}, v4, 4, v1
v_add_u32 v{VX+1}, 8192, v{VX+1}
s_mul_i32 s31, s{sCS}, 192
s_mul_i32 s29, s{sTB}, {16*3072}
s_add_u32 s{sWB}, s29, s31
s_mov_b32 s32, 43691
s_movk_i32 s33, 3072
""")
        for q in range(3):
            a(f"""
v_add_u32 v1, {64*q}, v0
v_mul_u32_u24 v2, s32, v1
v_lshrrev_b32 v2, 19, v2
v_mul_u32_u24 v3, 12, v2
v_sub_u32 v3, v1, v3
v_mul_u32_u24 v2, s33, v2
v_lshl_add_u32 v{VW+q}, v3, 4, v2
""")
        a(f"""
s_mul_i32 s30, s{sTB}, 3072
s_add_u32 s{sWD}, s30, 16384
s_lshl_b32 s{sXD}, s{sTB}, 12
s_waitcnt lgkmcnt(0)
s_mov_b32 s{SRD_X}, s4
s_mov_b32 s{SRD_X+1}, s5
s_mov_b32 s{SRD_X+2}, {2048*1024}
s_mov_b32 s{SRD_X+3}, 0x20000
s_mov_b32 s{SRD_WQ}, s6
s_mov_b32 s{SRD_WQ+1}, s7
s_mov_b32 s{SRD_WQ+2}, {512*3072}
s_mov_b32 s{SRD_WQ+3}, 0x20000
s_mov_b32 s{SRD_WF}, s60
s_mov_b32 s{SRD_WF+1}, s61
s_mov_b32 s{SRD_WF+2}, {512*2752}
s_mov_b32 s{SRD_WF+3}, 0x20000
s_mov_b32 s{SRD_WS}, s68
s_mov_b32 s{SRD_WS+1}, s69
s_mov_b32 s{SRD_WS+2}, {WSEND}
s_mov_b32 s{SRD_WS+3}, 0x20000
s_mov_b32 s{pOUT}, s64
s_mov_b32 s{pOUT+1}, s65
s_mov_b32 s{sVER}, 0
s_add_u32 s30, s68, {FW0}
s_addc_u32 s31, s69, 0
s_load_dword s{sTAG}, s[30:31], 0
s_mov_b32 s{SRD_W3}, s62
s_mov_b32 s{SRD_W3+1}, s63
s_mov_b32 s{SRD_W3+2}, {512*2752}
s_mov_b32 s{SRD_W3+3}, 0x20000
""")

    def prologue2(self):
        a = self.a
        a(f"s_movk_i32 s33, 2752")
        a(f"s_mov_b32 s32, 43691")
        for q in range(3):
            a(f"""
v_add_u32 v1, {64*q}, v0
v_mul_u32_u24 v2, s32, v1
v_lshrrev_b32 v2, 19, v2
v_mul_u32_u24 v3, 12, v2
v_sub_u32 v3, v1, v3
""")
            if "f16" in self.opt or "f16all" in self.opt:
                a("v_bfe_u32 v4, v2, 3, 1\nv_lshlrev_b32 v4, 1, v4")
                if "f16all" not in self.opt:
                    a("v_cmp_gt_u32 vcc, 8, v3\ns_nop 1\nv_cndmask_b32 v4, 0, v4, vcc")
                a("v_xor_b32 v4, v4, v3")
            else: a("v_mov_b32 v4, v3")
            a(f"""
v_mul_u32_u24 v2, s33, v2
v_lshl_add_u32 v{VFo+q}, v4, 4, v2
""")
            if "nozero" not in self.opt:
                a(f"""
v_lshrrev_b32 v3, 2, v3
s_mul_i32 s29, s{sCS}, 3
v_add_u32 v3, s29, v3
v_cmp_lt_u32 vcc, 42, v3
v_mov_b32 v2, 0x7ff00000
s_nop 0
v_cndmask_b32 v{VFo+q}, v{VFo+q}, v2, vcc
""")
        a(f"""
s_mul_i32 s31, s{sCS}, 192
s_mul_i32 s{sFD}, s{sTB}, 3072
s_mul_i32 s29, s{sTB}, {16*2752}
s_add_u32 s{sFB}, s29, s31
v_and_b32 v1, 31, v0
v_lshrrev_b32 v2, 5, v0
s_lshl_b32 s29, s{sTB}, 5
v_add_u32 v3, s29, v1
v_lshlrev_b32 v3, 7, v3
v_lshlrev_b32 v4, 2, v2
v_or_b32 v4, s{sTB}, v4
v_bfe_u32 v5, v1, 1, 3
v_xor_b32 v4, v4, v5
v_lshl_add_u32 v{AX}, v4, 4, v3
v_xor_b32 v{AX+1}, 16, v{AX}
v_xor_b32 v{AX+2}, 32, v{AX}
v_xor_b32 v{AX+3}, 48, v{AX}
v_lshlrev_b32 v3, 5, v2
v_bfe_u32 v4, v0, 2, 2
v_add_u32 v3, v3, v4
v_mul_u32_u24 v3, 0xc0, v3
v_bfe_u32 v4, v0, 4, 1
v_lshl_add_u32 v3, v4, 5, v3
v_and_b32 v4, 3, v0
v_lshl_add_u32 v3, v4, 3, v3
""")
        for j in range(4):
            a(f"s_xor_b32 s29, s{sTB}, {j}")
            a(f"s_mul_i32 s29, s29, 1536")
            a(f"v_add_u32 v{AW+j}, s29, v3")

    def mall_prefetch(self, which):
        a = self.a; L = self.L
        def one(tb, srd, n, glob=False):
            l = a.newlabel(L("mpf"))
            t = f"s_cmp_lg_u32 s{sTB}, {tb}\ns_cbranch_scc1 {l}\n"
            t += f"s_mul_i32 s29, s2, {n}\nv_add_u32 v1, s29, v0\nv_lshlrev_b32 v1, 7, v1\n"
            if n < 64: t += f"s_mov_b32 s30, {hex((1 << min(n,32)) - 1)}\ns_mov_b32 s31, {hex((1 << max(n-32,0)) - 1)}\ns_mov_b64 exec, s[30:31]\n"
            if glob: t += f"global_load_dword v250, v1, s[{srd}:{srd+1}]\n"
            else: t += f"buffer_load_dword v250, v1, s[{srd}:{srd+3}], 0 offen {'nt' if 'pnt' in self.opt else ''}\n"
            t += f"s_mov_b64 exec, -1\n{l}:"
            a(t)
        if "x" in which: one(0, SRD_X, 64); one(1, SRD_WQ, 48)
        if "f" in which: one(2, SRD_WF, 43); one(3, SRD_W3, 43)

    def code_prefetch(self):
        a = self.a; L = self.L
        l, here = a.newlabel(L("cpf")), a.newlabel(L("here"))
        a(f"""
s_cmp_lg_u32 s{sTB}, 2
s_cbranch_scc1 {l}
s_getpc_b64 s[30:31]
{here}:
s_sub_u32 s30, s30, {here}-{self.name}
s_subb_u32 s31, s31, 0
s_lshr_b32 s29, s2, 3
s_mul_i32 s29, s29, 10
v_add_u32 v1, s29, v0
v_min_u32 v1, ({L('end')}-{self.name})/128, v1
v_lshlrev_b32 v1, 7, v1
s_mov_b64 exec, 0x3ff
global_load_dword v250, v1, s[30:31]
s_mov_b64 exec, -1
{l}:
""")

    def l2_pf_qkv(self):
        a = self.a; D = 250
        l3, ld = a.newlabel(self.L("pf3")), a.newlabel(self.L("pfd"))
        a(f"""
s_cmp_eq_u32 s{sTB}, 3
s_cbranch_scc1 {l3}
s_and_b32 s29, s{sCS}, 3
s_lshl_b32 s29, s29, 5
s_lshl_b32 s30, s{sRB}, 7
s_add_u32 s29, s29, s30
v_and_b32 v1, 31, v0
v_add_u32 v1, s29, v1
v_lshlrev_b32 v1, 10, v1
v_lshrrev_b32 v2, 5, v0
s_lshl_b32 s30, s{sTB}, 1
s_add_u32 s30, s30, 3
v_add_u32 v2, s30, v2
v_min_u32 v2, 7, v2
v_lshl_add_u32 v1, v2, 7, v1
buffer_load_dword v{D}, v1, s[{SRD_X}:{SRD_X+3}], 0 offen
s_branch {ld}
{l3}:
s_and_b32 s29, s{sRB}, 7
s_mul_i32 s29, s29, 40
s_add_u32 s29, s29, 192
v_lshrrev_b32 v1, 1, v0
v_add_u32 v1, s29, v1
s_movk_i32 s30, 3072
v_mul_lo_u32 v1, s30, v1
v_and_b32 v2, 1, v0
v_lshl_add_u32 v1, v2, 7, v1
s_mul_i32 s30, s{sCS}, 192
buffer_load_dword v{D}, v1, s[{SRD_WQ}:{SRD_WQ+3}], s30 offen
v_add_u32 v1, {32*3072}, v1
s_mov_b32 exec_hi, 0
s_mov_b32 exec_lo, 0xffff
buffer_load_dword v{D}, v1, s[{SRD_WQ}:{SRD_WQ+3}], s30 offen
s_mov_b64 exec, -1
{ld}:
""")
    def l2_pf_ffn(self):
        a = self.a; D = 250
        a(f"""
s_and_b32 s29, s{sRB}, 7
s_lshl_b32 s29, s29, 6
s_lshl_b32 s30, s{sTB}, 4
s_add_u32 s29, s29, s30
v_bfe_u32 v1, v0, 1, 4
v_add_u32 v1, s29, v1
s_movk_i32 s30, 2752
v_mul_lo_u32 v1, s30, v1
v_and_b32 v2, 1, v0
v_lshl_add_u32 v1, v2, 7, v1
s_mul_i32 s30, s{sCS}, 192
s_mov_b32 exec_hi, 0
buffer_load_dword v{D}, v1, s[{SRD_WF}:{SRD_WF+3}], s30 offen
buffer_load_dword v{D}, v1, s[{SRD_W3}:{SRD_W3+3}], s30 offen
s_mov_b64 exec, -1
""")

    def phaseA(self, uh):
        a = self.a; L = self.L; opt = self.opt; stamp = self.stamp
        lg, vm = a.lg, a.vm
        lg.reset(); vm.reset()
        P = f"u{uh}"
        CS = CSA
        CT = CSA + 8
        def dma_pieces(gs):
            if gs > 15 or ("nodma" in opt and gs >= 3): return []
            sb = (gs % 4) * SLOT
            out = []
            def piece(m0base, m0off, static_soff, sreg_base, vreg, srd):
                def f():
                    a(f"s_add_u32 m0, s{m0base}, {m0off}")
                    if sreg_base is None: a(f"s_mov_b32 s29, {static_soff}")
                    else: a(f"s_add_u32 s29, s{sreg_base}, {static_soff}")
                    a(f"buffer_load_dwordx4 v{vreg}, s[{srd}:{srd+3}], s29 offen {'nt ' if ('ant' in opt or ('antq' in opt and gs < 8) or ('antf' in opt and gs >= 8)) else ''}lds"); vm.issue(f"d{gs}")
                return f
            if uh == 0: return []
            if gs < 8:
                c = gs
                xs = [piece(sXD, sb+q2*2048+p*1024, c*128+q2*16384, None, VX+p, SRD_X) for q2 in range(2) for p in range(2)]
                ws = [piece(sWD, sb+q*1024, c*64*3072, sWB, VW+q, SRD_WQ) for q in range(3)]
                out = [xs[0], ws[0], xs[1], ws[1], xs[2], ws[2], xs[3]]
            else:
                f_ = gs - 8
                for q in range(3):
                    out.append(piece(sFD, sb+q*1024, f_*64*2752, sFB, VFo+q, SRD_WF))
                    out.append(piece(sFD, sb+12288+q*1024, f_*64*2752, sFB, VFo+q, SRD_W3))
            return out
        pending = []
        def dma(gs):
            for p in dma_pieces(gs): p()
        def dma_one():
            if pending: pending.pop(0)()
        def xreg(ks): return X + 4*ks
        f16 = ("f16" in opt and uh == 0) or "f16all" in opt
        def xconv(u, part=None):
            r0 = xreg(2*u)
            for i in (range(4) if part is None else part): a(f"v_permlane16_swap_b32 v{r0+i}, v{r0+4+i}")
        def bump(reg, gs):
            if gs % 4 == 1: a(f"v_add_u32 v{reg}, {2*SLOT}, v{reg}")
            if gs % 4 == 3: a(f"v_subrev_u32 v{reg}, {2*SLOT}, v{reg}")
        def wread(dst, gs, j, off, tag):
            imm = (gs & 1)*SLOT + off
            a(f"ds_read_b64_tr_b16 {vr(dst,2)}, v{AW+j} offset:{imm}"); lg.issue(tag)
            a(f"ds_read_b64_tr_b16 {vr(dst+2,2)}, v{AW+j} offset:{imm+768}"); lg.issue(tag)
        SELR = CSA + 12 if uh == 0 else ACC + 48
        def sel_init(r):
            a(f"""
v_and_b32 v1, 15, v0
v_bfe_u32 v2, v0, 4, 1
v_cmp_eq_u32 vcc, v1, v2
v_mov_b32 v3, 0x3f803f80
s_nop 0
v_cndmask_b32 v{r}, 0, v3, vcc
v_mov_b32 v{r+1}, v{r}
v_mov_b32 v{r+2}, v{r}
v_mov_b32 v{r+3}, v{r}
""")
        def sel(t, frag, selr):
            if "nocs" in opt: return
            a(f"v_mfma_f32_16x16x32_bf16 {vr(CS+4*t,4)}, {vr(selr,4)}, {vr(frag,4)}, {vr(CS+4*t,4)}")
        def midbar(gs):
            vm.wait(f"d{gs+1}")
            if gs == 10: vm.wait("st")
            if "nobar" not in opt: a("s_barrier")
            if gs == 10:
                a(f"s_lshl_b32 s29, s{sCS}, 7")
                a(f"s_lshl_b32 s30, s{sRB}, 2")
                a(f"s_add_u32 s29, s29, s30")
                a(f"s_add_u32 s29, s29, {F1}")
                self.signal(29)
            assert not pending
            pending.extend(dma_pieces(gs+3))
            if gs == 14 and uh == 0 and "nokvpf" not in opt:
                l = a.newlabel(L("kvpf"))
                a(f"""
s_cmp_lg_u32 s{sW}, 0
s_cbranch_scc1 {l}
s_waitcnt vmcnt(0)
v_cmp_ne_u32 vcc, s{sTAG}, v{vPOLL}
s_nop 4
s_cmp_eq_u64 vcc, 0
s_cbranch_scc0 {l}
s_lshl_b32 s29, s{sHD}, 16
s_lshl_b32 s30, s{sQB}, 13
s_add_u32 s29, s29, s30
v_lshlrev_b32 v1, 7, v0
buffer_load_dword v244, v1, s[{SRD_WS}:{SRD_WS+3}], s29 offen
s_add_u32 s29, s29, {KF}
buffer_load_dword v245, v1, s[{SRD_WS}:{SRD_WS+3}], s29 offen
s_add_u32 s29, s29, {VF-KF}
buffer_load_dword v246, v1, s[{SRD_WS}:{SRD_WS+3}], s29 offen
s_mov_b32 s{sVER}, 1
{l}:
""")
            if gs == 12 and uh == 0:
                a(f"""
s_lshr_b32 s29, s{sHD}, 1
v_and_b32 v1, 48, v0
v_min_u32 v1, 32, v1
v_add_u32 v1, s29, v1
v_mul_u32_u24 v1, 0x5556, v1
v_lshrrev_b32 v1, 16, v1
v_lshlrev_b32 v1, 7, v1
v_and_b32 v7, 15, v0
v_lshl_add_u32 v7, v7, 2, v1
v_add_u32 v7, {F1}, v7
""")
                self.poll_issue(7)
        def csp_write(tiles, t0):
            a(f"v_lshlrev_b32 v1, 4, v0")
            a(f"s_lshl_b32 s29, s{sTB}, 2")
            a(f"s_add_u32 s29, s29, {CSP + t0*512}")
            a(f"v_add_u32 v1, s29, v1")
            a("s_mov_b64 exec, 0xffff")
            for t in range(tiles):
                a(f"ds_write_b32 v1, v{CS+4*t} offset:{t*512}"); lg.issue("csp")
                a(f"ds_write_b32 v1, v{CS+4*t+1} offset:{t*512+256}"); lg.issue("csp")
            a("s_mov_b64 exec, -1")

        S2, S2b, S1, S1b, ONES = ACC+48, ACC+52, ACC+56, ACC+60, 248
        sHI = 34
        for gs in range(3): dma(gs)
        if uh == 0 and "tlb" in opt:
            a(f"""
v_and_b32 v1, 1, v0
v_lshlrev_b32 v1, 20, v1
s_mov_b64 exec, 3
buffer_load_dword v250, v1, s[{SRD_WF}:{SRD_WF+3}], 0 offen
buffer_load_dword v250, v1, s[{SRD_W3}:{SRD_W3+3}], 0 offen
global_load_dword v250, v1, s[{pW2}:{pW2+1}]
s_mov_b64 exec, 1
global_load_dword v250, v1, s[{pWO}:{pWO+1}]
global_load_dword v250, v1, s[{pOUT}:{pOUT+1}]
s_mov_b64 exec, -1
""")
        if uh == 0 and "nompx" not in opt and "mpx1" not in opt: self.mall_prefetch("x")
        if uh == 0 and "nocode" not in opt: self.code_prefetch()
        self.prologue2()
        a(f"s_mov_b32 s{sHI}, 0xffff0000")
        if uh == 0:
            for i in range(64): a(f"v_mov_b32 v{ACC+i}, 0")
            for i in range(12): a(f"v_mov_b32 v{CS+i}, 0")
            for i in range(2): a(f"v_mov_b32 v{ONES+i}, 0x3f803f80")
            sel_init(SELR)
        a(f"""
s_waitcnt lgkmcnt(0)
s_mul_i32 s{sTAG}, s{sTAG}, 0x9E3779B1
s_add_u32 s{sTAG}, s{sTAG}, 0x7F4A7C15
""")
        vm.wait("d0")
        a("s_barrier")
        stamp(1)
        def xread(ks):
            c, j = ks >> 2, ks & 3
            a(f"ds_read_b128 {vr(xreg(ks),4)}, v{AX+j} offset:{(c&1)*SLOT}"); lg.issue(f"x{ks}")
            bump(AX+j, c)
        if uh == 1:
            for ks in range(32):
                c, j = ks >> 2, ks & 3
                if j == 2:
                    if c > 0: lg.wait(f"x{4*c-1}")
                    midbar(c)
                xread(ks)
                dma_one(); dma_one()
            while pending: dma_one()
            stamp(2)
            a("s_waitcnt lgkmcnt(0)"); lg.reset()
            if f16:
                for u in range(8): xconv(u)
            a("s_barrier")
            if f16:
                for u in range(8, 16): xconv(u)
            else:
                a(f"""
v_and_b32 v1, 31, v0
s_lshl_b32 s29, s{sTB}, 5
v_add_u32 v1, s29, v1
v_lshlrev_b32 v1, 3, v1
v_add_u32 v1, {STAT}, v1
ds_read_b64 v[2:3], v1
v_cmp_gt_u32 vcc, 32, v0
s_waitcnt lgkmcnt(0)
v_mov_b32 v{vS}, v3
v_rcp_f32 v{vR}, v3
v_cndmask_b32 v{vNM}, 0, v2, vcc
""")
        else:
            QS = [[WF, WF+4, WF+8], [WF+12, SEL, 244]]
            def qread(ks, part):
                c, j = ks >> 2, ks & 3
                if part == 0: xread(ks)
                wread(QS[ks & 1][part], c, j, 16384 + part*64, f"w{ks}_{part}")
                if part == 2: bump(AW+j, c)
            for p_ in range(3): qread(0, p_)
            if "mpx1" in opt: self.mall_prefetch("x")
            if "pf" in opt: self.l2_pf_qkv()
            for ks in range(32):
                c, j = ks >> 2, ks & 3
                if ks == 8 and ("pf" in opt or "pff" in opt): self.l2_pf_ffn()
                if ks == (8 if "mf8" in opt else 4) and "nomf" not in opt: self.mall_prefetch("f")
                if j == 3: midbar(c)
                fr = QS[ks & 1]; xr = xreg(ks)
                for t in range(3):
                    lg.wait(f"x{ks}", f"w{ks}_{t}")
                    a(mfma(ACC+16*t, fr[t], xr, ACC+16*t))
                    if ks + 1 < 32: qread(ks+1, t)
                if j < 3: sel(j, fr[j], SELR)
                if f16 and c > 0: xconv(2*(c-1) + (j >> 1), (0, 1) if (j & 1) == 0 else (2, 3))
                if j == 3 and "nomf4" not in opt:
                    for q in range(4):
                        x4 = xreg(4*c+q)
                        a(mf4(S2, x4, x4)); a(mf4(S1, x4, ONES)); a(mf4(S2b, x4+2, x4+2)); a(mf4(S1b, x4+2, ONES))
            if f16: xconv(14); xconv(15)
            else: a.nop(2)
            csp_write(3, 0)
            if "pfdummy" in opt: pass
            stamp(2)
            T = WF
            a.nop(4)
            for i in range(4):
                a(f"v_add_f32 v{S2+i}, v{S2+i}, v{S2b+i}")
                a(f"v_add_f32 v{S1+i}, v{S1+i}, v{S1b+i}")
            a(f"""
v_and_b32 v1, 3, v0
v_cmp_eq_u32 vcc, 1, v1
v_cmp_eq_u32 s[30:31], 2, v1
v_cmp_eq_u32 s[32:33], 3, v1
s_nop 1
v_cndmask_b32 v{S2}, v{S2}, v{S2+1}, vcc
v_cndmask_b32 v{S1}, v{S1}, v{S1+1}, vcc
v_cndmask_b32 v{S2}, v{S2}, v{S2+2}, s[30:31]
v_cndmask_b32 v{S1}, v{S1}, v{S1+2}, s[30:31]
v_cndmask_b32 v{S2}, v{S2}, v{S2+3}, s[32:33]
v_cndmask_b32 v{S1}, v{S1}, v{S1+3}, s[32:33]
v_and_b32 v1, 31, v0
s_lshl_b32 s29, s{sTB}, 5
v_mov_b32 v{S1+1}, v{S1}
v_mov_b32 v{S2+1}, v{S2}
v_add_u32 v1, s29, v1
v_lshlrev_b32 v1, 3, v1
v_permlane32_swap_b32 v{S1}, v{S1+1}
v_permlane32_swap_b32 v{S2}, v{S2+1}
v_add_u32 v1, {STAT}, v1
s_nop 0
v_add_f32 v{S1}, v{S1}, v{S1+1}
v_add_f32 v{S2}, v{S2}, v{S2+1}
v_mul_f32 v{S1}, 0x3b000000, v{S1}
v_mul_f32 v{S2}, 0x3b000000, v{S2}
v_fma_f32 v{S2}, -v{S1}, v{S1}, v{S2}
v_max_f32 v{S2}, 0, v{S2}
v_cvt_pk_bf16_f32 v{T}, v{S1}, v{S1}
v_cvt_pk_bf16_f32 v{T+1}, v{S2}, v{S2}
v_xor_b32 v{T}, 0x80008000, v{T}
v_lshlrev_b32 v{T+1}, 16, v{T+1}
v_add_f32 v{T+1}, 0x3727c5ac, v{T+1}
v_cvt_pk_bf16_f32 v{T+1}, v{T+1}, v{T+1}
v_lshlrev_b32 v{T+1}, 16, v{T+1}
v_sqrt_f32 v{T+1}, v{T+1}
v_cmp_gt_u32 vcc, 32, v0
v_cvt_pk_bf16_f32 v{T+1}, v{T+1}, v{T+1}
v_lshlrev_b32 v{T+1}, 16, v{T+1}
s_mov_b32 exec_hi, 0
ds_write_b64 v1, {vr(T,2)}
s_mov_b64 exec, -1
v_mov_b32 v{vS}, v{T+1}
v_rcp_f32 v{vR}, v{T+1}
v_cndmask_b32 v{vNM}, 0, v{T}, vcc
v_and_b32 v4, 31, v0
v_lshlrev_b32 v4, 4, v4
v_add_u32 v4, {CSP}, v4
""")
            a("s_waitcnt lgkmcnt(0)"); lg.reset()
            a("s_barrier")
        def rank1(tiles, t0, accs, frs, xn):
            for t in range(tiles):
                a(f"ds_read_b128 {vr(frs[t],4)}, v4 offset:{(t0+t)*512}")
            a(f"""
v_mov_b32 v{xn+1}, 0
v_mov_b32 v{xn+2}, 0
v_mov_b32 v{xn+3}, 0
v_mov_b32 v{xn}, v{vNM}
""")
            for t in range(tiles):
                f = frs[t]
                a(f"s_waitcnt lgkmcnt({tiles-1-t})")
                a(f"v_add_f32 v{f}, v{f}, v{f+1}")
                a(f"v_add_f32 v{f+2}, v{f+2}, v{f+3}")
                a(f"v_mov_b32 v{f+3}, 0")
                a(f"v_add_f32 v{f}, v{f}, v{f+2}")
                a(f"v_cvt_pk_bf16_f32 v{f+1}, v{f}, v{f}")
                a(f"v_lshlrev_b32 v{f+1}, 16, v{f+1}")
                a(f"v_sub_f32 v{f+2}, v{f}, v{f+1}")
                a(f"v_cvt_pk_bf16_f32 v{f}, v{f+1}, v{f+2}")
                a(f"v_mov_b32 v{f+1}, 0")
                a(f"v_mov_b32 v{f+2}, 0")
                a("s_nop 1")
                a(mfma(accs[t], frs[t], xn, accs[t]))
        if uh == 0:
            rank1(3, 0, [ACC, ACC+16, ACC+32], [WF, WF+4, WF+8], WF+12)
            a.nop(6)
            PK = [WF, WF+8, CSA]
            sB = [66, 69, 43]
            nva = L(f"{P}_nva")
            a(f"""
s_cmp_lt_u32 s{sCS}, 10
s_cbranch_scc1 {nva}
s_mul_i32 s33, s{sTB}, 6144
s_add_u32 s33, s33, {VSCR}
v_and_b32 v1, 31, v0
v_lshlrev_b32 v1, 6, v1
v_lshrrev_b32 v2, 5, v0
v_lshl_add_u32 v1, v2, 3, v1
v_bfe_u32 v7, v0, 1, 2
v_lshl_add_u32 v1, v7, 4, v1
v_add_u32 v1, s33, v1
v_lshlrev_b32 v5, 3, v2
v_bfe_u32 v3, v0, 2, 2
v_add_u32 v5, v5, v3
v_lshlrev_b32 v5, 6, v5
v_bfe_u32 v3, v0, 4, 1
v_lshl_add_u32 v5, v3, 5, v5
v_and_b32 v7, 3, v0
v_lshl_add_u32 v5, v7, 3, v5
v_bfe_u32 v7, v0, 3, 1
v_lshlrev_b32 v7, 4, v7
v_xor_b32 v5, v7, v5
v_lshlrev_b32 v3, 16, v3
v_lshl_add_u32 v3, v2, 8, v3
v_and_b32 v7, 15, v0
v_lshl_add_u32 v3, v7, 4, v3
v_add_u32 v2, s33, v5
v_xor_b32 v4, 32, v5
v_add_u32 v4, s33, v4
{nva}:
s_mul_i32 s31, s{sCS}, 3
""")
            for t in range(3):
                A_ = ACC + 16*t; Pk = PK[t]
                lv, ld = L(f"{P}_v{t}"), L(f"{P}_d{t}")
                a(f"""
s_add_u32 s30, s31, {t}
s_cmp_lt_u32 s30, 16
s_cselect_b32 s29, {CQ_BITS}, 1.0
v_mul_f32 v6, s29, v{vR}
s_lshl_b32 s{sB[t]}, s30, 17
s_lshl_b32 s32, s{sTBG}, 10
s_add_u32 s{sB[t]}, s{sB[t]}, s32
""")
                if t == 2: a.nop(4)
                for i in range(16): a(f"v_mul_f32 v{A_+i}, v{A_+i}, v6")
                for i in range(8): a(f"v_cvt_pk_bf16_f32 v{Pk+i}, v{A_+2*i}, v{A_+2*i+1}")
                a(f"""
s_cmp_ge_u32 s30, 32
s_cbranch_scc1 {lv}
s_add_u32 s32, s{sB[t]}, 65536
buffer_store_dwordx4 {vr(Pk,4)}, v{vL16}, s[{SRD_WS}:{SRD_WS+3}], s{sB[t]} offen sc1
buffer_store_dwordx4 {vr(Pk+4,4)}, v{vL16}, s[{SRD_WS}:{SRD_WS+3}], s32 offen sc1
s_branch {ld}
{lv}:
""")
                for j in range(4):
                    if j: a(f"v_xor_b32 v5, {16*j}, v1")
                    a(f"ds_write_b64 v{5 if j else 1}, {vr(Pk+2*j,2)} offset:{2048*t}")
                a(f"{ld}:")
            nov = L(f"{P}_nov")
            a(f"""
s_cmp_lt_u32 s{sCS}, 10
s_cbranch_scc1 {nov}
s_waitcnt lgkmcnt(0)
""")
            for t in range(3):
                Pk = PK[t]; l = L(f"{P}_vr{t}")
                if t < 2: a(f"s_cmp_eq_u32 s{sCS}, 10\ns_cbranch_scc1 {l}")
                for q, off in enumerate((0, 256, 1024, 1280)):
                    a(f"ds_read_b64_tr_b16 {vr(Pk+2*q,2)}, v{4 if q & 1 else 2} offset:{2048*t+off}")
                if t < 2: a(f"{l}:")
            a("s_waitcnt lgkmcnt(0)")
            for t in range(3):
                Pk = PK[t]; l = L(f"{P}_vs{t}")
                if t < 2: a(f"s_cmp_eq_u32 s{sCS}, 10\ns_cbranch_scc1 {l}")
                a(f"buffer_store_dwordx4 {vr(Pk,4)}, v3, s[{SRD_WS}:{SRD_WS+3}], s{sB[t]} offen sc1")
                a(f"buffer_store_dwordx4 {vr(Pk+4,4)}, v3, s[{SRD_WS}:{SRD_WS+3}], s{sB[t]} offen offset:512 sc1")
                if t < 2: a(f"{l}:")
            a(f"{nov}:")
            vm.issue("st", 6)
        stamp(3)
        def ffn32():
            nonlocal SELR
            nf = 4 if uh == 0 else 2
            tf0 = 0 if uh == 0 else 4
            def foff(t):
                tt = tf0 + t
                return (tt & 1)*12288 + (tt >> 1)*64
            a("s_nop 1")
            if uh == 0:
                for t in range(4): wread(WF+4*t, 8, 0, foff(t), f"f0_{t}")
            else:
                FS = [[WF, WF+4], [WF+8, WF+12], [ACC+40, ACC+44]]
                def freads(ks):
                    f, j = ks >> 2, ks & 3
                    for t in range(2): wread(FS[ks % 3][t], 8+f, j, foff(t), f"f{ks}")
                    bump(AW+j, 8+f)
                freads(0); freads(1)
            for i in range(16*nf): a(f"v_mov_b32 v{ACC+i}, 0")
            if uh == 0:
                for i in range(12): a(f"v_mov_b32 v{CS+i}, 0")
                for i in range(4): a(f"v_mov_b32 v{SEL+i}, v{CSA+12+i}")
                for i in range(4): a(f"v_mov_b32 v{CS+12+i}, 0")
                SELR = SEL
            else:
                for i in range(8): a(f"v_mov_b32 v{CS+i}, 0")
                sel_init(SELR)
            adds = []
            def flush_adds(n):
                for _ in range(n):
                    if adds: a(adds.pop(0))
            for ks in range(32):
                f, j = ks >> 2, ks & 3
                gs = 8 + f
                if j == 2 and f < 7: midbar(gs)
                if uh == 0:
                    for t in range(4):
                        lg.wait(f"f{ks}_{t}")
                        a(mfma(ACC+16*t, WF+4*t, xreg(ks), ACC+16*t))
                        if j == t: sel(t, WF+4*t, SELR)
                        if ks + 1 < 32:
                            k2 = ks + 1
                            wread(WF+4*t, 8+(k2>>2), k2&3, foff(t), f"f{k2}_{t}")
                    k2 = ks + 1
                    if k2 < 32: bump(AW+(k2&3), 8+(k2>>2))
                else:
                    if ks + 2 < 32: freads(ks+2)
                    lg.wait(f"f{ks}")
                    for t in range(2):
                        a(mfma(ACC+16*t, FS[ks % 3][t], xreg(ks), ACC+16*t))
                        dma_one()
                    if j < 2: sel(j, FS[ks % 3][j], SELR)
            a.nop(8)
            csp_write(nf, tf0)
            stamp(4)
            if uh == 0:
                lv_ = a.newlabel(L("ver"))
                a(f"s_cmp_eq_u32 s{sVER}, 1\ns_cbranch_scc1 {lv_}")
                self.poll_check(7, 0)
                a(f"{lv_}:")
            a("s_waitcnt lgkmcnt(0)"); lg.reset()
            a("s_barrier")
            kv = self.attn_loads(uh)
            def kv_one(n=1):
                for _ in range(n):
                    if kv: a(kv.pop(0))
            XN2 = X
            a(f"""
v_and_b32 v4, 31, v0
v_lshlrev_b32 v4, 4, v4
v_add_u32 v4, {CSP}, v4
""")
            kv_one(2 if uh == 0 else 10)
            rank1(nf, tf0, [ACC+16*t for t in range(nf)], [WF+4*t for t in range(nf)], XN2)
            cA, cB = X+4, X+6
            a(f"""
v_mul_f32 v{cA}, 0xbfb8aa3b, v{vR}
v_mul_f32 v{cB}, v{vS}, v{vS}
""")
            a.nop(12)
            stores = []
            npairs = nf//2
            for i in range(npairs):
                G, U = ACC+32*i, ACC+32*i+16
                T = X + 8 + 32*i; Pk = X + 8 + 32*i + 16
                body = []
                body += [f"v_pk_mul_f32 {vr(T+r,2)}, {vr(G+r,2)}, {vr(cA,2)} op_sel_hi:[1,0]" for r in range(0,16,2)]
                body += [f"v_exp_f32 v{T+r}, v{T+r}" for r in range(16)]
                body += [f"v_pk_mul_f32 {vr(G+r,2)}, {vr(G+r,2)}, {vr(U+r,2)}" for r in range(0,16,2)]
                body += [f"v_pk_fma_f32 {vr(T+r,2)}, {vr(T+r,2)}, {vr(cB,2)}, {vr(cB,2)} op_sel_hi:[1,0,0]" for r in range(0,16,2)]
                body += [f"v_rcp_f32 v{T+r}, v{T+r}" for r in range(16)]
                body += ["s_nop 0"]
                body += [f"v_pk_mul_f32 {vr(G+r,2)}, {vr(G+r,2)}, {vr(T+r,2)}" for r in range(0,16,2)]
                body += [f"v_cvt_pk_bf16_f32 v{Pk+r}, v{G+2*r}, v{G+2*r+1}" for r in range(8)]
                for ins in body: a(ins)
                stores.append((i, Pk))
            for (i, Pk) in stores:
                a(f"""
s_mul_i32 s29, s{sCS}, 3
s_add_u32 s29, s29, {(tf0>>1)+i}
s_mul_i32 s30, s{sTBG}, 86
s_lshl_b32 s31, s29, 1
s_add_u32 s30, s30, s31
s_lshl_b32 s30, s30, 10
s_add_u32 s30, s30, {HF}
s_cmp_ge_u32 s29, 43
s_cselect_b32 s30, {WSEND}, s30
buffer_store_dwordx4 {vr(Pk,4)}, v{vL16}, s[{SRD_WS}:{SRD_WS+3}], s30 offen sc1
buffer_store_dwordx4 {vr(Pk+4,4)}, v{vL16}, s[{SRD_WS}:{SRD_WS+3}], s30 offen offset:1024 sc1
""")
            if uh == 1: self.kv_stage1 = list(kv)

        def ffn16():
            npl = 2 if uh == 0 else 1
            p0 = 0 if uh == 0 else 2
            nfr = 4*npl
            def mf16(d, A, B): return f"v_mfma_f32_16x16x32_bf16 {vr(d,4)}, {vr(A,4)}, {vr(B,4)}, {vr(d,4)}"
            def acc(il, mat, s_, sb): return ACC + 4*(((il*2+mat)*2+s_)*2+sb)
            BW = lambda kk, s_: AW + 2*kk + s_
            a(f"""
v_lshrrev_b32 v1, 5, v0
v_lshlrev_b32 v1, 5, v1
v_bfe_u32 v2, v0, 2, 2
v_add_u32 v1, v1, v2
v_bfe_u32 v3, v0, 4, 1
v_and_b32 v4, 3, v0
v_lshrrev_b32 v5, 1, v4
v_and_b32 v4, 1, v4
v_lshl_or_b32 v4, v4, 1, v5
v_lshlrev_b32 v4, 3, v4
""")
            for kk in range(2):
                a(f"""
v_or_b32 v5, {2*kk}, v3
v_xor_b32 v5, s{sTB}, v5
v_lshl_add_u32 v5, v5, 3, v1
v_mul_u32_u24 v5, 0xc0, v5
v_add_u32 v5, v5, v4
v_lshl_add_u32 v{BW(kk,0)}, v3, 5, v5
v_xor_b32 v6, 1, v3
v_lshl_add_u32 v{BW(kk,1)}, v6, 5, v5
""")
            BUF = [WF, WF+4, WF+8, WF+12]
            def fread(q, half):
                if q >= 16*nfr: return
                u, fr = divmod(q, nfr)
                f, kk = u >> 1, u & 1
                il, mat, s_ = fr >> 2, (fr >> 1) & 1, fr & 1
                imm = ((8+f) & 1)*SLOT + mat*12288 + (p0+il)*64
                d = BUF[q & 3]
                a(f"ds_read_b64_tr_b16 {vr(d+2*half,2)}, v{BW(kk,s_)} offset:{imm+768*half}"); lg.issue(f"g{q}")
                if half == 1 and fr >= nfr-2: bump(BW(kk,s_), 8+f)
            for q in range(3): fread(q, 0); fread(q, 1)
            for i in range(16*2*npl): a(f"v_mov_b32 v{ACC+i}, 0")
            SR = SEL if uh == 0 else ACC + 48
            for i in range(8*npl): a(f"v_mov_b32 v{CS+i}, 0")
            a(f"""
v_and_b32 v1, 15, v0
v_cmp_eq_u32 vcc, 0, v1
v_mov_b32 v3, 0x3f803f80
s_nop 0
v_cndmask_b32 v{SR}, 0, v3, vcc
v_mov_b32 v{SR+1}, v{SR}
v_mov_b32 v{SR+2}, v{SR}
v_mov_b32 v{SR+3}, v{SR}
""")
            for u in range(16):
                f, kk = u >> 1, u & 1
                if kk == 1 and f < 7: midbar(8+f)
                for fr in range(nfr):
                    il, mat, s_ = fr >> 2, (fr >> 1) & 1, fr & 1
                    q = u*nfr + fr
                    b = BUF[q & 3]
                    lg.wait(f"g{q}")
                    a(mf16(acc(il,mat,s_,0), b, xreg(2*u)))
                    fread(q+3, 0)
                    a(mf16(acc(il,mat,s_,1), b, xreg(2*u+1)))
                    fread(q+3, 1)
                    if kk == 0 and s_ == 0 and "nocs" not in opt:
                        t = il*2+mat
                        a(f"v_mfma_f32_16x16x32_bf16 {vr(CS+4*t,4)}, {vr(SR,4)}, {vr(b,4)}, {vr(CS+4*t,4)}")
                    if uh == 1 and fr != 3: dma_one()
            a.nop(8)
            a(f"""
v_lshlrev_b32 v1, 3, v0
s_and_b32 s29, s{sTB}, 1
s_lshl_b32 s29, s29, 7
s_lshr_b32 s30, s{sTB}, 1
s_lshl_b32 s30, s30, 2
s_add_u32 s29, s29, s30
s_add_u32 s29, s29, {CSP + p0*512}
v_add_u32 v1, s29, v1
s_mov_b64 exec, 0xffff
""")
            for t in range(2*npl): a(f"ds_write_b32 v1, v{CS+4*t} offset:{t*256}")
            a("s_mov_b64 exec, -1")
            stamp(4)
            if uh == 0:
                lv_ = a.newlabel(L("ver"))
                a(f"s_cmp_eq_u32 s{sVER}, 1\ns_cbranch_scc1 {lv_}")
                self.poll_check(7, 0)
                a(f"{lv_}:")
            a("s_waitcnt lgkmcnt(0)"); lg.reset()
            a("s_barrier")
            kv = self.attn_loads(uh)
            def kv_one(n=1):
                for _ in range(n):
                    if kv: a(kv.pop(0))
            XN = [X, X+4]; cA = [X+8, X+10]; cB = [X+12, X+14]; vC = [X+16, X+17]
            a(f"""
v_and_b32 v1, 15, v0
s_lshl_b32 s29, s{sTB}, 5
v_add_u32 v2, s29, v1
v_lshlrev_b32 v2, 3, v2
v_add_u32 v2, {STAT}, v2
ds_read_b64 v[{X+20}:{X+21}], v2
ds_read_b64 v[{X+22}:{X+23}], v2 offset:128
v_lshlrev_b32 v1, 3, v1
s_and_b32 s29, s{sTB}, 1
s_lshl_b32 s29, s29, 7
s_add_u32 s30, s29, {CSP + p0*512}
v_add_u32 v{vC[0]}, s30, v1
s_xor_b32 s29, s29, 128
s_add_u32 s30, s29, {CSP + p0*512}
v_add_u32 v{vC[1]}, s30, v1
""")
            kv_one(2 if uh == 0 else 10)
            PR = [X+24+2*k for k in range(4*npl)]
            for t in range(2*npl):
                for s_ in range(2):
                    a(f"ds_read_b64 {vr(PR[t*2+s_],2)}, v{vC[s_]} offset:{t*256}")
            a(f"""
v_cmp_gt_u32 vcc, 16, v0
s_waitcnt lgkmcnt({4*npl})
""")
            for sb in range(2):
                nm, sd = X+20+2*sb, X+21+2*sb
                a(f"""
v_cndmask_b32 v{XN[sb]}, 0, v{nm}, vcc
v_mov_b32 v{XN[sb]+1}, 0
v_mov_b32 v{XN[sb]+2}, 0
v_mov_b32 v{XN[sb]+3}, 0
v_rcp_f32 v{cA[sb]}, v{sd}
v_mul_f32 v{cB[sb]}, v{sd}, v{sd}
""")
            for sb in range(2): a(f"v_mul_f32 v{cA[sb]}, 0xbfb8aa3b, v{cA[sb]}")
            for k in range(1, 4):
                for b_ in BUF: a(f"v_mov_b32 v{b_+k}, 0")
            a("s_waitcnt lgkmcnt(0)")
            for t in range(2*npl):
                for s_ in range(2):
                    pr = PR[t*2+s_]; b_ = BUF[(t*2+s_) & 3]
                    a(f"v_add_f32 v{pr}, v{pr}, v{pr+1}")
                    a(f"v_cvt_pk_bf16_f32 v{pr+1}, v{pr}, v{pr}")
                    a(f"v_lshlrev_b32 v{pr+1}, 16, v{pr+1}")
                    a(f"v_sub_f32 v{pr}, v{pr}, v{pr+1}")
                    a(f"v_cvt_pk_bf16_f32 v{b_}, v{pr+1}, v{pr}")
                    a("s_nop 1")
                    il, mat = t >> 1, t & 1
                    for sb in range(2): a(mf16(acc(il,mat,s_,sb), b_, XN[sb]))
            a.nop(8)
            stores = []
            for il in range(npl):
                T = X + 48 + 32*il; Pk = X + 48 + 32*il + 16
                body = []
                el = [(s_, sb) for s_ in range(2) for sb in range(2)]
                G = lambda s_, sb: acc(il, 0, s_, sb)
                U = lambda s_, sb: acc(il, 1, s_, sb)
                for n_, (s_, sb) in enumerate(el):
                    for r in (0, 2): body.append(f"v_pk_mul_f32 {vr(T+4*n_+r,2)}, {vr(G(s_,sb)+r,2)}, {vr(cA[sb],2)} op_sel_hi:[1,0]")
                body += [f"v_exp_f32 v{T+r}, v{T+r}" for r in range(16)]
                for n_, (s_, sb) in enumerate(el):
                    for r in (0, 2): body.append(f"v_pk_mul_f32 {vr(G(s_,sb)+r,2)}, {vr(G(s_,sb)+r,2)}, {vr(U(s_,sb)+r,2)}")
                for n_, (s_, sb) in enumerate(el):
                    for r in (0, 2): body.append(f"v_pk_fma_f32 {vr(T+4*n_+r,2)}, {vr(T+4*n_+r,2)}, {vr(cB[sb],2)}, {vr(cB[sb],2)} op_sel_hi:[1,0,0]")
                body += [f"v_rcp_f32 v{T+r}, v{T+r}" for r in range(16)]
                body += ["s_nop 0"]
                for n_, (s_, sb) in enumerate(el):
                    for r in (0, 2): body.append(f"v_pk_mul_f32 {vr(G(s_,sb)+r,2)}, {vr(G(s_,sb)+r,2)}, {vr(T+4*n_+r,2)}")
                for n_, (s_, sb) in enumerate(el):
                    for r in range(2): body.append(f"v_cvt_pk_bf16_f32 v{Pk+4*s_+2*sb+r}, v{G(s_,sb)+2*r}, v{G(s_,sb)+2*r+1}")
                body += ["s_nop 1"]
                for s_ in range(2):
                    for r in range(2): body.append(f"v_permlane16_swap_b32 v{Pk+4*s_+r}, v{Pk+4*s_+2+r}")
                for ins in body: a(ins)
                stores.append((il, Pk))
            for (il, Pk) in stores:
                a(f"""
s_mul_i32 s29, s{sCS}, 3
s_add_u32 s29, s29, {p0+il}
s_mul_i32 s30, s{sTBG}, 86
s_lshl_b32 s31, s29, 1
s_add_u32 s30, s30, s31
s_and_b32 s31, s{sTB}, 1
s_add_u32 s32, s30, s31
s_xor_b32 s31, s31, 1
s_add_u32 s30, s30, s31
s_lshl_b32 s32, s32, 10
s_lshl_b32 s30, s30, 10
s_add_u32 s32, s32, {HF}
s_add_u32 s30, s30, {HF}
s_cmp_ge_u32 s29, 43
s_cselect_b32 s32, {WSEND}, s32
s_cselect_b32 s30, {WSEND}, s30
buffer_store_dwordx4 {vr(Pk,4)}, v{vL16}, s[{SRD_WS}:{SRD_WS+3}], s32 offen sc1
buffer_store_dwordx4 {vr(Pk+4,4)}, v{vL16}, s[{SRD_WS}:{SRD_WS+3}], s30 offen sc1
""")
            if uh == 1: self.kv_stage1 = list(kv)
        if f16: ffn16()
        else: ffn32()
        stamp(5)

    BQ = [216, 220]
    def kv_scalars(self):
        self.a(f"""
s_lshl_b32 s33, s{sHD}, 16
s_lshr_b32 s29, s{sW}, 1
s_and_b32 s29, s29, 1
s_and_b32 s30, s{sW}, 1
s_lshl_b32 s30, s30, 2
s_lshl_b32 s31, s{sUH}, 5
s_add_u32 s30, s30, s31
s_lshl_b32 s30, s30, 10
s_lshl_b32 s31, s29, 16
s_add_u32 s{sDST}, s31, s30
s_lshl_b32 s31, s29, 21
s_add_u32 s{sSRC}, s31, s30
s_add_u32 s{sSRC}, s{sSRC}, s33
s_add_u32 s{sSRC}, s{sSRC}, {KF}
""")
    def attn_loads(self, uh):
        a = self.a; Q = self.BQ
        a(f"""
s_lshl_b32 s33, s{sHD}, 16
s_lshl_b32 s{sTB0}, s{sQB}, 3
s_lshl_b32 s29, s{sTB}, 1
s_add_u32 s{sTB0}, s{sTB0}, s29
s_lshl_b32 s29, s{sTB0}, 10
s_add_u32 s69, s33, s29
""")
        self.kv_scalars()
        a(f"s_add_u32 s{sSRC}, s{sSRC}, 16384\ns_add_u32 s{sDST}, s{sDST}, 16384")
        g = []
        g.append(f"buffer_load_dwordx4 {vr(Q[0],4)}, v{vL16}, s[{SRD_WS}:{SRD_WS+3}], s69 offen sc1")
        g.append(f"buffer_load_dwordx4 {vr(Q[1],4)}, v{vL16}, s[{SRD_WS}:{SRD_WS+3}], s69 offen offset:1024 sc1")
        if uh == 1:
            a(f"""
s_and_b32 s29, s{sTB}, 1
s_lshr_b32 s30, s{sTB}, 1
s_lshl_b32 s30, s30, 15
s_lshl_b32 s31, s29, 16
s_add_u32 s{sK0D}, s31, s30
s_lshl_b32 s31, s29, 21
s_add_u32 s{sK0S}, s31, s30
s_add_u32 s{sK0S}, s{sK0S}, s33
s_add_u32 s{sK0S}, s{sK0S}, {KF}
""")
            for h_ in range(4):
                for q in range(4):
                    t = ""
                    if q == 0: t += f"s_mov_b32 m0, s{sK0D}\ns_add_u32 s{sK0D}, s{sK0D}, 4096\n"
                    t += f"buffer_load_dwordx4 v{vL16}, s[{SRD_WS}:{SRD_WS+3}], s{sK0S} offen offset:{q*1024} sc1 lds"
                    if q == 3: t += f"\ns_add_u32 s{sK0S}, s{sK0S}, 4096"
                    g.append(t)
        return g

    def phaseB(self):
        a = self.a; L = self.L; opt = self.opt; stamp = self.stamp
        vAK, vAV, vIDX = 2, 3, 4
        Q = self.BQ; K = [16, 20]; V = [24, 32]; S = [40, 56]; O = [72, 88]; C = [104, 120]; T = 136
        NST = 4
        a("s_nop 1")
        a(f"""
v_mov_b32 v{vIDX}, 0xdddddddd
v_and_b32 v5, 27, v0
v_cmp_eq_u32 vcc, 16, v5
v_mov_b32 v6, 0x3f803f80
s_mov_b32 s{sMASK}, 0x0000ffff
v_cndmask_b32 v{V[0]}, 0, v6, vcc
""")
        for i in range(1,16): a(f"v_mov_b32 v{V[0]+i}, v{V[0]}")
        a(f"""
s_mov_b32 s{sMASK+1}, 0x0000ffff
s_mov_b32 s{sREDO}, 0
s_lshl_b32 s35, s{sUH}, 15
v_lshrrev_b32 v5, 5, v0
v_lshlrev_b32 v5, 8, v5
v_and_b32 v6, 15, v0
v_lshl_add_u32 v5, v6, 4, v5
s_add_u32 s29, s35, 65536
v_add_u32 v1, s29, v5
v_mov_b32 v5, {FLAG}
v_mov_b32 v6, 0
ds_write_b32 v5, v6
""")
        for t in range(2):
            for i in range(16): a(f"v_mov_b32 v{O[t]+i}, 0")
        a(f"""
s_waitcnt vmcnt(4) lgkmcnt(0)
s_cmp_eq_u32 s{sUH}, 0
s_cbranch_scc1 {L('bw0')}
s_waitcnt vmcnt(2)
{L('bw0')}:
s_barrier
""")
        stamp(6)
        a.label(L('redo'))
        a(f"""
s_cmp_eq_u32 s{sREDO}, 0
s_cselect_b32 s29, 1, 32
v_add_u32 v{vAK}, s35, v{vL16}
v_mov_b32 v{T}, 0xff800000
v_mov_b32 v{T+1}, 0xff800000
""")
        a.label(L('maxloop'))
        a(f"""
ds_read_b128 {vr(K[0],4)}, v{vAK}
v_add_u32 v{vAK}, 1024, v{vAK}
s_waitcnt lgkmcnt(0)
{mfma(S[0],K[0],Q[0],None)}
{mfma(S[1],K[0],Q[1],None)}
s_sub_u32 s29, s29, 1
""")
        a.nop(12)
        for i in range(8):
            for t in range(2):
                a(f"v_max3_f32 v{T+t}, v{T+t}, v{S[t]+2*i}, v{S[t]+2*i+1}")
        a(f"""
s_cmp_lg_u32 s29, 0
s_cbranch_scc1 {L('maxloop')}
v_mov_b32 v{T+2}, v{T}
v_mov_b32 v{T+3}, v{T+1}
v_add_u32 v{vAK}, s35, v{vL16}
v_mov_b32 v{vAV}, v1
v_permlane32_swap_b32 v{T}, v{T+2}
v_permlane32_swap_b32 v{T+1}, v{T+3}
s_mov_b64 exec, s[{sMASK}:{sMASK+1}]
ds_read_b128 {vr(V[0],4)}, v{vAV}
ds_read_b128 {vr(V[0]+4,4)}, v{vAV} offset:512
s_mov_b64 exec, -1
v_max_f32 v{T}, v{T}, v{T+2}
v_max_f32 v{T+1}, v{T+1}, v{T+3}
""")
        a(f"ds_read_b128 {vr(K[0],4)}, v{vAK}")
        for i in range(16): a(f"v_sub_f32 v{C[0]+i}, 0, v{T}")
        a("s_waitcnt lgkmcnt(0)")
        a("s_nop 0")
        a(mfma(S[0],K[0],Q[0],C[0]))
        for i in range(16): a(f"v_sub_f32 v{C[1]+i}, 0, v{T+1}")
        for i in range(8,16): a(f"v_mov_b32 v{S[1]+i}, 0")
        def tile(p, off):
            exA = [f"v_exp_f32 v{S[0]+i}, v{S[0]+i}" for i in range(16)]
            exB = [f"v_exp_f32 v{S[1]+i}, v{S[1]+i}" for i in range(16)]
            insA = [
                (3, smf(O[1], V[p^1]+4, S[1]+8, vIDX)),
                (5, mfma(S[1], K[p], Q[1], C[1])),
                (8, f"ds_read_b128 {vr(K[p^1],4)}, v{vAK} offset:{off}"),
                (8, f"s_mov_b64 exec, s[{sMASK}:{sMASK+1}]"),
                (8, f"ds_read_b128 {vr(V[p^1],4)}, v{vAV} offset:{off}"),
                (8, f"ds_read_b128 {vr(V[p^1]+4,4)}, v{vAV} offset:{off+512}"),
                (8, f"s_mov_b64 exec, -1"),
                (11, smf(O[0], V[p], S[0], vIDX)),
            ]
            insB = [
                (3, smf(O[0], V[p]+4, S[0]+8, vIDX)),
                (5, "s_waitcnt lgkmcnt(0)"),
                (5, mfma(S[0], K[p^1], Q[0], C[0])),
                (11, smf(O[1], V[p], S[1], vIDX)),
            ]
            for l in interleave(exA, insA): a(l)
            for l in interleave(exB, insB): a(l)
        def kv_stage():
            a(f"s_mov_b32 m0, s{sDST}\ns_add_u32 s{sDST}, s{sDST}, 8192")
            for q in range(4):
                a(f"buffer_load_dwordx4 v{vL16}, s[{SRD_WS}:{SRD_WS+3}], s{sSRC} offen offset:{q*1024} sc1 lds")
            a(f"s_add_u32 s{sSRC}, s{sSRC}, 8192")
        a(f"s_cmp_lg_u32 s{sREDO}, 0")
        a(f"s_cbranch_scc1 {L('rloop0')}")
        stamp(7)
        for T_ in range(32):
            st_, t = T_ >> 3, T_ & 7
            if T_ == 0:
                l1_ = L('kv1')
                a(f"s_cmp_eq_u32 s{sUH}, 0\ns_cbranch_scc1 {l1_}")
                for g_ in self.kv_stage1: a(g_)
                a(f"{l1_}:")
            if st_ == 0 and t in (2, 4): kv_stage()
            if st_ == 0 and t == 6:
                a("s_waitcnt vmcnt(8)\ns_barrier")
                a(f"""
s_lshl_b32 s29, s{sRB}, 7
s_lshl_b32 s30, s{sCS}, 2
s_add_u32 s29, s29, s30
s_add_u32 s29, s29, {F2}
""")
                self.signal(29)
                a(f"""
s_lshr_b32 s29, s{sRB64}, 1
s_lshl_b32 s29, s29, 7
s_add_u32 s29, s29, {F2}
v_and_b32 v7, 15, v0
v_lshl_add_u32 v7, v7, 2, s29
""")
            if st_ == 1 and t == 6:
                a("s_waitcnt vmcnt(0)\ns_barrier")
                self.poll_issue(7)
            if st_ == 2 and t < 4 and "nocpf" not in opt:
                lp = L(f'cpf{t}')
                a(f"""
s_cmp_lg_u32 s{sTB}, {t}
s_cbranch_scc1 {lp}
s_lshr_b32 s29, s2, 3
s_lshl_b32 s29, s29, 9
s_lshl_b32 s30, s{sW}, 6
s_add_u32 s29, s29, s30
v_add_u32 v5, s29, v0
v_lshlrev_b32 v5, 7, v5
s_mov_b32 s{SRD_WQ}, s{pW2}
s_mov_b32 s{SRD_WQ+1}, s{pW2+1}
s_mov_b32 s{SRD_WQ+2}, {1376*1024}
buffer_load_dword v163, v5, s[{SRD_WQ}:{SRD_WQ+3}], 0 offen
v_subrev_u32 v6, {1376*1024}, v5
s_mov_b32 s{SRD_WF}, s{pWO}
s_mov_b32 s{SRD_WF+1}, s{pWO+1}
s_mov_b32 s{SRD_WF+2}, {512*1024}
buffer_load_dword v164, v6, s[{SRD_WF}:{SRD_WF+3}], 0 offen
{lp}:
""")
            early = "cearly" in opt
            if st_ == 2 and t == 5: self.c_setup()
            if early and st_ == 2 and t == 6:
                self.poll_check(7, 1, wait=(True if "nocpf" in opt else 2))
                a("s_barrier")
                cq = self.c_pieces() + self.c_pieces()
            if early and st_ == 3 and t == 6:
                a("s_barrier")
                cq = self.c_pieces()
            if early and ((st_ == 2 and t >= 6) or (st_ == 3 and (t < 2 or t >= 6))):
                lq = a.newlabel(L("cq"))
                a(f"s_cmp_eq_u32 s{sUH}, 0\ns_cbranch_scc1 {lq}")
                for _ in range(4): a(cq.pop(0))
                a(f"{lq}:")
            if not early and st_ == 2 and t == 6 and "nohpf" not in opt:
                l3 = L('hpf')
                a(f"""
s_cmp_lg_u32 s{sW}, 0
s_cbranch_scc1 {l3}
s_waitcnt vmcnt({0 if "nocpf" in opt else 2})
v_cmp_ne_u32 vcc, s{sTAG}, v{vPOLL}
s_nop 4
s_cmp_eq_u64 vcc, 0
s_cbranch_scc0 {l3}
s_mul_i32 s29, s{sRB64}, 176128
s_mul_i32 s30, s{sCB}, {172*128}
s_add_u32 s29, s29, s30
s_add_u32 s29, s29, {HF}
v_lshlrev_b32 v5, 7, v0
buffer_load_dword v160, v5, s[{SRD_WS}:{SRD_WS+3}], s29 offen
v_add_u32 v5, 8192, v5
buffer_load_dword v161, v5, s[{SRD_WS}:{SRD_WS+3}], s29 offen
v_add_u32 v5, 8192, v5
v_min_u32 v5, {171*128}, v5
buffer_load_dword v162, v5, s[{SRD_WS}:{SRD_WS+3}], s29 offen
{l3}:
""")
            tile(T_ & 1, (T_+1)*1024)
        a(f"s_branch {L('mdone')}")
        a.label(L('rloop0'))
        a(f"s_mov_b32 s{sSTG}, 0")
        a.label(L('rloop'))
        tile(0, 1024); tile(1, 2048)
        a(f"""
v_add_u32 v{vAK}, 2048, v{vAK}
v_add_u32 v{vAV}, 2048, v{vAV}
s_add_u32 s{sSTG}, s{sSTG}, 1
s_cmp_lt_u32 s{sSTG}, 16
s_cbranch_scc1 {L('rloop')}
""")
        a.label(L('mdone'))
        a(smf(O[1], V[1]+4, S[1]+8, vIDX))
        stamp(8)
        a(f"""
s_mul_i32 s29, s{sW}, 2560
s_add_u32 s29, s29, {EX}
s_xor_b32 s30, s{sW}, 4
s_mul_i32 s30, s30, 2560
s_add_u32 s30, s30, {EX}
v_add_u32 v5, s29, v{vL16}
v_lshlrev_b32 v6, 3, v0
v_add_u32 v6, s29, v6
v_add_u32 v165, s30, v{vL16}
v_lshlrev_b32 v166, 3, v0
v_add_u32 v166, s30, v166
s_nop 3
s_cmp_lg_u32 s{sREDO}, 0
s_cbranch_scc1 {L('nochk')}
""")
        a(f"v_mul_f32 v{T}, 0, v{O[0]}")
        for t in range(2):
            for i in range(8):
                if t == 0 and i == 0: continue
                a(f"v_fma_f32 v{T}, v{O[t]+i}, 0, v{T}")
        a(f"""
v_max_f32 v{T+1}, v{O[0]+8}, v{O[1]+8}
v_add_f32 v{T+2}, v{O[0]+8}, v{O[1]+8}
v_add_f32 v{T+1}, v{T+1}, v{T}
v_mul_f32 v{T+2}, 0, v{T+2}
v_add_f32 v{T+1}, v{T+1}, v{T+2}
v_mov_b32 v{T+3}, 0x4e800000
v_mov_b32 v167, {FLAG}
v_cmp_nle_f32 vcc, v{T+1}, v{T+3}
v_mov_b32 v{T+3}, 1
s_nop 3
s_cmp_eq_u64 vcc, 0
s_cbranch_scc1 {L('nochk')}
ds_write_b32 v167, v{T+3}
{L('nochk')}:
s_cmp_eq_u32 s{sUH}, 0
s_cbranch_scc1 {L('noswap')}
""")
        for i in range(9): a(f"v_swap_b32 v{O[0]+i}, v{O[1]+i}")
        a(f"v_swap_b32 v{C[0]}, v{C[1]}")
        a.label(L('noswap'))
        a(f"""
v_mov_b32 v{T}, v{O[1]+8}
v_mov_b32 v{T+1}, v{C[1]}
ds_write_b128 v5, {vr(O[1],4)}
ds_write_b128 v5, {vr(O[1]+4,4)} offset:1024
ds_write_b64 v6, {vr(T,2)} offset:2048
""")
        def c_part(order):
            l = a.newlabel(L("cp"))
            a(f"s_cmp_eq_u32 s{sUH}, 0\ns_cbranch_scc1 {l}")
            for g_ in self.c_pieces(order): a(g_)
            a(f"{l}:")
        c_part("hw")
        self.poll_check(7, 1)
        a(f"""
s_waitcnt lgkmcnt(0)
s_barrier
v_mov_b32 v167, {FLAG}
ds_read_b32 v167, v167
ds_read_b64 {vr(T,2)}, v166 offset:2048
ds_read_b128 {vr(O[1],4)}, v165
ds_read_b128 {vr(O[1]+4,4)}, v165 offset:1024
""")
        c_part("a")
        a(f"""
s_waitcnt lgkmcnt(3)
v_readfirstlane_b32 s29, v167
s_cmp_lg_u32 s{sREDO}, 0
s_cbranch_scc1 {L('ok')}
s_nop 2
s_cmp_eq_u32 s29, 0
s_cbranch_scc1 {L('ok')}
s_mov_b32 s{sREDO}, 1
""")
        a("s_waitcnt vmcnt(0) lgkmcnt(0)")
        a("s_barrier")
        self.kv_scalars()
        for st_ in range(4):
            a(f"s_mov_b32 m0, s{sDST}\ns_add_u32 s{sDST}, s{sDST}, 8192")
            for q in range(4):
                a(f"buffer_load_dwordx4 v{vL16}, s[{SRD_WS}:{SRD_WS+3}], s{sSRC} offen offset:{q*1024} sc1 lds")
            a(f"s_add_u32 s{sSRC}, s{sSRC}, 8192")
        self.c_setup()
        for t in range(2):
            for i in range(16): a(f"v_mov_b32 v{O[t]+i}, 0")
        for i in range(8,16): a(f"v_mov_b32 v{S[1]+i}, 0")
        a(f"""
s_waitcnt vmcnt(0)
s_barrier
s_branch {L('redo')}
{L('ok')}:
""")
        a(f"""
s_waitcnt lgkmcnt(2)
v_min_f32 v{T+2}, v{T+1}, v{C[0]}
v_sub_f32 v{T+3}, v{T+2}, v{C[0]}
v_sub_f32 v{T+4}, v{T+2}, v{T+1}
v_exp_f32 v{T+3}, v{T+3}
v_exp_f32 v{T+4}, v{T+4}
s_nop 0
v_mul_f32 v{T+5}, v{T+3}, v{O[0]+8}
v_fma_f32 v{T+5}, v{T+4}, v{T}, v{T+5}
v_rcp_f32 v{T+5}, v{T+5}
s_nop 0
v_mul_f32 v{T+3}, v{T+3}, v{T+5}
v_mul_f32 v{T+4}, v{T+4}, v{T+5}
s_waitcnt lgkmcnt(0)
""")
        for i in range(8): a(f"v_mul_f32 v{O[0]+i}, v{O[0]+i}, v{T+3}")
        for i in range(8): a(f"v_fma_f32 v{O[0]+i}, v{O[1]+i}, v{T+4}, v{O[0]+i}")
        for i in range(4): a(f"v_cvt_pk_bf16_f32 v{T+8+i}, v{O[0]+2*i}, v{O[0]+2*i+1}")
        a(f"""
s_add_u32 s29, s{sTB0}, s{sUH}
s_lshl_b32 s29, s29, 5
s_add_u32 s29, s29, s{sHD}
s_lshl_b32 s29, s29, 10
s_add_u32 s29, s29, {OF}
buffer_store_dwordx4 {vr(T+8,4)}, v{vL16}, s[{SRD_WS}:{SRD_WS+3}], s29 offen sc1
""")
        stamp(9)

    cSRC, cA, cW = 224, 225, 226
    SRD_C = 4
    def c_setup(self):
        a = self.a; L = self.L
        vS_ = self.cSRC; C4 = self.SRD_C
        a(f"""
v_lshrrev_b32 v165, 3, v0
v_lshrrev_b32 v166, 4, v0
v_and_b32 v166, 1, v166
v_lshlrev_b32 v166, 2, v166
v_and_b32 v167, 7, v0
v_xor_b32 v166, v166, v167
v_lshlrev_b32 v166, 4, v166
v_lshl_add_u32 v{vS_}, v165, 10, v166
s_lshl_b32 s29, s{sCB}, 7
v_add_u32 v{vS_}, s29, v{vS_}
s_mov_b32 s{SRD_WF}, s{pOUT}
s_mov_b32 s{SRD_WF+1}, s{pOUT+1}
s_mov_b32 s{SRD_WF+2}, {2048*1024}
s_mov_b32 s{C4}, s{pW2}
s_mov_b32 s{C4+1}, s{pW2+1}
s_mov_b32 s{C4+2}, {1376*1024}
s_mov_b32 s{C4+3}, 0x20000
s_lshr_b32 s29, s{sTB}, 1
s_lshl_b32 s30, s{sRB64}, 1
s_add_u32 s30, s30, s29
s_mul_i32 s31, s30, 86
s_and_b32 s32, s{sTB}, 1
s_lshl_b32 s32, s32, 2
s_add_u32 s31, s31, s32
s_lshl_b32 s31, s31, 10
s_add_u32 s{sAOFF}, s31, {HF}
s_lshl_b32 s30, s30, 5
s_add_u32 s30, s30, s32
s_lshl_b32 s30, s30, 10
s_add_u32 s{sALT}, s30, {OF}
s_lshl_b32 s29, s29, 15
s_lshl_b32 s32, s32, 10
s_add_u32 s{sLOFF}, s29, s32
s_add_u32 s{sWL}, s{sLOFF}, 65536
s_lshl_b32 s{sWOFF}, s{sTB}, 15
s_mov_b32 s{sISS}, 0
""")
    def c_pieces(self, order="haw"):
        a = self.a; L = self.L; vS_ = self.cSRC; C4 = self.SRD_C
        out = []; pre = ""
        for part in order:
            if part == "h":
                lns = a.newlabel(L('ns'))
                pre = f"""s_cmp_lg_u32 s{sISS}, 11
s_cbranch_scc1 {lns}
s_mov_b32 s{sAOFF}, s{sALT}
s_lshl_b32 s{sWOFF}, s{sTB}, 15
s_mov_b32 s{C4}, s{pWO}
s_mov_b32 s{C4+1}, s{pWO+1}
s_mov_b32 s{C4+2}, {512*1024}
{lns}:
s_cmp_eq_u32 s{sISS}, 10
s_cselect_b32 s{sA2}, s{sTB}, 0
s_and_b32 s{sA2}, s{sA2}, 1
s_lshl_b32 s{sA2}, s{sA2}, 11
s_sub_u32 s{sA2}, s{sAOFF}, s{sA2}
s_and_b32 s{sTMP}, s{sISS}, 3
s_lshl_b32 s{sTMP}, s{sTMP}, 13
s_add_u32 s{sISS}, s{sISS}, 1
"""
            elif part == "a":
                for q in range(4):
                    t = pre; pre = ""
                    if q == 0: t += f"s_add_u32 m0, s{sTMP}, s{sLOFF}\ns_nop 0\n"
                    t += f"buffer_load_dwordx4 v{vL16}, s[{SRD_WS}:{SRD_WS+3}], s{sAOFF if q < 2 else sA2} offen offset:{q*1024} sc1 lds"
                    if q == 3: t += f"\ns_add_u32 s{sAOFF}, s{sAOFF}, 8192"
                    out.append(t)
            else:
                for q in range(4):
                    t = pre; pre = ""
                    if q == 0: t += f"s_add_u32 s{sWM}, s{sTMP}, s{sWL}\n"
                    t += f"s_mov_b32 m0, s{sWM}\ns_add_u32 s{sWM}, s{sWM}, 1024\n"
                    t += f"buffer_load_dwordx4 v{vS_}, s[{C4}:{C4+3}], s{sWOFF} offen lds\n"
                    t += f"s_add_u32 s{sWOFF}, s{sWOFF}, {8192 if q < 3 else 8192 + 96*1024}"
                    out.append(t)
        return out

    def pst(self):
        if "pst" in self.opt:
            a = self.a
            for slot, stg in enumerate(((0,11) if "pst2" in self.opt else (0,2,4,7,8,10,13)), 1):
                l = a.newlabel(self.L("ps"))
                a(f"s_cmp_lg_u32 s{sCST}, {stg}\ns_cbranch_scc1 {l}")
                a(f"s_memtime s[{70+2*slot}:{71+2*slot}]")
                a(f"{l}:")
    def phaseC(self):
        a = self.a; L = self.L; stamp = self.stamp
        vA, vW = self.cA, self.cW
        vA0, vW0, vAn, vWn = 227, 228, 229, 230
        ACCc = 16; AF = [32+4*i for i in range(8)]; WFr = [64+4*i for i in range(8)]; T = 96
        NST = 15
        a(f"s_cmp_eq_u32 s{sUH}, 0")
        a(f"s_cbranch_scc0 {L('cprod')}")
        a(f"""
s_lshr_b32 s29, s{sW}, 1
s_lshl_b32 s30, s{sRB64}, 1
s_add_u32 s30, s30, s29
s_lshl_b32 s30, s30, 15
s_and_b32 s31, s{sW}, 1
s_lshl_b32 s31, s31, 6
s_lshl_b32 s32, s{sCB}, 7
s_add_u32 s30, s30, s31
s_add_u32 s34, s30, s32
v_and_b32 v8, 31, v0
v_lshlrev_b32 v8, 10, v8
v_lshrrev_b32 v6, 5, v0
v_lshl_add_u32 v8, v6, 4, v8
buffer_load_dwordx4 v[{T}:{T+3}], v8, s[{SRD_X}:{SRD_X+3}], s34 offen
buffer_load_dwordx4 v[{T+4}:{T+7}], v8, s[{SRD_X}:{SRD_X+3}], s34 offen offset:32
s_lshl_b32 s29, s29, 15
v_add_u32 v{vA0}, s29, v{vL16}
v_lshrrev_b32 v5, 5, v0
v_lshlrev_b32 v5, 2, v5
v_bfe_u32 v6, v0, 2, 2
v_add_u32 v5, v5, v6
v_lshlrev_b32 v5, 7, v5
v_lshrrev_b32 v6, 1, v6
s_and_b32 s30, s{sW}, 1
v_xor_b32 v6, s30, v6
v_lshl_add_u32 v5, v6, 6, v5
v_bfe_u32 v6, v0, 4, 1
v_lshl_add_u32 v5, v6, 5, v5
v_and_b32 v6, 3, v0
v_lshl_add_u32 v5, v6, 3, v5
v_add_u32 v{vW0}, 65536, v5
v_mov_b32 v{vA}, v{vA0}
v_mov_b32 v{vW}, v{vW0}
s_lshr_b32 s29, s{sRB64}, 2
s_lshl_b32 s29, s29, 7
s_add_u32 s29, s29, {F3}
v_and_b32 v7, 31, v0
v_lshl_add_u32 v7, v7, 2, s29
""")
        for i in range(16): a(f"v_mov_b32 v{ACCc+i}, 0")
        def rd(j, ra, rw):
            a(f"ds_read_b128 {vr(AF[j],4)}, v{ra} offset:{j*1024}")
            a(f"ds_read_b64_tr_b16 {vr(WFr[j],2)}, v{rw} offset:{(j>>2)*32768+(j&3)*2048}")
            a(f"ds_read_b64_tr_b16 {vr(WFr[j]+2,2)}, v{rw} offset:{(j>>2)*32768+(j&3)*2048+1024}")
        a(f"s_mov_b32 s{sVER}, 0")
        a(f"s_mov_b32 s{sCST}, 0")
        a("s_barrier")
        for j in range(3): rd(j, vA, vW)
        a.label(L('cloop'))
        n1, n2, n3, n4 = L('c_n1'), L('c_n2'), L('c_n3'), L('c_n4')
        npoll, nchk = L('c_np'), L('c_nc')
        a(f"""
s_cmp_lg_u32 s{sCST}, 0
s_cbranch_scc1 {n4}
s_waitcnt vmcnt(2)
{n4}:
s_add_u32 s29, s{sCST}, 1
s_and_b32 s29, s29, 3
s_lshl_b32 s29, s29, 13
v_add_u32 v{vAn}, s29, v{vA0}
v_add_u32 v{vWn}, s29, v{vW0}
s_cmp_lg_u32 s{sW}, 0
s_cbranch_scc1 {n2}
s_cmp_eq_u32 s{sVER}, 1
s_cbranch_scc1 {n2}
s_cmp_lt_u32 s{sCST}, 3
s_cbranch_scc1 {n2}
s_cmp_eq_u32 s{sCST}, 3
s_cbranch_scc1 {npoll}
s_waitcnt vmcnt(0)
v_cmp_ne_u32 vcc, s{sTAG}, v{vPOLL}
s_nop 4
s_cmp_eq_u64 vcc, 0
s_cbranch_scc0 {nchk}
s_mov_b32 s{sVER}, 1
""")
        if self.stamps:
            self.stamp(12); a(f"s_mov_b32 s69, s{sCST}")
        a(f"""
s_branch {n2}
{nchk}:
s_cmp_lt_u32 s{sCST}, 8
s_cbranch_scc1 {npoll}
""")
        self.poll_check(7, 2)
        if self.stamps: a(f"s_add_u32 s69, s{sSPIN}, 100")
        a(f"""
s_mov_b32 s{sVER}, 1
s_branch {n2}
{npoll}:
global_load_dword v{vPOLL}, v7, s[{SRD_WS}:{SRD_WS+1}] sc1
{n2}:
s_barrier
s_cmp_lg_u32 s{sCST}, 0
s_cbranch_scc1 {n1}
s_lshl_b32 s29, s{sQB}, 7
s_lshl_b32 s30, s{sHD}, 2
s_add_u32 s29, s29, s30
s_add_u32 s29, s29, {F3}
""")
        self.signal(29)
        a(f"{n1}:")
        self.pst()
        if "cnocomp" not in self.opt:
            for j in range(8):
                a("s_waitcnt lgkmcnt(6)")
                a(mfma(ACCc, WFr[j], AF[j], ACCc))
                if j + 3 < 8: rd(j+3, vA, vW)
                else: rd(j-5, vAn, vWn)
        a(f"""
v_mov_b32 v{vA}, v{vAn}
v_mov_b32 v{vW}, v{vWn}
s_add_u32 s{sCST}, s{sCST}, 1
s_cmp_lt_u32 s{sCST}, {NST}
s_cbranch_scc1 {L('cloop')}
s_waitcnt lgkmcnt(0)
""")
        stamp(10)
        a("s_waitcnt vmcnt(0)")
        a.nop(9)
        for h_ in range(2):
            A_ = ACCc + 8*h_; Xr = T + 4*h_; U = T + 8
            for i in range(4): a(f"v_permlane32_swap_b32 v{A_+i}, v{A_+4+i}")
            for i in range(4):
                a(f"v_lshlrev_b32 v{U+2*i}, 16, v{Xr+i}")
                a(f"v_and_b32 v{U+2*i+1}, 0xffff0000, v{Xr+i}")
            for i in range(8): a(f"v_add_f32 v{A_+i}, v{A_+i}, v{U+i}")
            for i in range(4): a(f"v_cvt_pk_bf16_f32 v{Xr+i}, v{A_+2*i}, v{A_+2*i+1}")
            fl_ = "sc1" if "outsc1" in self.opt else ("nt" if "outnt" in self.opt else ("sc0 sc1" if "outsys" in self.opt else ""))
            a(f"buffer_store_dwordx4 v[{Xr}:{Xr+3}], v8, s[{SRD_WF}:{SRD_WF+3}], s34 offen offset:{32*h_} {fl_}")
        a(f"s_cmp_lg_u32 s2, 0")
        a(f"s_cbranch_scc1 {L('cdone')}")
        a(f"s_mov_b32 s29, {FW0}")
        self.signal(29)
        a(f"s_branch {L('cdone')}")
        a.label(L('cprod'))
        for g_ in self.c_pieces(): a(g_)
        a(f"s_mov_b32 s{sCST}, 0")
        a("s_waitcnt vmcnt(9)")
        a("s_barrier")
        for g_ in self.c_pieces(): a(g_)
        a.label(L('ploop'))
        a("s_waitcnt vmcnt(8)")
        a("s_barrier")
        self.pst()
        lskip = L('pskip')
        a(f"s_cmp_ge_u32 s{sISS}, {NST}\ns_cbranch_scc1 {lskip}")
        if "cnodma" in self.opt: a(f"s_add_u32 s{sISS}, s{sISS}, 1")
        else:
            for g_ in self.c_pieces(): a(g_)
        a(f"""
s_branch {L('pnext')}
{lskip}:
s_waitcnt vmcnt(0)
{L('pnext')}:
s_add_u32 s{sCST}, s{sCST}, 1
s_cmp_lt_u32 s{sCST}, {NST}
s_cbranch_scc1 {L('ploop')}
""")
        stamp(10)
        a.label(L('cdone'))

    def build(self):
        a = self.a; L = self.L
        self.prologue()
        a(f"s_cmp_eq_u32 s{sUH}, 0")
        a(f"s_cbranch_scc0 {L('uh1')}")
        self.phaseA(0)
        a(f"s_branch {L('join')}")
        a.label(L('uh1'))
        self.phaseA(1)
        a.label(L('join'))
        self.phaseB()
        self.phaseC()
        if self.stamps:
            a("s_waitcnt vmcnt(0)")
            self.stamp(11)
            a("s_memrealtime s[98:99]")
            a("s_waitcnt lgkmcnt(0)")
            for i in range(1,12): a(f"s_sub_u32 s{70+2*i}, s{70+2*i}, s70")
            a("s_sub_u32 s98, s98, s96")
            a("s_sub_u32 s94, s94, s70")
            a("s_mov_b32 s29, s96")
            a("s_mov_b32 s96, s94")
            a("s_mov_b32 s94, s29")
            a(f"""
s_lshl_b32 s29, s2, 3
s_add_u32 s29, s29, s{sW}
s_lshl_b32 s29, s29, 6
s_add_u32 s29, s29, 0xE00000
""")
            for i in range(1,12): a(f"v_mov_b32 v{7+i}, s{70+2*i}")
            a(f"""
v_mov_b32 v19, s98
v_mov_b32 v20, s96
v_mov_b32 v21, s94
v_mov_b32 v22, s69
v_mov_b32 v23, 0
v_mov_b32 v24, s29
s_mov_b64 exec, 1
global_store_dwordx4 v24, v[8:11], s[20:21]
global_store_dwordx4 v24, v[12:15], s[20:21] offset:16
global_store_dwordx4 v24, v[16:19], s[20:21] offset:32
global_store_dwordx4 v24, v[20:23], s[20:21] offset:48
""")
        a.label(L('bail'))
        a.label(L('end'))
        a("s_endpgm")
        return kernel_text(self.name, a.text(), vgpr=256, sgpr=100)

HDR = open("parallel_sum__mha_block__glu_gated_swiglu__prompt.s.ref").read().split("; Override launch geometry")[0]
def make(stamps=False, opt=(), name=KNAME):
    s = HDR + f"; @launch grid=(256,1,1) block=(512,1,1) lds={LDS_TOTAL}\n"
    s += '.amdgcn_target "amdgcn-amd-amdhsa--gfx950"\n'
    s += Gen(name, stamps, opt).build()
    return s
if __name__ == "__main__":
    open("pk.s","w").write(make())
```

```python
from asmlib import *
import struct
QF, KF, VF, HF, OF, WSEND = 0, 0x200000, 0x400000, 0x600000, 0xB60000, 0xD60000
SLOT = 28672
MISC = 131072
STAT = MISC
CSP  = MISC + 1024
VSCR = MISC + 4096
EX   = MISC
FLAG = MISC + 20480
LDS_TOTAL = MISC + 4096 + 4*6144
FL = 0xD60000
F1, F2, F3, FW0 = FL, FL + 4096, FL + 8192, FL + 12288
CQ_BITS = 0x3EB8AA3B
KNAME = "parallel_sum__mha_block__glu_gated_swiglu__prompt_kernel"

def mfma(d, a, b, c):
    cc = vr(c, 16) if c is not None else "0"
    return f"v_mfma_f32_32x32x16_bf16 {vr(d,16)}, {vr(a,4)}, {vr(b,4)}, {cc}"
def smf(d, a, b, idx):
    return f"v_smfmac_f32_32x32x32_bf16 {vr(d,16)}, {vr(a,4)}, {vr(b,8)}, v{idx}"
def mf4(d, a, b):
    return f"v_mfma_f32_4x4x4_16b_bf16 {vr(d,4)}, {vr(a,2)}, {vr(b,2)}, {vr(d,4)}"

SRD_X, SRD_WQ, SRD_WF, SRD_WS = 8, 12, 16, 20
SRD_W3 = 4
sW, sTB, sUH, sCS, sRB = 24, 25, 26, 27, 28
pOUT, pW2, pWO, pDBG = 36, 38, 40, 42
sXD, sWD, sFD, sFB, sTBG = 44, 45, 46, 47, 48
sHD, sQB, sSRC, sDST, sSTG, sREDO, sTB0 = 49, 50, 51, 52, 53, 54, 55
sMASK = 56
sRB64, sCB, sAOFF, sALT, sLOFF, sISS, sTMP, sCST = 58, 59, 60, 61, 62, 63, 64, 65
sSPIN = 66
sWOFF, sWL = 67, 68
sK0D, sK0S = 67, 68
sTAG = 3
sWB = 35
sVER = 42
sWM = 33
sA2 = 43
X = 8; ACC = 136; WF = 200; CSA = 216; SEL = 232
AW = 236; AX = 240; VX = 244; VW = 246; VFo = 232
vNM, vS, vR = 251, 252, 253
vPOLL = 254
vL16 = 255

class Gen:
    def __init__(self, name=KNAME, stamps=False, opt=(), prefix="L"):
        self.a = Asm(); self.name = name; self.stamps = stamps; self.opt = set(opt); self.prefix = prefix
    def L(self, s): return f"{self.prefix}_{s}"
    def stamp(self, i, c=False):
        if ("cst2" in self.opt or "cst3" in self.opt or "pst" in self.opt) and 1 <= i <= 7: return
        if "cstamps" in self.opt and (1 <= i <= 7) != c:
            if not (i == 0 or i >= 8): return
            if c: return
        if self.stamps: self.a(f"{'s_memrealtime' if 'rt' in self.opt else 's_memtime'} s[{70+2*i}:{71+2*i}]")

    def signal(self, off_sgpr):
        a = self.a; l = a.newlabel(self.L("sig"))
        a(f"""
s_cmp_lg_u32 s{sW}, 0
s_cbranch_scc1 {l}
v_mov_b32 v5, s{off_sgpr}
v_mov_b32 v6, s{sTAG}
s_mov_b64 exec, 1
global_store_dword v5, v6, s[{SRD_WS}:{SRD_WS+1}] sc1
s_mov_b64 exec, -1
{l}:
""")
    def poll_issue(self, vaddr):
        a = self.a; l = a.newlabel(self.L("pi"))
        a(f"""
s_cmp_lg_u32 s{sW}, 0
s_cbranch_scc1 {l}
global_load_dword v{vPOLL}, v{vaddr}, s[{SRD_WS}:{SRD_WS+1}] sc1
{l}:
""")
    def poll_check(self, vaddr, site=0, wait=True):
        a = self.a; ok = a.newlabel(self.L("pok")); sp = a.newlabel(self.L("psp")); bail = self.L("bail")
        a(f"""
s_cmp_lg_u32 s{sW}, 0
s_cbranch_scc1 {ok}
s_mov_b32 s{sSPIN}, 0
""")
        if wait is True: a("s_waitcnt vmcnt(0)")
        elif wait: a(f"s_waitcnt vmcnt({wait})")
        a(f"""
{sp}:
v_cmp_ne_u32 vcc, s{sTAG}, v{vPOLL}
s_nop 4
s_cmp_eq_u64 vcc, 0
s_cbranch_scc1 {ok}
s_add_u32 s{sSPIN}, s{sSPIN}, 1
s_cmp_gt_u32 s{sSPIN}, 0x8000
s_cbranch_scc1 {bail}
s_sleep 1
global_load_dword v{vPOLL}, v{vaddr}, s[{SRD_WS}:{SRD_WS+1}] sc1
s_waitcnt vmcnt(0)
s_branch {sp}
{ok}:
""")
        if self.stamps:
            if site == 2: self.stamp(12)

    def prologue(self):
        a = self.a; L = self.L
        a(f"""
s_cmp_ge_u32 s2, 256
s_cbranch_scc1 {L('end')}
s_load_dwordx4 s[4:7], s[0:1], 0
s_load_dwordx4 s[60:63], s[0:1], 32
s_load_dwordx2 s[{pW2}:{pW2+1}], s[0:1], 48
s_load_dwordx2 s[{pWO}:{pWO+1}], s[0:1], 16
s_load_dwordx4 s[64:67], s[0:1], 56
s_load_dwordx2 s[68:69], s[0:1], 72
""")
        if self.stamps:
            a(f"{'s_memrealtime' if 'rt' in self.opt else 's_memtime'} s[70:71]")
            a("s_memrealtime s[96:97]")
        a(f"""
v_lshrrev_b32 v1, 6, v0
v_and_b32 v0, 63, v0
s_and_b32 s29, s2, 7
v_readfirstlane_b32 s{sW}, v1
s_lshr_b32 s30, s2, 3
s_and_b32 s31, s29, 1
s_lshl_b32 s31, s31, 3
s_and_b32 s32, s30, 7
s_add_u32 s{sRB}, s31, s32
s_lshr_b32 s31, s29, 1
s_lshl_b32 s31, s31, 2
s_lshr_b32 s33, s30, 3
s_add_u32 s{sCS}, s31, s33
s_lshl_b32 s31, s29, 2
s_add_u32 s{sHD}, s31, s33
s_mov_b32 s{sQB}, s32
s_mov_b32 s{sRB64}, s{sHD}
s_mov_b32 s{sCB}, s32
v_lshlrev_b32 v{vL16}, 4, v0
v_mov_b32 v7, 0
s_and_b32 s{sTB}, s{sW}, 3
s_lshr_b32 s{sUH}, s{sW}, 2
s_lshl_b32 s{sTBG}, s{sRB}, 2
s_add_u32 s{sTBG}, s{sTBG}, s{sTB}
""")
        a(f"""
v_lshrrev_b32 v1, 3, v0
s_lshl_b32 s29, s{sRB}, 7
s_lshl_b32 s30, s{sTB}, 5
s_add_u32 s29, s29, s30
v_add_u32 v1, s29, v1
v_lshlrev_b32 v1, 10, v1
v_lshrrev_b32 v2, 4, v0
v_and_b32 v3, 7, v0
v_xor_b32 v4, v2, v3
v_lshl_add_u32 v{VX}, v4, 4, v1
v_xor_b32 v4, 4, v4
v_lshl_add_u32 v{VX+1}, v4, 4, v1
v_add_u32 v{VX+1}, 8192, v{VX+1}
s_mul_i32 s31, s{sCS}, 192
s_mul_i32 s29, s{sTB}, {16*3072}
s_add_u32 s{sWB}, s29, s31
s_mov_b32 s32, 43691
s_movk_i32 s33, 3072
""")
        for q in range(3):
            a(f"""
v_add_u32 v1, {64*q}, v0
v_mul_u32_u24 v2, s32, v1
v_lshrrev_b32 v2, 19, v2
v_mul_u32_u24 v3, 12, v2
v_sub_u32 v3, v1, v3
v_mul_u32_u24 v2, s33, v2
v_lshl_add_u32 v{VW+q}, v3, 4, v2
""")
        a(f"""
s_mul_i32 s30, s{sTB}, 3072
s_add_u32 s{sWD}, s30, 16384
s_lshl_b32 s{sXD}, s{sTB}, 12
s_waitcnt lgkmcnt(0)
s_mov_b32 s{SRD_X}, s4
s_mov_b32 s{SRD_X+1}, s5
s_mov_b32 s{SRD_X+2}, {2048*1024}
s_mov_b32 s{SRD_X+3}, 0x20000
s_mov_b32 s{SRD_WQ}, s6
s_mov_b32 s{SRD_WQ+1}, s7
s_mov_b32 s{SRD_WQ+2}, {512*3072}
s_mov_b32 s{SRD_WQ+3}, 0x20000
s_mov_b32 s{SRD_WF}, s60
s_mov_b32 s{SRD_WF+1}, s61
s_mov_b32 s{SRD_WF+2}, {512*2752}
s_mov_b32 s{SRD_WF+3}, 0x20000
s_mov_b32 s{SRD_WS}, s68
s_mov_b32 s{SRD_WS+1}, s69
s_mov_b32 s{SRD_WS+2}, {WSEND}
s_mov_b32 s{SRD_WS+3}, 0x20000
s_mov_b32 s{pOUT}, s64
s_mov_b32 s{pOUT+1}, s65
s_mov_b32 s{sVER}, 0
s_add_u32 s30, s68, {FW0}
s_addc_u32 s31, s69, 0
s_load_dword s{sTAG}, s[30:31], 0
s_mov_b32 s{SRD_W3}, s62
s_mov_b32 s{SRD_W3+1}, s63
s_mov_b32 s{SRD_W3+2}, {512*2752}
s_mov_b32 s{SRD_W3+3}, 0x20000
""")

    def prologue2(self):
        a = self.a
        a(f"s_movk_i32 s33, 2752")
        a(f"s_mov_b32 s32, 43691")
        for q in range(3):
            a(f"""
v_add_u32 v1, {64*q}, v0
v_mul_u32_u24 v2, s32, v1
v_lshrrev_b32 v2, 19, v2
v_mul_u32_u24 v3, 12, v2
v_sub_u32 v3, v1, v3
""")
            if "f16" in self.opt or "f16all" in self.opt:
                a("v_bfe_u32 v4, v2, 3, 1\nv_lshlrev_b32 v4, 1, v4")
                if "f16all" not in self.opt:
                    a("v_cmp_gt_u32 vcc, 8, v3\ns_nop 1\nv_cndmask_b32 v4, 0, v4, vcc")
                a("v_xor_b32 v4, v4, v3")
            else: a("v_mov_b32 v4, v3")
            a(f"""
v_mul_u32_u24 v2, s33, v2
v_lshl_add_u32 v{VFo+q}, v4, 4, v2
""")
            if "nozero" not in self.opt:
                a(f"""
v_lshrrev_b32 v3, 2, v3
s_mul_i32 s29, s{sCS}, 3
v_add_u32 v3, s29, v3
v_cmp_lt_u32 vcc, 42, v3
v_mov_b32 v2, 0x7ff00000
s_nop 0
v_cndmask_b32 v{VFo+q}, v{VFo+q}, v2, vcc
""")
        a(f"""
s_mul_i32 s31, s{sCS}, 192
s_mul_i32 s{sFD}, s{sTB}, 3072
s_mul_i32 s29, s{sTB}, {16*2752}
s_add_u32 s{sFB}, s29, s31
v_and_b32 v1, 31, v0
v_lshrrev_b32 v2, 5, v0
s_lshl_b32 s29, s{sTB}, 5
v_add_u32 v3, s29, v1
v_lshlrev_b32 v3, 7, v3
v_lshlrev_b32 v4, 2, v2
v_or_b32 v4, s{sTB}, v4
v_bfe_u32 v5, v1, 1, 3
v_xor_b32 v4, v4, v5
v_lshl_add_u32 v{AX}, v4, 4, v3
v_xor_b32 v{AX+1}, 16, v{AX}
v_xor_b32 v{AX+2}, 32, v{AX}
v_xor_b32 v{AX+3}, 48, v{AX}
v_lshlrev_b32 v3, 5, v2
v_bfe_u32 v4, v0, 2, 2
v_add_u32 v3, v3, v4
v_mul_u32_u24 v3, 0xc0, v3
v_bfe_u32 v4, v0, 4, 1
v_lshl_add_u32 v3, v4, 5, v3
v_and_b32 v4, 3, v0
v_lshl_add_u32 v3, v4, 3, v3
""")
        for j in range(4):
            a(f"s_xor_b32 s29, s{sTB}, {j}")
            a(f"s_mul_i32 s29, s29, 1536")
            a(f"v_add_u32 v{AW+j}, s29, v3")

    def mall_prefetch(self, which):
        a = self.a; L = self.L
        def one(tb, srd, n, glob=False):
            l = a.newlabel(L("mpf"))
            t = f"s_cmp_lg_u32 s{sTB}, {tb}\ns_cbranch_scc1 {l}\n"
            t += f"s_mul_i32 s29, s2, {n}\nv_add_u32 v1, s29, v0\nv_lshlrev_b32 v1, 7, v1\n"
            if n < 64: t += f"s_mov_b32 s30, {hex((1 << min(n,32)) - 1)}\ns_mov_b32 s31, {hex((1 << max(n-32,0)) - 1)}\ns_mov_b64 exec, s[30:31]\n"
            if glob: t += f"global_load_dword v250, v1, s[{srd}:{srd+1}]\n"
            else: t += f"buffer_load_dword v250, v1, s[{srd}:{srd+3}], 0 offen {'nt' if 'pnt' in self.opt else ''}\n"
            t += f"s_mov_b64 exec, -1\n{l}:"
            a(t)
        if "x" in which: one(0, SRD_X, 64); one(1, SRD_WQ, 48)
        if "f" in which: one(2, SRD_WF, 43); one(3, SRD_W3, 43)

    def code_prefetch(self):
        a = self.a; L = self.L
        l, here = a.newlabel(L("cpf")), a.newlabel(L("here"))
        a(f"""
s_cmp_lg_u32 s{sTB}, 2
s_cbranch_scc1 {l}
s_getpc_b64 s[30:31]
{here}:
s_sub_u32 s30, s30, {here}-{self.name}
s_subb_u32 s31, s31, 0
s_lshr_b32 s29, s2, 3
s_mul_i32 s29, s29, 10
v_add_u32 v1, s29, v0
v_min_u32 v1, ({L('end')}-{self.name})/128, v1
v_lshlrev_b32 v1, 7, v1
s_mov_b64 exec, 0x3ff
global_load_dword v250, v1, s[30:31]
s_mov_b64 exec, -1
{l}:
""")

    def l2_pf_qkv(self):
        a = self.a; D = 250
        l3, ld = a.newlabel(self.L("pf3")), a.newlabel(self.L("pfd"))
        a(f"""
s_cmp_eq_u32 s{sTB}, 3
s_cbranch_scc1 {l3}
s_and_b32 s29, s{sCS}, 3
s_lshl_b32 s29, s29, 5
s_lshl_b32 s30, s{sRB}, 7
s_add_u32 s29, s29, s30
v_and_b32 v1, 31, v0
v_add_u32 v1, s29, v1
v_lshlrev_b32 v1, 10, v1
v_lshrrev_b32 v2, 5, v0
s_lshl_b32 s30, s{sTB}, 1
s_add_u32 s30, s30, 3
v_add_u32 v2, s30, v2
v_min_u32 v2, 7, v2
v_lshl_add_u32 v1, v2, 7, v1
buffer_load_dword v{D}, v1, s[{SRD_X}:{SRD_X+3}], 0 offen
s_branch {ld}
{l3}:
s_and_b32 s29, s{sRB}, 7
s_mul_i32 s29, s29, 40
s_add_u32 s29, s29, 192
v_lshrrev_b32 v1, 1, v0
v_add_u32 v1, s29, v1
s_movk_i32 s30, 3072
v_mul_lo_u32 v1, s30, v1
v_and_b32 v2, 1, v0
v_lshl_add_u32 v1, v2, 7, v1
s_mul_i32 s30, s{sCS}, 192
buffer_load_dword v{D}, v1, s[{SRD_WQ}:{SRD_WQ+3}], s30 offen
v_add_u32 v1, {32*3072}, v1
s_mov_b32 exec_hi, 0
s_mov_b32 exec_lo, 0xffff
buffer_load_dword v{D}, v1, s[{SRD_WQ}:{SRD_WQ+3}], s30 offen
s_mov_b64 exec, -1
{ld}:
""")
    def l2_pf_ffn(self):
        a = self.a; D = 250
        a(f"""
s_and_b32 s29, s{sRB}, 7
s_lshl_b32 s29, s29, 6
s_lshl_b32 s30, s{sTB}, 4
s_add_u32 s29, s29, s30
v_bfe_u32 v1, v0, 1, 4
v_add_u32 v1, s29, v1
s_movk_i32 s30, 2752
v_mul_lo_u32 v1, s30, v1
v_and_b32 v2, 1, v0
v_lshl_add_u32 v1, v2, 7, v1
s_mul_i32 s30, s{sCS}, 192
s_mov_b32 exec_hi, 0
buffer_load_dword v{D}, v1, s[{SRD_WF}:{SRD_WF+3}], s30 offen
buffer_load_dword v{D}, v1, s[{SRD_W3}:{SRD_W3+3}], s30 offen
s_mov_b64 exec, -1
""")

    def phaseA(self, uh):
        a = self.a; L = self.L; opt = self.opt; stamp = self.stamp
        lg, vm = a.lg, a.vm
        lg.reset(); vm.reset()
        P = f"u{uh}"
        CS = CSA
        CT = CSA + 8
        def dma_pieces(gs):
            if gs > 15 or ("nodma" in opt and gs >= 3): return []
            sb = (gs % 4) * SLOT
            out = []
            def piece(m0base, m0off, static_soff, sreg_base, vreg, srd):
                def f():
                    a(f"s_add_u32 m0, s{m0base}, {m0off}")
                    if sreg_base is None: a(f"s_mov_b32 s29, {static_soff}")
                    else: a(f"s_add_u32 s29, s{sreg_base}, {static_soff}")
                    a(f"buffer_load_dwordx4 v{vreg}, s[{srd}:{srd+3}], s29 offen {'nt ' if ('ant' in opt or ('antq' in opt and gs < 8) or ('antf' in opt and gs >= 8)) else ''}lds"); vm.issue(f"d{gs}")
                return f
            if uh == 0: return []
            if gs < 8:
                c = gs
                xs = [piece(sXD, sb+q2*2048+p*1024, c*128+q2*16384, None, VX+p, SRD_X) for q2 in range(2) for p in range(2)]
                ws = [piece(sWD, sb+q*1024, c*64*3072, sWB, VW+q, SRD_WQ) for q in range(3)]
                out = [xs[0], ws[0], xs[1], ws[1], xs[2], ws[2], xs[3]]
            else:
                f_ = gs - 8
                for q in range(3):
                    out.append(piece(sFD, sb+q*1024, f_*64*2752, sFB, VFo+q, SRD_WF))
                    out.append(piece(sFD, sb+12288+q*1024, f_*64*2752, sFB, VFo+q, SRD_W3))
            return out
        pending = []
        def dma(gs):
            for p in dma_pieces(gs): p()
        def dma_one():
            if pending: pending.pop(0)()
        def xreg(ks): return X + 4*ks
        f16 = ("f16" in opt and uh == 0) or "f16all" in opt
        def xconv(u, part=None):
            r0 = xreg(2*u)
            for i in (range(4) if part is None else part): a(f"v_permlane16_swap_b32 v{r0+i}, v{r0+4+i}")
        def bump(reg, gs):
            if gs % 4 == 1: a(f"v_add_u32 v{reg}, {2*SLOT}, v{reg}")
            if gs % 4 == 3: a(f"v_subrev_u32 v{reg}, {2*SLOT}, v{reg}")
        def wread(dst, gs, j, off, tag):
            imm = (gs & 1)*SLOT + off
            a(f"ds_read_b64_tr_b16 {vr(dst,2)}, v{AW+j} offset:{imm}"); lg.issue(tag)
            a(f"ds_read_b64_tr_b16 {vr(dst+2,2)}, v{AW+j} offset:{imm+768}"); lg.issue(tag)
        SELR = CSA + 12 if uh == 0 else ACC + 48
        def sel_init(r):
            a(f"""
v_and_b32 v1, 15, v0
v_bfe_u32 v2, v0, 4, 1
v_cmp_eq_u32 vcc, v1, v2
v_mov_b32 v3, 0x3f803f80
s_nop 0
v_cndmask_b32 v{r}, 0, v3, vcc
v_mov_b32 v{r+1}, v{r}
v_mov_b32 v{r+2}, v{r}
v_mov_b32 v{r+3}, v{r}
""")
        def sel(t, frag, selr):
            if "nocs" in opt: return
            a(f"v_mfma_f32_16x16x32_bf16 {vr(CS+4*t,4)}, {vr(selr,4)}, {vr(frag,4)}, {vr(CS+4*t,4)}")
        def midbar(gs):
            vm.wait(f"d{gs+1}")
            if gs == 10: vm.wait("st")
            if "nobar" not in opt: a("s_barrier")
            if gs == 10:
                a(f"s_lshl_b32 s29, s{sCS}, 7")
                a(f"s_lshl_b32 s30, s{sRB}, 2")
                a(f"s_add_u32 s29, s29, s30")
                a(f"s_add_u32 s29, s29, {F1}")
                self.signal(29)
            assert not pending
            pending.extend(dma_pieces(gs+3))
            if gs == 14 and uh == 0 and "nokvpf" not in opt:
                l = a.newlabel(L("kvpf"))
                a(f"""
s_cmp_lg_u32 s{sW}, 0
s_cbranch_scc1 {l}
s_waitcnt vmcnt(0)
v_cmp_ne_u32 vcc, s{sTAG}, v{vPOLL}
s_nop 4
s_cmp_eq_u64 vcc, 0
s_cbranch_scc0 {l}
s_lshl_b32 s29, s{sHD}, 16
s_lshl_b32 s30, s{sQB}, 13
s_add_u32 s29, s29, s30
v_lshlrev_b32 v1, 7, v0
buffer_load_dword v244, v1, s[{SRD_WS}:{SRD_WS+3}], s29 offen
s_add_u32 s29, s29, {KF}
buffer_load_dword v245, v1, s[{SRD_WS}:{SRD_WS+3}], s29 offen
s_add_u32 s29, s29, {VF-KF}
buffer_load_dword v246, v1, s[{SRD_WS}:{SRD_WS+3}], s29 offen
s_mov_b32 s{sVER}, 1
{l}:
""")
            if gs == 12 and uh == 0:
                a(f"""
s_lshr_b32 s29, s{sHD}, 1
v_and_b32 v1, 48, v0
v_min_u32 v1, 32, v1
v_add_u32 v1, s29, v1
v_mul_u32_u24 v1, 0x5556, v1
v_lshrrev_b32 v1, 16, v1
v_lshlrev_b32 v1, 7, v1
v_and_b32 v7, 15, v0
v_lshl_add_u32 v7, v7, 2, v1
v_add_u32 v7, {F1}, v7
""")
                self.poll_issue(7)
        def csp_write(tiles, t0):
            a(f"v_lshlrev_b32 v1, 4, v0")
            a(f"s_lshl_b32 s29, s{sTB}, 2")
            a(f"s_add_u32 s29, s29, {CSP + t0*512}")
            a(f"v_add_u32 v1, s29, v1")
            a("s_mov_b64 exec, 0xffff")
            for t in range(tiles):
                a(f"ds_write_b32 v1, v{CS+4*t} offset:{t*512}"); lg.issue("csp")
                a(f"ds_write_b32 v1, v{CS+4*t+1} offset:{t*512+256}"); lg.issue("csp")
            a("s_mov_b64 exec, -1")

        S2, S2b, S1, S1b, ONES = ACC+48, ACC+52, ACC+56, ACC+60, 248
        sHI = 34
        for gs in range(3): dma(gs)
        if uh == 0 and "tlb" in opt:
            a(f"""
v_and_b32 v1, 1, v0
v_lshlrev_b32 v1, 20, v1
s_mov_b64 exec, 3
buffer_load_dword v250, v1, s[{SRD_WF}:{SRD_WF+3}], 0 offen
buffer_load_dword v250, v1, s[{SRD_W3}:{SRD_W3+3}], 0 offen
global_load_dword v250, v1, s[{pW2}:{pW2+1}]
s_mov_b64 exec, 1
global_load_dword v250, v1, s[{pWO}:{pWO+1}]
global_load_dword v250, v1, s[{pOUT}:{pOUT+1}]
s_mov_b64 exec, -1
""")
        if uh == 0 and "nompx" not in opt and "mpx1" not in opt: self.mall_prefetch("x")
        if uh == 0 and "nocode" not in opt: self.code_prefetch()
        self.prologue2()
        a(f"s_mov_b32 s{sHI}, 0xffff0000")
        if uh == 0:
            for i in range(64): a(f"v_mov_b32 v{ACC+i}, 0")
            for i in range(12): a(f"v_mov_b32 v{CS+i}, 0")
            for i in range(2): a(f"v_mov_b32 v{ONES+i}, 0x3f803f80")
            sel_init(SELR)
        a(f"""
s_waitcnt lgkmcnt(0)
s_mul_i32 s{sTAG}, s{sTAG}, 0x9E3779B1
s_add_u32 s{sTAG}, s{sTAG}, 0x7F4A7C15
""")
        vm.wait("d0")
        a("s_barrier")
        stamp(1)
        def xread(ks):
            c, j = ks >> 2, ks & 3
            a(f"ds_read_b128 {vr(xreg(ks),4)}, v{AX+j} offset:{(c&1)*SLOT}"); lg.issue(f"x{ks}")
            bump(AX+j, c)
        if uh == 1:
            for ks in range(32):
                c, j = ks >> 2, ks & 3
                if j == 2:
                    if c > 0: lg.wait(f"x{4*c-1}")
                    midbar(c)
                xread(ks)
                dma_one(); dma_one()
            while pending: dma_one()
            stamp(2)
            a("s_waitcnt lgkmcnt(0)"); lg.reset()
            if f16:
                for u in range(8): xconv(u)
            a("s_barrier")
            if f16:
                for u in range(8, 16): xconv(u)
            else:
                a(f"""
v_and_b32 v1, 31, v0
s_lshl_b32 s29, s{sTB}, 5
v_add_u32 v1, s29, v1
v_lshlrev_b32 v1, 3, v1
v_add_u32 v1, {STAT}, v1
ds_read_b64 v[2:3], v1
v_cmp_gt_u32 vcc, 32, v0
s_waitcnt lgkmcnt(0)
v_mov_b32 v{vS}, v3
v_rcp_f32 v{vR}, v3
v_cndmask_b32 v{vNM}, 0, v2, vcc
""")
        else:
            QS = [[WF, WF+4, WF+8], [WF+12, SEL, 244]]
            def qread(ks, part):
                c, j = ks >> 2, ks & 3
                if part == 0: xread(ks)
                wread(QS[ks & 1][part], c, j, 16384 + part*64, f"w{ks}_{part}")
                if part == 2: bump(AW+j, c)
            for p_ in range(3): qread(0, p_)
            if "mpx1" in opt: self.mall_prefetch("x")
            if "pf" in opt: self.l2_pf_qkv()
            for ks in range(32):
                c, j = ks >> 2, ks & 3
                if ks == 8 and ("pf" in opt or "pff" in opt): self.l2_pf_ffn()
                if ks == (8 if "mf8" in opt else 4) and "nomf" not in opt: self.mall_prefetch("f")
                if j == 3: midbar(c)
                fr = QS[ks & 1]; xr = xreg(ks)
                for t in range(3):
                    lg.wait(f"x{ks}", f"w{ks}_{t}")
                    a(mfma(ACC+16*t, fr[t], xr, ACC+16*t))
                    if ks + 1 < 32: qread(ks+1, t)
                if j < 3: sel(j, fr[j], SELR)
                if f16 and c > 0: xconv(2*(c-1) + (j >> 1), (0, 1) if (j & 1) == 0 else (2, 3))
                if j == 3 and "nomf4" not in opt:
                    for q in range(4):
                        x4 = xreg(4*c+q)
                        a(mf4(S2, x4, x4)); a(mf4(S1, x4, ONES)); a(mf4(S2b, x4+2, x4+2)); a(mf4(S1b, x4+2, ONES))
            if f16: xconv(14); xconv(15)
            else: a.nop(2)
            csp_write(3, 0)
            if "pfdummy" in opt: pass
            stamp(2)
            T = WF
            a.nop(4)
            for i in range(4):
                a(f"v_add_f32 v{S2+i}, v{S2+i}, v{S2b+i}")
                a(f"v_add_f32 v{S1+i}, v{S1+i}, v{S1b+i}")
            a(f"""
v_and_b32 v1, 3, v0
v_cmp_eq_u32 vcc, 1, v1
v_cmp_eq_u32 s[30:31], 2, v1
v_cmp_eq_u32 s[32:33], 3, v1
s_nop 1
v_cndmask_b32 v{S2}, v{S2}, v{S2+1}, vcc
v_cndmask_b32 v{S1}, v{S1}, v{S1+1}, vcc
v_cndmask_b32 v{S2}, v{S2}, v{S2+2}, s[30:31]
v_cndmask_b32 v{S1}, v{S1}, v{S1+2}, s[30:31]
v_cndmask_b32 v{S2}, v{S2}, v{S2+3}, s[32:33]
v_cndmask_b32 v{S1}, v{S1}, v{S1+3}, s[32:33]
v_and_b32 v1, 31, v0
s_lshl_b32 s29, s{sTB}, 5
v_mov_b32 v{S1+1}, v{S1}
v_mov_b32 v{S2+1}, v{S2}
v_add_u32 v1, s29, v1
v_lshlrev_b32 v1, 3, v1
v_permlane32_swap_b32 v{S1}, v{S1+1}
v_permlane32_swap_b32 v{S2}, v{S2+1}
v_add_u32 v1, {STAT}, v1
s_nop 0
v_add_f32 v{S1}, v{S1}, v{S1+1}
v_add_f32 v{S2}, v{S2}, v{S2+1}
v_mul_f32 v{S1}, 0x3b000000, v{S1}
v_mul_f32 v{S2}, 0x3b000000, v{S2}
v_fma_f32 v{S2}, -v{S1}, v{S1}, v{S2}
v_max_f32 v{S2}, 0, v{S2}
v_cvt_pk_bf16_f32 v{T}, v{S1}, v{S1}
v_cvt_pk_bf16_f32 v{T+1}, v{S2}, v{S2}
v_xor_b32 v{T}, 0x80008000, v{T}
v_lshlrev_b32 v{T+1}, 16, v{T+1}
v_add_f32 v{T+1}, 0x3727c5ac, v{T+1}
v_cvt_pk_bf16_f32 v{T+1}, v{T+1}, v{T+1}
v_lshlrev_b32 v{T+1}, 16, v{T+1}
v_sqrt_f32 v{T+1}, v{T+1}
v_cmp_gt_u32 vcc, 32, v0
v_cvt_pk_bf16_f32 v{T+1}, v{T+1}, v{T+1}
v_lshlrev_b32 v{T+1}, 16, v{T+1}
s_mov_b32 exec_hi, 0
ds_write_b64 v1, {vr(T,2)}
s_mov_b64 exec, -1
v_mov_b32 v{vS}, v{T+1}
v_rcp_f32 v{vR}, v{T+1}
v_cndmask_b32 v{vNM}, 0, v{T}, vcc
v_and_b32 v4, 31, v0
v_lshlrev_b32 v4, 4, v4
v_add_u32 v4, {CSP}, v4
""")
            a("s_waitcnt lgkmcnt(0)"); lg.reset()
            a("s_barrier")
        def rank1(tiles, t0, accs, frs, xn, stat=False):
            for t in range(tiles):
                a(f"ds_read_b128 {vr(frs[t],4)}, v4 offset:{(t0+t)*512}")
            if stat:
                a(f"""
s_waitcnt lgkmcnt({tiles})
v_mov_b32 v{vS}, v3
v_rcp_f32 v{vR}, v3
v_cndmask_b32 v{vNM}, 0, v2, vcc
""")
            a(f"""
v_mov_b32 v{xn+1}, 0
v_mov_b32 v{xn+2}, 0
v_mov_b32 v{xn+3}, 0
v_mov_b32 v{xn}, v{vNM}
""")
            for t in range(tiles):
                f = frs[t]
                a(f"s_waitcnt lgkmcnt({tiles-1-t})")
                a(f"v_add_f32 v{f}, v{f}, v{f+1}")
                a(f"v_add_f32 v{f+2}, v{f+2}, v{f+3}")
                a(f"v_mov_b32 v{f+3}, 0")
                a(f"v_add_f32 v{f}, v{f}, v{f+2}")
                a(f"v_cvt_pk_bf16_f32 v{f+1}, v{f}, v{f}")
                a(f"v_lshlrev_b32 v{f+1}, 16, v{f+1}")
                a(f"v_sub_f32 v{f+2}, v{f}, v{f+1}")
                a(f"v_cvt_pk_bf16_f32 v{f}, v{f+1}, v{f+2}")
                a(f"v_mov_b32 v{f+1}, 0")
                a(f"v_mov_b32 v{f+2}, 0")
                a("s_nop 1")
                a(mfma(accs[t], frs[t], xn, accs[t]))
        if uh == 0:
            rank1(3, 0, [ACC, ACC+16, ACC+32], [WF, WF+4, WF+8], WF+12)
            a.nop(6)
            PK = [WF, WF+8, CSA]
            sB = [66, 69, 43]
            nva = L(f"{P}_nva")
            a(f"""
s_cmp_lt_u32 s{sCS}, 10
s_cbranch_scc1 {nva}
s_mul_i32 s33, s{sTB}, 6144
s_add_u32 s33, s33, {VSCR}
v_and_b32 v1, 31, v0
v_lshlrev_b32 v1, 6, v1
v_lshrrev_b32 v2, 5, v0
v_lshl_add_u32 v1, v2, 3, v1
v_bfe_u32 v7, v0, 1, 2
v_lshl_add_u32 v1, v7, 4, v1
v_add_u32 v1, s33, v1
v_lshlrev_b32 v5, 3, v2
v_bfe_u32 v3, v0, 2, 2
v_add_u32 v5, v5, v3
v_lshlrev_b32 v5, 6, v5
v_bfe_u32 v3, v0, 4, 1
v_lshl_add_u32 v5, v3, 5, v5
v_and_b32 v7, 3, v0
v_lshl_add_u32 v5, v7, 3, v5
v_bfe_u32 v7, v0, 3, 1
v_lshlrev_b32 v7, 4, v7
v_xor_b32 v5, v7, v5
v_lshlrev_b32 v3, 16, v3
v_lshl_add_u32 v3, v2, 8, v3
v_and_b32 v7, 15, v0
v_lshl_add_u32 v3, v7, 4, v3
v_add_u32 v2, s33, v5
v_xor_b32 v4, 32, v5
v_add_u32 v4, s33, v4
{nva}:
s_mul_i32 s31, s{sCS}, 3
""")
            for t in range(3):
                A_ = ACC + 16*t; Pk = PK[t]
                lv, ld = L(f"{P}_v{t}"), L(f"{P}_d{t}")
                a(f"""
s_add_u32 s30, s31, {t}
s_cmp_lt_u32 s30, 16
s_cselect_b32 s29, {CQ_BITS}, 1.0
v_mul_f32 v6, s29, v{vR}
s_lshl_b32 s{sB[t]}, s30, 17
s_lshl_b32 s32, s{sTBG}, 10
s_add_u32 s{sB[t]}, s{sB[t]}, s32
""")
                if t == 2: a.nop(4)
                for i in range(16): a(f"v_mul_f32 v{A_+i}, v{A_+i}, v6")
                for i in range(8): a(f"v_cvt_pk_bf16_f32 v{Pk+i}, v{A_+2*i}, v{A_+2*i+1}")
                a(f"""
s_cmp_ge_u32 s30, 32
s_cbranch_scc1 {lv}
s_add_u32 s32, s{sB[t]}, 65536
buffer_store_dwordx4 {vr(Pk,4)}, v{vL16}, s[{SRD_WS}:{SRD_WS+3}], s{sB[t]} offen sc1
buffer_store_dwordx4 {vr(Pk+4,4)}, v{vL16}, s[{SRD_WS}:{SRD_WS+3}], s32 offen sc1
s_branch {ld}
{lv}:
""")
                for j in range(4):
                    if j: a(f"v_xor_b32 v5, {16*j}, v1")
                    a(f"ds_write_b64 v{5 if j else 1}, {vr(Pk+2*j,2)} offset:{2048*t}")
                a(f"{ld}:")
            nov = L(f"{P}_nov")
            a(f"""
s_cmp_lt_u32 s{sCS}, 10
s_cbranch_scc1 {nov}
s_waitcnt lgkmcnt(0)
""")
            for t in range(3):
                Pk = PK[t]; l = L(f"{P}_vr{t}")
                if t < 2: a(f"s_cmp_eq_u32 s{sCS}, 10\ns_cbranch_scc1 {l}")
                for q, off in enumerate((0, 256, 1024, 1280)):
                    a(f"ds_read_b64_tr_b16 {vr(Pk+2*q,2)}, v{4 if q & 1 else 2} offset:{2048*t+off}")
                if t < 2: a(f"{l}:")
            a("s_waitcnt lgkmcnt(0)")
            for t in range(3):
                Pk = PK[t]; l = L(f"{P}_vs{t}")
                if t < 2: a(f"s_cmp_eq_u32 s{sCS}, 10\ns_cbranch_scc1 {l}")
                a(f"buffer_store_dwordx4 {vr(Pk,4)}, v3, s[{SRD_WS}:{SRD_WS+3}], s{sB[t]} offen sc1")
                a(f"buffer_store_dwordx4 {vr(Pk+4,4)}, v3, s[{SRD_WS}:{SRD_WS+3}], s{sB[t]} offen offset:512 sc1")
                if t < 2: a(f"{l}:")
            a(f"{nov}:")
            vm.issue("st", 6)
        stamp(3)
        def ffn32():
            nonlocal SELR
            nf = 4 if uh == 0 else 2
            tf0 = 0 if uh == 0 else 4
            def foff(t):
                tt = tf0 + t
                return (tt & 1)*12288 + (tt >> 1)*64
            a("s_nop 1")
            if uh == 0:
                for t in range(4): wread(WF+4*t, 8, 0, foff(t), f"f0_{t}")
            else:
                FS = [[WF, WF+4], [WF+8, WF+12], [ACC+40, ACC+44]]
                def freads(ks):
                    f, j = ks >> 2, ks & 3
                    for t in range(2): wread(FS[ks % 3][t], 8+f, j, foff(t), f"f{ks}")
                    bump(AW+j, 8+f)
                freads(0); freads(1)
            for i in range(16*nf): a(f"v_mov_b32 v{ACC+i}, 0")
            if uh == 0:
                for i in range(12): a(f"v_mov_b32 v{CS+i}, 0")
                for i in range(4): a(f"v_mov_b32 v{SEL+i}, v{CSA+12+i}")
                for i in range(4): a(f"v_mov_b32 v{CS+12+i}, 0")
                SELR = SEL
            else:
                for i in range(8): a(f"v_mov_b32 v{CS+i}, 0")
                sel_init(SELR)
            adds = []
            def flush_adds(n):
                for _ in range(n):
                    if adds: a(adds.pop(0))
            for ks in range(32):
                f, j = ks >> 2, ks & 3
                gs = 8 + f
                if j == 2 and f < 7: midbar(gs)
                if uh == 0:
                    for t in range(4):
                        lg.wait(f"f{ks}_{t}")
                        a(mfma(ACC+16*t, WF+4*t, xreg(ks), ACC+16*t))
                        if j == t: sel(t, WF+4*t, SELR)
                        if ks + 1 < 32:
                            k2 = ks + 1
                            wread(WF+4*t, 8+(k2>>2), k2&3, foff(t), f"f{k2}_{t}")
                    k2 = ks + 1
                    if k2 < 32: bump(AW+(k2&3), 8+(k2>>2))
                else:
                    if ks + 2 < 32: freads(ks+2)
                    lg.wait(f"f{ks}")
                    for t in range(2):
                        a(mfma(ACC+16*t, FS[ks % 3][t], xreg(ks), ACC+16*t))
                        dma_one()
                    if j < 2: sel(j, FS[ks % 3][j], SELR)
            a.nop(8)
            csp_write(nf, tf0)
            stamp(4)
            if uh == 0:
                lv_ = a.newlabel(L("ver"))
                a(f"s_cmp_eq_u32 s{sVER}, 1\ns_cbranch_scc1 {lv_}")
                self.poll_check(7, 0)
                a(f"{lv_}:")
            a("s_waitcnt lgkmcnt(0)"); lg.reset()
            a("s_barrier")
            kv = self.attn_loads(uh)
            def kv_one(n=1):
                for _ in range(n):
                    if kv: a(kv.pop(0))
            XN2 = X
            a(f"""
v_and_b32 v4, 31, v0
v_lshlrev_b32 v4, 4, v4
v_add_u32 v4, {CSP}, v4
""")
            kv_one(2 if uh == 0 else 10)
            rank1(nf, tf0, [ACC+16*t for t in range(nf)], [WF+4*t for t in range(nf)], XN2)
            cA, cB = X+4, X+6
            a(f"""
v_mul_f32 v{cA}, 0xbfb8aa3b, v{vR}
v_mul_f32 v{cB}, v{vS}, v{vS}
""")
            a.nop(12)
            stores = []
            npairs = nf//2
            for i in range(npairs):
                G, U = ACC+32*i, ACC+32*i+16
                T = X + 8 + 32*i; Pk = X + 8 + 32*i + 16
                body = []
                body += [f"v_pk_mul_f32 {vr(T+r,2)}, {vr(G+r,2)}, {vr(cA,2)} op_sel_hi:[1,0]" for r in range(0,16,2)]
                body += [f"v_exp_f32 v{T+r}, v{T+r}" for r in range(16)]
                body += [f"v_pk_mul_f32 {vr(G+r,2)}, {vr(G+r,2)}, {vr(U+r,2)}" for r in range(0,16,2)]
                body += [f"v_pk_fma_f32 {vr(T+r,2)}, {vr(T+r,2)}, {vr(cB,2)}, {vr(cB,2)} op_sel_hi:[1,0,0]" for r in range(0,16,2)]
                body += [f"v_rcp_f32 v{T+r}, v{T+r}" for r in range(16)]
                body += ["s_nop 0"]
                body += [f"v_pk_mul_f32 {vr(G+r,2)}, {vr(G+r,2)}, {vr(T+r,2)}" for r in range(0,16,2)]
                body += [f"v_cvt_pk_bf16_f32 v{Pk+r}, v{G+2*r}, v{G+2*r+1}" for r in range(8)]
                for ins in body: a(ins)
                stores.append((i, Pk))
            for (i, Pk) in stores:
                a(f"""
s_mul_i32 s29, s{sCS}, 3
s_add_u32 s29, s29, {(tf0>>1)+i}
s_mul_i32 s30, s{sTBG}, 86
s_lshl_b32 s31, s29, 1
s_add_u32 s30, s30, s31
s_lshl_b32 s30, s30, 10
s_add_u32 s30, s30, {HF}
s_cmp_ge_u32 s29, 43
s_cselect_b32 s30, {WSEND}, s30
buffer_store_dwordx4 {vr(Pk,4)}, v{vL16}, s[{SRD_WS}:{SRD_WS+3}], s30 offen sc1
buffer_store_dwordx4 {vr(Pk+4,4)}, v{vL16}, s[{SRD_WS}:{SRD_WS+3}], s30 offen offset:1024 sc1
""")
            if uh == 1: self.kv_stage1 = list(kv)

        def ffn16():
            npl = 2 if uh == 0 else 1
            p0 = 0 if uh == 0 else 2
            nfr = 4*npl
            def mf16(d, A, B): return f"v_mfma_f32_16x16x32_bf16 {vr(d,4)}, {vr(A,4)}, {vr(B,4)}, {vr(d,4)}"
            def acc(il, mat, s_, sb): return ACC + 4*(((il*2+mat)*2+s_)*2+sb)
            BW = lambda kk, s_: AW + 2*kk + s_
            a(f"""
v_lshrrev_b32 v1, 5, v0
v_lshlrev_b32 v1, 5, v1
v_bfe_u32 v2, v0, 2, 2
v_add_u32 v1, v1, v2
v_bfe_u32 v3, v0, 4, 1
v_and_b32 v4, 3, v0
v_lshrrev_b32 v5, 1, v4
v_and_b32 v4, 1, v4
v_lshl_or_b32 v4, v4, 1, v5
v_lshlrev_b32 v4, 3, v4
""")
            for kk in range(2):
                a(f"""
v_or_b32 v5, {2*kk}, v3
v_xor_b32 v5, s{sTB}, v5
v_lshl_add_u32 v5, v5, 3, v1
v_mul_u32_u24 v5, 0xc0, v5
v_add_u32 v5, v5, v4
v_lshl_add_u32 v{BW(kk,0)}, v3, 5, v5
v_xor_b32 v6, 1, v3
v_lshl_add_u32 v{BW(kk,1)}, v6, 5, v5
""")
            BUF = [WF, WF+4, WF+8, WF+12]
            def fread(q, half):
                if q >= 16*nfr: return
                u, fr = divmod(q, nfr)
                f, kk = u >> 1, u & 1
                il, mat, s_ = fr >> 2, (fr >> 1) & 1, fr & 1
                imm = ((8+f) & 1)*SLOT + mat*12288 + (p0+il)*64
                d = BUF[q & 3]
                a(f"ds_read_b64_tr_b16 {vr(d+2*half,2)}, v{BW(kk,s_)} offset:{imm+768*half}"); lg.issue(f"g{q}")
                if half == 1 and fr >= nfr-2: bump(BW(kk,s_), 8+f)
            for q in range(3): fread(q, 0); fread(q, 1)
            for i in range(16*2*npl): a(f"v_mov_b32 v{ACC+i}, 0")
            SR = SEL if uh == 0 else ACC + 48
            for i in range(8*npl): a(f"v_mov_b32 v{CS+i}, 0")
            a(f"""
v_and_b32 v1, 15, v0
v_cmp_eq_u32 vcc, 0, v1
v_mov_b32 v3, 0x3f803f80
s_nop 0
v_cndmask_b32 v{SR}, 0, v3, vcc
v_mov_b32 v{SR+1}, v{SR}
v_mov_b32 v{SR+2}, v{SR}
v_mov_b32 v{SR+3}, v{SR}
""")
            for u in range(16):
                f, kk = u >> 1, u & 1
                if kk == 1 and f < 7: midbar(8+f)
                for fr in range(nfr):
                    il, mat, s_ = fr >> 2, (fr >> 1) & 1, fr & 1
                    q = u*nfr + fr
                    b = BUF[q & 3]
                    lg.wait(f"g{q}")
                    a(mf16(acc(il,mat,s_,0), b, xreg(2*u)))
                    fread(q+3, 0)
                    a(mf16(acc(il,mat,s_,1), b, xreg(2*u+1)))
                    fread(q+3, 1)
                    if kk == 0 and s_ == 0 and "nocs" not in opt:
                        t = il*2+mat
                        a(f"v_mfma_f32_16x16x32_bf16 {vr(CS+4*t,4)}, {vr(SR,4)}, {vr(b,4)}, {vr(CS+4*t,4)}")
                    if uh == 1 and fr != 3: dma_one()
            a.nop(8)
            a(f"""
v_lshlrev_b32 v1, 3, v0
s_and_b32 s29, s{sTB}, 1
s_lshl_b32 s29, s29, 7
s_lshr_b32 s30, s{sTB}, 1
s_lshl_b32 s30, s30, 2
s_add_u32 s29, s29, s30
s_add_u32 s29, s29, {CSP + p0*512}
v_add_u32 v1, s29, v1
s_mov_b64 exec, 0xffff
""")
            for t in range(2*npl): a(f"ds_write_b32 v1, v{CS+4*t} offset:{t*256}")
            a("s_mov_b64 exec, -1")
            stamp(4)
            if uh == 0:
                lv_ = a.newlabel(L("ver"))
                a(f"s_cmp_eq_u32 s{sVER}, 1\ns_cbranch_scc1 {lv_}")
                self.poll_check(7, 0)
                a(f"{lv_}:")
            a("s_waitcnt lgkmcnt(0)"); lg.reset()
            a("s_barrier")
            kv = self.attn_loads(uh)
            def kv_one(n=1):
                for _ in range(n):
                    if kv: a(kv.pop(0))
            XN = [X, X+4]; cA = [X+8, X+10]; cB = [X+12, X+14]; vC = [X+16, X+17]
            a(f"""
v_and_b32 v1, 15, v0
s_lshl_b32 s29, s{sTB}, 5
v_add_u32 v2, s29, v1
v_lshlrev_b32 v2, 3, v2
v_add_u32 v2, {STAT}, v2
ds_read_b64 v[{X+20}:{X+21}], v2
ds_read_b64 v[{X+22}:{X+23}], v2 offset:128
v_lshlrev_b32 v1, 3, v1
s_and_b32 s29, s{sTB}, 1
s_lshl_b32 s29, s29, 7
s_add_u32 s30, s29, {CSP + p0*512}
v_add_u32 v{vC[0]}, s30, v1
s_xor_b32 s29, s29, 128
s_add_u32 s30, s29, {CSP + p0*512}
v_add_u32 v{vC[1]}, s30, v1
""")
            kv_one(2 if uh == 0 else 10)
            PR = [X+24+2*k for k in range(4*npl)]
            for t in range(2*npl):
                for s_ in range(2):
                    a(f"ds_read_b64 {vr(PR[t*2+s_],2)}, v{vC[s_]} offset:{t*256}")
            a(f"""
v_cmp_gt_u32 vcc, 16, v0
s_waitcnt lgkmcnt({4*npl})
""")
            for sb in range(2):
                nm, sd = X+20+2*sb, X+21+2*sb
                a(f"""
v_cndmask_b32 v{XN[sb]}, 0, v{nm}, vcc
v_mov_b32 v{XN[sb]+1}, 0
v_mov_b32 v{XN[sb]+2}, 0
v_mov_b32 v{XN[sb]+3}, 0
v_rcp_f32 v{cA[sb]}, v{sd}
v_mul_f32 v{cB[sb]}, v{sd}, v{sd}
""")
            for sb in range(2): a(f"v_mul_f32 v{cA[sb]}, 0xbfb8aa3b, v{cA[sb]}")
            for k in range(1, 4):
                for b_ in BUF: a(f"v_mov_b32 v{b_+k}, 0")
            a("s_waitcnt lgkmcnt(0)")
            for t in range(2*npl):
                for s_ in range(2):
                    pr = PR[t*2+s_]; b_ = BUF[(t*2+s_) & 3]
                    a(f"v_add_f32 v{pr}, v{pr}, v{pr+1}")
                    a(f"v_cvt_pk_bf16_f32 v{pr+1}, v{pr}, v{pr}")
                    a(f"v_lshlrev_b32 v{pr+1}, 16, v{pr+1}")
                    a(f"v_sub_f32 v{pr}, v{pr}, v{pr+1}")
                    a(f"v_cvt_pk_bf16_f32 v{b_}, v{pr+1}, v{pr}")
                    a("s_nop 1")
                    il, mat = t >> 1, t & 1
                    for sb in range(2): a(mf16(acc(il,mat,s_,sb), b_, XN[sb]))
            a.nop(8)
            stores = []
            for il in range(npl):
                T = X + 48 + 32*il; Pk = X + 48 + 32*il + 16
                body = []
                el = [(s_, sb) for s_ in range(2) for sb in range(2)]
                G = lambda s_, sb: acc(il, 0, s_, sb)
                U = lambda s_, sb: acc(il, 1, s_, sb)
                for n_, (s_, sb) in enumerate(el):
                    for r in (0, 2): body.append(f"v_pk_mul_f32 {vr(T+4*n_+r,2)}, {vr(G(s_,sb)+r,2)}, {vr(cA[sb],2)} op_sel_hi:[1,0]")
                body += [f"v_exp_f32 v{T+r}, v{T+r}" for r in range(16)]
                for n_, (s_, sb) in enumerate(el):
                    for r in (0, 2): body.append(f"v_pk_mul_f32 {vr(G(s_,sb)+r,2)}, {vr(G(s_,sb)+r,2)}, {vr(U(s_,sb)+r,2)}")
                for n_, (s_, sb) in enumerate(el):
                    for r in (0, 2): body.append(f"v_pk_fma_f32 {vr(T+4*n_+r,2)}, {vr(T+4*n_+r,2)}, {vr(cB[sb],2)}, {vr(cB[sb],2)} op_sel_hi:[1,0,0]")
                body += [f"v_rcp_f32 v{T+r}, v{T+r}" for r in range(16)]
                body += ["s_nop 0"]
                for n_, (s_, sb) in enumerate(el):
                    for r in (0, 2): body.append(f"v_pk_mul_f32 {vr(G(s_,sb)+r,2)}, {vr(G(s_,sb)+r,2)}, {vr(T+4*n_+r,2)}")
                for n_, (s_, sb) in enumerate(el):
                    for r in range(2): body.append(f"v_cvt_pk_bf16_f32 v{Pk+4*s_+2*sb+r}, v{G(s_,sb)+2*r}, v{G(s_,sb)+2*r+1}")
                body += ["s_nop 1"]
                for s_ in range(2):
                    for r in range(2): body.append(f"v_permlane16_swap_b32 v{Pk+4*s_+r}, v{Pk+4*s_+2+r}")
                for ins in body: a(ins)
                stores.append((il, Pk))
            for (il, Pk) in stores:
                a(f"""
s_mul_i32 s29, s{sCS}, 3
s_add_u32 s29, s29, {p0+il}
s_mul_i32 s30, s{sTBG}, 86
s_lshl_b32 s31, s29, 1
s_add_u32 s30, s30, s31
s_and_b32 s31, s{sTB}, 1
s_add_u32 s32, s30, s31
s_xor_b32 s31, s31, 1
s_add_u32 s30, s30, s31
s_lshl_b32 s32, s32, 10
s_lshl_b32 s30, s30, 10
s_add_u32 s32, s32, {HF}
s_add_u32 s30, s30, {HF}
s_cmp_ge_u32 s29, 43
s_cselect_b32 s32, {WSEND}, s32
s_cselect_b32 s30, {WSEND}, s30
buffer_store_dwordx4 {vr(Pk,4)}, v{vL16}, s[{SRD_WS}:{SRD_WS+3}], s32 offen sc1
buffer_store_dwordx4 {vr(Pk+4,4)}, v{vL16}, s[{SRD_WS}:{SRD_WS+3}], s30 offen sc1
""")
            if uh == 1: self.kv_stage1 = list(kv)
        if f16: ffn16()
        else: ffn32()
        stamp(5)

    BQ = [216, 220]
    def kv_scalars(self):
        self.a(f"""
s_lshl_b32 s33, s{sHD}, 16
s_lshr_b32 s29, s{sW}, 1
s_and_b32 s29, s29, 1
s_and_b32 s30, s{sW}, 1
s_lshl_b32 s30, s30, 2
s_lshl_b32 s31, s{sUH}, 5
s_add_u32 s30, s30, s31
s_lshl_b32 s30, s30, 10
s_lshl_b32 s31, s29, 16
s_add_u32 s{sDST}, s31, s30
s_lshl_b32 s31, s29, 21
s_add_u32 s{sSRC}, s31, s30
s_add_u32 s{sSRC}, s{sSRC}, s33
s_add_u32 s{sSRC}, s{sSRC}, {KF}
""")
    def attn_loads(self, uh):
        a = self.a; Q = self.BQ
        a(f"""
s_lshl_b32 s33, s{sHD}, 16
s_lshl_b32 s{sTB0}, s{sQB}, 3
s_lshl_b32 s29, s{sTB}, 1
s_add_u32 s{sTB0}, s{sTB0}, s29
s_lshl_b32 s29, s{sTB0}, 10
s_add_u32 s69, s33, s29
""")
        self.kv_scalars()
        a(f"s_add_u32 s{sSRC}, s{sSRC}, 16384\ns_add_u32 s{sDST}, s{sDST}, 16384")
        g = []
        g.append(f"buffer_load_dwordx4 {vr(Q[0],4)}, v{vL16}, s[{SRD_WS}:{SRD_WS+3}], s69 offen sc1")
        g.append(f"buffer_load_dwordx4 {vr(Q[1],4)}, v{vL16}, s[{SRD_WS}:{SRD_WS+3}], s69 offen offset:1024 sc1")
        if uh == 1:
            a(f"""
s_and_b32 s29, s{sTB}, 1
s_lshr_b32 s30, s{sTB}, 1
s_lshl_b32 s30, s30, 15
s_lshl_b32 s31, s29, 16
s_add_u32 s{sK0D}, s31, s30
s_lshl_b32 s31, s29, 21
s_add_u32 s{sK0S}, s31, s30
s_add_u32 s{sK0S}, s{sK0S}, s33
s_add_u32 s{sK0S}, s{sK0S}, {KF}
""")
            for h_ in range(4):
                for q in range(4):
                    t = ""
                    if q == 0: t += f"s_mov_b32 m0, s{sK0D}\ns_add_u32 s{sK0D}, s{sK0D}, 4096\n"
                    t += f"buffer_load_dwordx4 v{vL16}, s[{SRD_WS}:{SRD_WS+3}], s{sK0S} offen offset:{q*1024} sc1 lds"
                    if q == 3: t += f"\ns_add_u32 s{sK0S}, s{sK0S}, 4096"
                    g.append(t)
        return g

    def phaseB(self):
        a = self.a; L = self.L; opt = self.opt; stamp = self.stamp
        vAK, vAV, vIDX = 2, 3, 4
        Q = self.BQ; K = [16, 20]; V = [24, 32]; S = [40, 56]; O = [72, 88]; C = [104, 120]; T = 136
        NST = 4
        a("s_nop 1")
        a(f"""
v_mov_b32 v{vIDX}, 0xdddddddd
v_and_b32 v5, 27, v0
v_cmp_eq_u32 vcc, 16, v5
v_mov_b32 v6, 0x3f803f80
s_mov_b32 s{sMASK}, 0x0000ffff
v_cndmask_b32 v{V[0]}, 0, v6, vcc
""")
        for i in range(1,16): a(f"v_mov_b32 v{V[0]+i}, v{V[0]}")
        a(f"""
s_mov_b32 s{sMASK+1}, 0x0000ffff
s_mov_b32 s{sREDO}, 0
s_lshl_b32 s35, s{sUH}, 15
v_lshrrev_b32 v5, 5, v0
v_lshlrev_b32 v5, 8, v5
v_and_b32 v6, 15, v0
v_lshl_add_u32 v5, v6, 4, v5
s_add_u32 s29, s35, 65536
v_add_u32 v1, s29, v5
v_mov_b32 v5, {FLAG}
v_mov_b32 v6, 0
ds_write_b32 v5, v6
""")
        for t in range(2):
            for i in range(16): a(f"v_mov_b32 v{O[t]+i}, 0")
        a(f"""
s_waitcnt vmcnt(4) lgkmcnt(0)
s_cmp_eq_u32 s{sUH}, 0
s_cbranch_scc1 {L('bw0')}
s_waitcnt vmcnt(2)
{L('bw0')}:
s_barrier
""")
        stamp(6)
        a.label(L('redo'))
        a(f"""
s_cmp_eq_u32 s{sREDO}, 0
s_cselect_b32 s29, 1, 32
v_add_u32 v{vAK}, s35, v{vL16}
v_mov_b32 v{T}, 0xff800000
v_mov_b32 v{T+1}, 0xff800000
""")
        a.label(L('maxloop'))
        a(f"""
ds_read_b128 {vr(K[0],4)}, v{vAK}
v_add_u32 v{vAK}, 1024, v{vAK}
s_waitcnt lgkmcnt(0)
{mfma(S[0],K[0],Q[0],None)}
{mfma(S[1],K[0],Q[1],None)}
s_sub_u32 s29, s29, 1
""")
        a.nop(12)
        for i in range(8):
            for t in range(2):
                a(f"v_max3_f32 v{T+t}, v{T+t}, v{S[t]+2*i}, v{S[t]+2*i+1}")
        a(f"""
s_cmp_lg_u32 s29, 0
s_cbranch_scc1 {L('maxloop')}
v_mov_b32 v{T+2}, v{T}
v_mov_b32 v{T+3}, v{T+1}
v_add_u32 v{vAK}, s35, v{vL16}
v_mov_b32 v{vAV}, v1
v_permlane32_swap_b32 v{T}, v{T+2}
v_permlane32_swap_b32 v{T+1}, v{T+3}
s_mov_b64 exec, s[{sMASK}:{sMASK+1}]
ds_read_b128 {vr(V[0],4)}, v{vAV}
ds_read_b128 {vr(V[0]+4,4)}, v{vAV} offset:512
s_mov_b64 exec, -1
v_max_f32 v{T}, v{T}, v{T+2}
v_max_f32 v{T+1}, v{T+1}, v{T+3}
""")
        a(f"ds_read_b128 {vr(K[0],4)}, v{vAK}")
        for i in range(16): a(f"v_sub_f32 v{C[0]+i}, 0, v{T}")
        a("s_waitcnt lgkmcnt(0)")
        a("s_nop 0")
        a(mfma(S[0],K[0],Q[0],C[0]))
        for i in range(16): a(f"v_sub_f32 v{C[1]+i}, 0, v{T+1}")
        for i in range(8,16): a(f"v_mov_b32 v{S[1]+i}, 0")
        def tile(p, off):
            exA = [f"v_exp_f32 v{S[0]+i}, v{S[0]+i}" for i in range(16)]
            exB = [f"v_exp_f32 v{S[1]+i}, v{S[1]+i}" for i in range(16)]
            insA = [
                (3, smf(O[1], V[p^1]+4, S[1]+8, vIDX)),
                (5, mfma(S[1], K[p], Q[1], None if "c0" in opt else C[1])),
                (8, f"ds_read_b128 {vr(K[p^1],4)}, v{vAK} offset:{off}"),
                (8, f"s_mov_b64 exec, s[{sMASK}:{sMASK+1}]"),
                (8, f"ds_read_b128 {vr(V[p^1],4)}, v{vAV} offset:{off}"),
                (8, f"ds_read_b128 {vr(V[p^1]+4,4)}, v{vAV} offset:{off+512}"),
                (8, f"s_mov_b64 exec, -1"),
                (11, smf(O[0], V[p], S[0], vIDX)),
            ]
            insB = [
                (3, smf(O[0], V[p]+4, S[0]+8, vIDX)),
                (5, "s_waitcnt lgkmcnt(0)"),
                (5, mfma(S[0], K[p^1], Q[0], None if "c0" in opt else C[0])),
                (11, smf(O[1], V[p], S[1], vIDX)),
            ]
            for l in interleave(exA, insA): a(l)
            for l in interleave(exB, insB): a(l)
        def kv_stage():
            a(f"s_mov_b32 m0, s{sDST}\ns_add_u32 s{sDST}, s{sDST}, 8192")
            for q in range(4):
                a(f"buffer_load_dwordx4 v{vL16}, s[{SRD_WS}:{SRD_WS+3}], s{sSRC} offen offset:{q*1024} sc1 lds")
            a(f"s_add_u32 s{sSRC}, s{sSRC}, 8192")
        a(f"s_cmp_lg_u32 s{sREDO}, 0")
        a(f"s_cbranch_scc1 {L('rloop0')}")
        stamp(7)
        for o_, who in (("prio_old", 0), ("prio_young", 1)):
            if o_ in opt or (o_ == "prio_young" and "noprio" not in opt and "prio_old" not in opt):
                lp_ = a.newlabel(L("prio"))
                a(f"s_cmp_lg_u32 s{sUH}, {who}\ns_cbranch_scc1 {lp_}\ns_setprio 3\n{lp_}:")
        for T_ in range(32):
            st_, t = T_ >> 3, T_ & 7
            if T_ == 0:
                l1_ = L('kv1')
                a(f"s_cmp_eq_u32 s{sUH}, 0\ns_cbranch_scc1 {l1_}")
                for g_ in self.kv_stage1: a(g_)
                a(f"{l1_}:")
            if st_ == 0 and t in (2, 4): kv_stage()
            if st_ == 0 and t == 6:
                a("s_waitcnt vmcnt(8)\ns_barrier")
                a(f"""
s_lshl_b32 s29, s{sRB}, 7
s_lshl_b32 s30, s{sCS}, 2
s_add_u32 s29, s29, s30
s_add_u32 s29, s29, {F2}
""")
                self.signal(29)
                a(f"""
s_lshr_b32 s29, s{sRB64}, 1
s_lshl_b32 s29, s29, 7
s_add_u32 s29, s29, {F2}
v_and_b32 v7, 15, v0
v_lshl_add_u32 v7, v7, 2, s29
""")
            if st_ == 1 and t == 6:
                a("s_waitcnt vmcnt(0)\ns_barrier")
                self.poll_issue(7)
            if st_ == 2 and t < 4 and "nocpf" not in opt:
                lp = L(f'cpf{t}')
                a(f"""
s_cmp_lg_u32 s{sTB}, {t}
s_cbranch_scc1 {lp}
s_lshr_b32 s29, s2, 3
s_lshl_b32 s29, s29, 9
s_lshl_b32 s30, s{sW}, 6
s_add_u32 s29, s29, s30
v_add_u32 v5, s29, v0
v_lshlrev_b32 v5, 7, v5
s_mov_b32 s{SRD_WQ}, s{pW2}
s_mov_b32 s{SRD_WQ+1}, s{pW2+1}
s_mov_b32 s{SRD_WQ+2}, {1376*1024}
buffer_load_dword v163, v5, s[{SRD_WQ}:{SRD_WQ+3}], 0 offen
v_subrev_u32 v6, {1376*1024}, v5
s_mov_b32 s{SRD_WF}, s{pWO}
s_mov_b32 s{SRD_WF+1}, s{pWO+1}
s_mov_b32 s{SRD_WF+2}, {512*1024}
buffer_load_dword v164, v6, s[{SRD_WF}:{SRD_WF+3}], 0 offen
{lp}:
""")
            early = "cearly" in opt
            if st_ == 2 and t == 5: self.c_setup()
            if early and st_ == 2 and t == 6:
                self.poll_check(7, 1, wait=(True if "nocpf" in opt else 2))
                a("s_barrier")
                cq = self.c_pieces() + self.c_pieces()
            if early and st_ == 3 and t == 6:
                a("s_barrier")
                cq = self.c_pieces()
            if early and ((st_ == 2 and t >= 6) or (st_ == 3 and (t < 2 or t >= 6))):
                lq = a.newlabel(L("cq"))
                a(f"s_cmp_eq_u32 s{sUH}, 0\ns_cbranch_scc1 {lq}")
                for _ in range(4): a(cq.pop(0))
                a(f"{lq}:")
            if not early and st_ == 2 and t == 6 and "nohpf" not in opt:
                l3 = L('hpf')
                a(f"""
s_cmp_lg_u32 s{sW}, 0
s_cbranch_scc1 {l3}
s_waitcnt vmcnt({0 if "nocpf" in opt else 2})
v_cmp_ne_u32 vcc, s{sTAG}, v{vPOLL}
s_nop 4
s_cmp_eq_u64 vcc, 0
s_cbranch_scc0 {l3}
s_mul_i32 s29, s{sRB64}, 176128
s_mul_i32 s30, s{sCB}, {172*128}
s_add_u32 s29, s29, s30
s_add_u32 s29, s29, {HF}
v_lshlrev_b32 v5, 7, v0
buffer_load_dword v160, v5, s[{SRD_WS}:{SRD_WS+3}], s29 offen
v_add_u32 v5, 8192, v5
buffer_load_dword v161, v5, s[{SRD_WS}:{SRD_WS+3}], s29 offen
v_add_u32 v5, 8192, v5
v_min_u32 v5, {171*128}, v5
buffer_load_dword v162, v5, s[{SRD_WS}:{SRD_WS+3}], s29 offen
{l3}:
""")
            tile(T_ & 1, (T_+1)*1024)
        a(f"s_branch {L('mdone')}")
        a.label(L('rloop0'))
        a(f"s_mov_b32 s{sSTG}, 0")
        a.label(L('rloop'))
        tile(0, 1024); tile(1, 2048)
        a(f"""
v_add_u32 v{vAK}, 2048, v{vAK}
v_add_u32 v{vAV}, 2048, v{vAV}
s_add_u32 s{sSTG}, s{sSTG}, 1
s_cmp_lt_u32 s{sSTG}, 16
s_cbranch_scc1 {L('rloop')}
""")
        a.label(L('mdone'))
        if "noprio" not in opt: a("s_setprio 0")
        a(smf(O[1], V[1]+4, S[1]+8, vIDX))
        stamp(8)
        a(f"""
s_mul_i32 s29, s{sW}, 2560
s_add_u32 s29, s29, {EX}
s_xor_b32 s30, s{sW}, 4
s_mul_i32 s30, s30, 2560
s_add_u32 s30, s30, {EX}
v_add_u32 v5, s29, v{vL16}
v_lshlrev_b32 v6, 3, v0
v_add_u32 v6, s29, v6
v_add_u32 v165, s30, v{vL16}
v_lshlrev_b32 v166, 3, v0
v_add_u32 v166, s30, v166
s_nop 3
s_cmp_lg_u32 s{sREDO}, 0
s_cbranch_scc1 {L('nochk')}
""")
        a(f"v_mul_f32 v{T}, 0, v{O[0]}")
        for t in range(2):
            for i in range(8):
                if t == 0 and i == 0: continue
                a(f"v_fma_f32 v{T}, v{O[t]+i}, 0, v{T}")
        a(f"""
v_max_f32 v{T+1}, v{O[0]+8}, v{O[1]+8}
v_add_f32 v{T+2}, v{O[0]+8}, v{O[1]+8}
v_add_f32 v{T+1}, v{T+1}, v{T}
v_mul_f32 v{T+2}, 0, v{T+2}
v_add_f32 v{T+1}, v{T+1}, v{T+2}
v_mov_b32 v{T+3}, 0x4e800000
v_mov_b32 v167, {FLAG}
v_cmp_nle_f32 vcc, v{T+1}, v{T+3}
v_mov_b32 v{T+3}, 1
s_nop 3
s_cmp_eq_u64 vcc, 0
s_cbranch_scc1 {L('nochk')}
ds_write_b32 v167, v{T+3}
{L('nochk')}:
s_cmp_eq_u32 s{sUH}, 0
s_cbranch_scc1 {L('noswap')}
""")
        for i in range(9): a(f"v_swap_b32 v{O[0]+i}, v{O[1]+i}")
        a(f"v_swap_b32 v{C[0]}, v{C[1]}")
        a.label(L('noswap'))
        a(f"""
v_mov_b32 v{T}, v{O[1]+8}
v_mov_b32 v{T+1}, v{C[1]}
ds_write_b128 v5, {vr(O[1],4)}
ds_write_b128 v5, {vr(O[1]+4,4)} offset:1024
ds_write_b64 v6, {vr(T,2)} offset:2048
""")
        def c_part(order):
            l = a.newlabel(L("cp"))
            a(f"s_cmp_eq_u32 s{sUH}, 0\ns_cbranch_scc1 {l}")
            for g_ in self.c_pieces(order): a(g_)
            a(f"{l}:")
        c_part("hw")
        self.poll_check(7, 1)
        a(f"""
s_waitcnt lgkmcnt(0)
s_barrier
v_mov_b32 v167, {FLAG}
ds_read_b32 v167, v167
ds_read_b64 {vr(T,2)}, v166 offset:2048
ds_read_b128 {vr(O[1],4)}, v165
ds_read_b128 {vr(O[1]+4,4)}, v165 offset:1024
""")
        c_part("a")
        a(f"""
s_waitcnt lgkmcnt(3)
v_readfirstlane_b32 s29, v167
s_cmp_lg_u32 s{sREDO}, 0
s_cbranch_scc1 {L('ok')}
s_nop 2
s_cmp_eq_u32 s29, 0
s_cbranch_scc1 {L('ok')}
s_mov_b32 s{sREDO}, 1
""")
        a("s_waitcnt vmcnt(0) lgkmcnt(0)")
        a("s_barrier")
        self.kv_scalars()
        for st_ in range(4):
            a(f"s_mov_b32 m0, s{sDST}\ns_add_u32 s{sDST}, s{sDST}, 8192")
            for q in range(4):
                a(f"buffer_load_dwordx4 v{vL16}, s[{SRD_WS}:{SRD_WS+3}], s{sSRC} offen offset:{q*1024} sc1 lds")
            a(f"s_add_u32 s{sSRC}, s{sSRC}, 8192")
        self.c_setup()
        for t in range(2):
            for i in range(16): a(f"v_mov_b32 v{O[t]+i}, 0")
        for i in range(8,16): a(f"v_mov_b32 v{S[1]+i}, 0")
        a(f"""
s_waitcnt vmcnt(0)
s_barrier
s_branch {L('redo')}
{L('ok')}:
""")
        a(f"""
s_waitcnt lgkmcnt(2)
v_min_f32 v{T+2}, v{T+1}, v{C[0]}
v_sub_f32 v{T+3}, v{T+2}, v{C[0]}
v_sub_f32 v{T+4}, v{T+2}, v{T+1}
v_exp_f32 v{T+3}, v{T+3}
v_exp_f32 v{T+4}, v{T+4}
s_nop 0
v_mul_f32 v{T+5}, v{T+3}, v{O[0]+8}
v_fma_f32 v{T+5}, v{T+4}, v{T}, v{T+5}
v_rcp_f32 v{T+5}, v{T+5}
s_nop 0
v_mul_f32 v{T+3}, v{T+3}, v{T+5}
v_mul_f32 v{T+4}, v{T+4}, v{T+5}
s_waitcnt lgkmcnt(0)
""")
        for i in range(8): a(f"v_mul_f32 v{O[0]+i}, v{O[0]+i}, v{T+3}")
        for i in range(8): a(f"v_fma_f32 v{O[0]+i}, v{O[1]+i}, v{T+4}, v{O[0]+i}")
        for i in range(4): a(f"v_cvt_pk_bf16_f32 v{T+8+i}, v{O[0]+2*i}, v{O[0]+2*i+1}")
        a(f"""
s_add_u32 s29, s{sTB0}, s{sUH}
s_lshl_b32 s29, s29, 5
s_add_u32 s29, s29, s{sHD}
s_lshl_b32 s29, s29, 10
s_add_u32 s29, s29, {OF}
buffer_store_dwordx4 {vr(T+8,4)}, v{vL16}, s[{SRD_WS}:{SRD_WS+3}], s29 offen sc1
""")
        stamp(9)

    cSRC, cA, cW = 224, 225, 226
    SRD_C = 4
    def c_setup(self):
        a = self.a; L = self.L
        vS_ = self.cSRC; C4 = self.SRD_C
        a(f"""
v_lshrrev_b32 v165, 3, v0
v_lshrrev_b32 v166, 4, v0
v_and_b32 v166, 1, v166
v_lshlrev_b32 v166, 2, v166
v_and_b32 v167, 7, v0
v_xor_b32 v166, v166, v167
v_lshlrev_b32 v166, 4, v166
v_lshl_add_u32 v{vS_}, v165, 10, v166
s_lshl_b32 s29, s{sCB}, 7
v_add_u32 v{vS_}, s29, v{vS_}
s_mov_b32 s{SRD_WF}, s{pOUT}
s_mov_b32 s{SRD_WF+1}, s{pOUT+1}
s_mov_b32 s{SRD_WF+2}, {2048*1024}
s_mov_b32 s{C4}, s{pW2}
s_mov_b32 s{C4+1}, s{pW2+1}
s_mov_b32 s{C4+2}, {1376*1024}
s_mov_b32 s{C4+3}, 0x20000
s_lshr_b32 s29, s{sTB}, 1
s_lshl_b32 s30, s{sRB64}, 1
s_add_u32 s30, s30, s29
s_mul_i32 s31, s30, 86
s_and_b32 s32, s{sTB}, 1
s_lshl_b32 s32, s32, 2
s_add_u32 s31, s31, s32
s_lshl_b32 s31, s31, 10
s_add_u32 s{sAOFF}, s31, {HF}
s_lshl_b32 s30, s30, 5
s_add_u32 s30, s30, s32
s_lshl_b32 s30, s30, 10
s_add_u32 s{sALT}, s30, {OF}
s_lshl_b32 s29, s29, 15
s_lshl_b32 s32, s32, 10
s_add_u32 s{sLOFF}, s29, s32
s_add_u32 s{sWL}, s{sLOFF}, 65536
s_lshl_b32 s{sWOFF}, s{sTB}, 15
s_mov_b32 s{sISS}, 0
""")
    def c_pieces(self, order="haw"):
        a = self.a; L = self.L; vS_ = self.cSRC; C4 = self.SRD_C
        out = []; pre = ""
        for part in order:
            if part == "h":
                lns = a.newlabel(L('ns'))
                pre = f"""s_cmp_lg_u32 s{sISS}, 11
s_cbranch_scc1 {lns}
s_mov_b32 s{sAOFF}, s{sALT}
s_lshl_b32 s{sWOFF}, s{sTB}, 15
s_mov_b32 s{C4}, s{pWO}
s_mov_b32 s{C4+1}, s{pWO+1}
s_mov_b32 s{C4+2}, {512*1024}
{lns}:
s_cmp_eq_u32 s{sISS}, 10
s_cselect_b32 s{sA2}, s{sTB}, 0
s_and_b32 s{sA2}, s{sA2}, 1
s_lshl_b32 s{sA2}, s{sA2}, 11
s_sub_u32 s{sA2}, s{sAOFF}, s{sA2}
s_and_b32 s{sTMP}, s{sISS}, 3
s_lshl_b32 s{sTMP}, s{sTMP}, 13
s_add_u32 s{sISS}, s{sISS}, 1
"""
            elif part == "a":
                for q in range(4):
                    t = pre; pre = ""
                    if q == 0: t += f"s_add_u32 m0, s{sTMP}, s{sLOFF}\ns_nop 0\n"
                    t += f"buffer_load_dwordx4 v{vL16}, s[{SRD_WS}:{SRD_WS+3}], s{sAOFF if q < 2 else sA2} offen offset:{q*1024} sc1 lds"
                    if q == 3: t += f"\ns_add_u32 s{sAOFF}, s{sAOFF}, 8192"
                    out.append(t)
            else:
                for q in range(4):
                    t = pre; pre = ""
                    if q == 0: t += f"s_add_u32 s{sWM}, s{sTMP}, s{sWL}\n"
                    t += f"s_mov_b32 m0, s{sWM}\ns_add_u32 s{sWM}, s{sWM}, 1024\n"
                    t += f"buffer_load_dwordx4 v{vS_}, s[{C4}:{C4+3}], s{sWOFF} offen lds\n"
                    t += f"s_add_u32 s{sWOFF}, s{sWOFF}, {8192 if q < 3 else 8192 + 96*1024}"
                    out.append(t)
        return out

    def pst(self):
        if "pst" in self.opt:
            a = self.a
            for slot, stg in enumerate(((0,11) if "pst2" in self.opt else (0,2,4,7,8,10,13)), 1):
                l = a.newlabel(self.L("ps"))
                a(f"s_cmp_lg_u32 s{sCST}, {stg}\ns_cbranch_scc1 {l}")
                a(f"s_memtime s[{70+2*slot}:{71+2*slot}]")
                a(f"{l}:")
    def phaseC(self):
        a = self.a; L = self.L; stamp = self.stamp
        vA, vW = self.cA, self.cW
        vA0, vW0, vAn, vWn = 227, 228, 229, 230
        ACCc = 16; AF = [32+4*i for i in range(8)]; WFr = [64+4*i for i in range(8)]; T = 96
        NST = 15
        a(f"s_cmp_eq_u32 s{sUH}, 0")
        a(f"s_cbranch_scc0 {L('cprod')}")
        a(f"""
s_lshr_b32 s29, s{sW}, 1
s_lshl_b32 s30, s{sRB64}, 1
s_add_u32 s30, s30, s29
s_lshl_b32 s30, s30, 15
s_and_b32 s31, s{sW}, 1
s_lshl_b32 s31, s31, 6
s_lshl_b32 s32, s{sCB}, 7
s_add_u32 s30, s30, s31
s_add_u32 s34, s30, s32
v_and_b32 v8, 31, v0
v_lshlrev_b32 v8, 10, v8
v_lshrrev_b32 v6, 5, v0
v_lshl_add_u32 v8, v6, 4, v8
buffer_load_dwordx4 v[{T}:{T+3}], v8, s[{SRD_X}:{SRD_X+3}], s34 offen
buffer_load_dwordx4 v[{T+4}:{T+7}], v8, s[{SRD_X}:{SRD_X+3}], s34 offen offset:32
s_lshl_b32 s29, s29, 15
v_add_u32 v{vA0}, s29, v{vL16}
v_lshrrev_b32 v5, 5, v0
v_lshlrev_b32 v5, 2, v5
v_bfe_u32 v6, v0, 2, 2
v_add_u32 v5, v5, v6
v_lshlrev_b32 v5, 7, v5
v_lshrrev_b32 v6, 1, v6
s_and_b32 s30, s{sW}, 1
v_xor_b32 v6, s30, v6
v_lshl_add_u32 v5, v6, 6, v5
v_bfe_u32 v6, v0, 4, 1
v_lshl_add_u32 v5, v6, 5, v5
v_and_b32 v6, 3, v0
v_lshl_add_u32 v5, v6, 3, v5
v_add_u32 v{vW0}, 65536, v5
v_mov_b32 v{vA}, v{vA0}
v_mov_b32 v{vW}, v{vW0}
s_lshr_b32 s29, s{sRB64}, 2
s_lshl_b32 s29, s29, 7
s_add_u32 s29, s29, {F3}
v_and_b32 v7, 31, v0
v_lshl_add_u32 v7, v7, 2, s29
""")
        for i in range(16): a(f"v_mov_b32 v{ACCc+i}, 0")
        def rd(j, ra, rw):
            a(f"ds_read_b128 {vr(AF[j],4)}, v{ra} offset:{j*1024}")
            a(f"ds_read_b64_tr_b16 {vr(WFr[j],2)}, v{rw} offset:{(j>>2)*32768+(j&3)*2048}")
            a(f"ds_read_b64_tr_b16 {vr(WFr[j]+2,2)}, v{rw} offset:{(j>>2)*32768+(j&3)*2048+1024}")
        a(f"s_mov_b32 s{sVER}, 0")
        a(f"s_mov_b32 s{sCST}, 0")
        a("s_barrier")
        for j in range(3): rd(j, vA, vW)
        a.label(L('cloop'))
        n1, n2, n3, n4 = L('c_n1'), L('c_n2'), L('c_n3'), L('c_n4')
        npoll, nchk = L('c_np'), L('c_nc')
        a(f"""
s_cmp_lg_u32 s{sCST}, 0
s_cbranch_scc1 {n4}
s_waitcnt vmcnt(2)
{n4}:
s_add_u32 s29, s{sCST}, 1
s_and_b32 s29, s29, 3
s_lshl_b32 s29, s29, 13
v_add_u32 v{vAn}, s29, v{vA0}
v_add_u32 v{vWn}, s29, v{vW0}
s_cmp_lg_u32 s{sW}, 0
s_cbranch_scc1 {n2}
s_cmp_eq_u32 s{sVER}, 1
s_cbranch_scc1 {n2}
s_cmp_lt_u32 s{sCST}, 3
s_cbranch_scc1 {n2}
s_cmp_eq_u32 s{sCST}, 3
s_cbranch_scc1 {npoll}
s_waitcnt vmcnt(0)
v_cmp_ne_u32 vcc, s{sTAG}, v{vPOLL}
s_nop 4
s_cmp_eq_u64 vcc, 0
s_cbranch_scc0 {nchk}
s_mov_b32 s{sVER}, 1
""")
        if self.stamps:
            self.stamp(12); a(f"s_mov_b32 s69, s{sCST}")
        a(f"""
s_branch {n2}
{nchk}:
s_cmp_lt_u32 s{sCST}, 8
s_cbranch_scc1 {npoll}
""")
        self.poll_check(7, 2)
        if self.stamps: a(f"s_add_u32 s69, s{sSPIN}, 100")
        a(f"""
s_mov_b32 s{sVER}, 1
s_branch {n2}
{npoll}:
global_load_dword v{vPOLL}, v7, s[{SRD_WS}:{SRD_WS+1}] sc1
{n2}:
s_barrier
s_cmp_lg_u32 s{sCST}, 0
s_cbranch_scc1 {n1}
s_lshl_b32 s29, s{sQB}, 7
s_lshl_b32 s30, s{sHD}, 2
s_add_u32 s29, s29, s30
s_add_u32 s29, s29, {F3}
""")
        self.signal(29)
        a(f"{n1}:")
        self.pst()
        if "cnocomp" not in self.opt:
            for j in range(8):
                a("s_waitcnt lgkmcnt(6)")
                a(mfma(ACCc, WFr[j], AF[j], ACCc))
                if j + 3 < 8: rd(j+3, vA, vW)
                else: rd(j-5, vAn, vWn)
        a(f"""
v_mov_b32 v{vA}, v{vAn}
v_mov_b32 v{vW}, v{vWn}
s_add_u32 s{sCST}, s{sCST}, 1
s_cmp_lt_u32 s{sCST}, {NST}
s_cbranch_scc1 {L('cloop')}
s_waitcnt lgkmcnt(0)
""")
        stamp(10)
        a("s_waitcnt vmcnt(0)")
        a.nop(9)
        for h_ in range(2):
            A_ = ACCc + 8*h_; Xr = T + 4*h_; U = T + 8
            for i in range(4): a(f"v_permlane32_swap_b32 v{A_+i}, v{A_+4+i}")
            for i in range(4):
                a(f"v_lshlrev_b32 v{U+2*i}, 16, v{Xr+i}")
                a(f"v_and_b32 v{U+2*i+1}, 0xffff0000, v{Xr+i}")
            for i in range(8): a(f"v_add_f32 v{A_+i}, v{A_+i}, v{U+i}")
            for i in range(4): a(f"v_cvt_pk_bf16_f32 v{Xr+i}, v{A_+2*i}, v{A_+2*i+1}")
            fl_ = "sc1" if "outsc1" in self.opt else ("nt" if "outnt" in self.opt else ("sc0 sc1" if "outsys" in self.opt else ""))
            a(f"buffer_store_dwordx4 v[{Xr}:{Xr+3}], v8, s[{SRD_WF}:{SRD_WF+3}], s34 offen offset:{32*h_} {fl_}")
        a(f"s_cmp_lg_u32 s2, 0")
        a(f"s_cbranch_scc1 {L('cdone')}")
        a(f"s_mov_b32 s29, {FW0}")
        self.signal(29)
        a(f"s_branch {L('cdone')}")
        a.label(L('cprod'))
        for g_ in self.c_pieces(): a(g_)
        a(f"s_mov_b32 s{sCST}, 0")
        a("s_waitcnt vmcnt(9)")
        a("s_barrier")
        for g_ in self.c_pieces(): a(g_)
        a.label(L('ploop'))
        a("s_waitcnt vmcnt(8)")
        a("s_barrier")
        self.pst()
        lskip = L('pskip')
        a(f"s_cmp_ge_u32 s{sISS}, {NST}\ns_cbranch_scc1 {lskip}")
        if "cnodma" in self.opt: a(f"s_add_u32 s{sISS}, s{sISS}, 1")
        else:
            for g_ in self.c_pieces(): a(g_)
        a(f"""
s_branch {L('pnext')}
{lskip}:
s_waitcnt vmcnt(0)
{L('pnext')}:
s_add_u32 s{sCST}, s{sCST}, 1
s_cmp_lt_u32 s{sCST}, {NST}
s_cbranch_scc1 {L('ploop')}
""")
        stamp(10)
        a.label(L('cdone'))

    def build(self):
        a = self.a; L = self.L
        self.prologue()
        a(f"s_cmp_eq_u32 s{sUH}, 0")
        a(f"s_cbranch_scc0 {L('uh1')}")
        self.phaseA(0)
        a(f"s_branch {L('join')}")
        a.label(L('uh1'))
        self.phaseA(1)
        a.label(L('join'))
        self.phaseB()
        self.phaseC()
        if self.stamps:
            a("s_waitcnt vmcnt(0)")
            self.stamp(11)
            a("s_memrealtime s[98:99]")
            a("s_waitcnt lgkmcnt(0)")
            for i in range(1,12): a(f"s_sub_u32 s{70+2*i}, s{70+2*i}, s70")
            a("s_sub_u32 s98, s98, s96")
            a("s_sub_u32 s94, s94, s70")
            a("s_mov_b32 s29, s96")
            a("s_mov_b32 s96, s94")
            a("s_mov_b32 s94, s29")
            a(f"""
s_lshl_b32 s29, s2, 3
s_add_u32 s29, s29, s{sW}
s_lshl_b32 s29, s29, 6
s_add_u32 s29, s29, 0xE00000
""")
            for i in range(1,12): a(f"v_mov_b32 v{7+i}, s{70+2*i}")
            a(f"""
v_mov_b32 v19, s98
v_mov_b32 v20, s96
v_mov_b32 v21, s94
v_mov_b32 v22, s69
v_mov_b32 v23, 0
v_mov_b32 v24, s29
s_mov_b64 exec, 1
global_store_dwordx4 v24, v[8:11], s[20:21]
global_store_dwordx4 v24, v[12:15], s[20:21] offset:16
global_store_dwordx4 v24, v[16:19], s[20:21] offset:32
global_store_dwordx4 v24, v[20:23], s[20:21] offset:48
""")
        a.label(L('bail'))
        a.label(L('end'))
        a("s_endpgm")
        return kernel_text(self.name, a.text(), vgpr=256, sgpr=100)

HDR = open("parallel_sum__mha_block__glu_gated_swiglu__prompt.s.ref").read().split("; Override launch geometry")[0]
def make(stamps=False, opt=(), name=KNAME):
    s = HDR + f"; @launch grid=(256,1,1) block=(512,1,1) lds={LDS_TOTAL}\n"
    s += '.amdgcn_target "amdgcn-amd-amdhsa--gfx950"\n'
    s += Gen(name, stamps, opt).build()
    return s
if __name__ == "__main__":
    open("pk.s","w").write(make())
```

```python
from asmlib import *
import struct
QF, KF, VF, HF, OF, WSEND = 0, 0x200000, 0x400000, 0x600000, 0xB60000, 0xD60000
SLOT = 28672
MISC = 131072
STAT = MISC
CSP  = MISC + 1024
VSCR = MISC + 4096
EX   = MISC
FLAG = MISC + 20480
LDS_TOTAL = MISC + 4096 + 4*6144
FL = 0xD60000
F1, F2, F3, FW0 = FL, FL + 4096, FL + 8192, FL + 12288
CQ_BITS = 0x3EB8AA3B
KNAME = "parallel_sum__mha_block__glu_gated_swiglu__prompt_kernel"

def mfma(d, a, b, c):
    cc = vr(c, 16) if c is not None else "0"
    return f"v_mfma_f32_32x32x16_bf16 {vr(d,16)}, {vr(a,4)}, {vr(b,4)}, {cc}"
def smf(d, a, b, idx):
    return f"v_smfmac_f32_32x32x32_bf16 {vr(d,16)}, {vr(a,4)}, {vr(b,8)}, v{idx}"
def mf4(d, a, b):
    return f"v_mfma_f32_4x4x4_16b_bf16 {vr(d,4)}, {vr(a,2)}, {vr(b,2)}, {vr(d,4)}"

SRD_X, SRD_WQ, SRD_WF, SRD_WS = 8, 12, 16, 20
SRD_W3 = 4
sW, sTB, sUH, sCS, sRB = 24, 25, 26, 27, 28
pOUT, pW2, pWO, pDBG = 36, 38, 40, 42
sXD, sWD, sFD, sFB, sTBG = 44, 45, 46, 47, 48
sHD, sQB, sSRC, sDST, sSTG, sREDO, sTB0 = 49, 50, 51, 52, 53, 54, 55
sMASK = 56
sRB64, sCB, sAOFF, sALT, sLOFF, sISS, sTMP, sCST = 58, 59, 60, 61, 62, 63, 64, 65
sSPIN = 66
sWOFF, sWL = 67, 68
sK0D, sK0S = 67, 68
sTAG = 3
sWB = 35
sVER = 42
sWM = 33
sA2 = 43
X = 8; ACC = 136; WF = 200; CSA = 216; SEL = 232
AW = 236; AX = 240; VX = 244; VW = 246; VFo = 232
vNM, vS, vR = 251, 252, 253
vPOLL = 254
vL16 = 255

class Gen:
    def __init__(self, name=KNAME, stamps=False, opt=(), prefix="L"):
        self.a = Asm(); self.name = name; self.stamps = stamps; self.opt = set(opt); self.prefix = prefix
    def L(self, s): return f"{self.prefix}_{s}"
    def stamp(self, i, c=False):
        if ("cst2" in self.opt or "cst3" in self.opt or "pst" in self.opt) and 1 <= i <= 7: return
        if "cstamps" in self.opt and (1 <= i <= 7) != c:
            if not (i == 0 or i >= 8): return
            if c: return
        if self.stamps: self.a(f"{'s_memrealtime' if 'rt' in self.opt else 's_memtime'} s[{70+2*i}:{71+2*i}]")

    def signal(self, off_sgpr):
        a = self.a; l = a.newlabel(self.L("sig"))
        a(f"""
s_cmp_lg_u32 s{sW}, 0
s_cbranch_scc1 {l}
v_mov_b32 v5, s{off_sgpr}
v_mov_b32 v6, s{sTAG}
s_mov_b64 exec, 1
global_store_dword v5, v6, s[{SRD_WS}:{SRD_WS+1}] sc1
s_mov_b64 exec, -1
{l}:
""")
    def poll_issue(self, vaddr):
        a = self.a; l = a.newlabel(self.L("pi"))
        a(f"""
s_cmp_lg_u32 s{sW}, 0
s_cbranch_scc1 {l}
global_load_dword v{vPOLL}, v{vaddr}, s[{SRD_WS}:{SRD_WS+1}] sc1
{l}:
""")
    def poll_check(self, vaddr, site=0, wait=True):
        a = self.a; ok = a.newlabel(self.L("pok")); sp = a.newlabel(self.L("psp")); bail = self.L("bail")
        a(f"""
s_cmp_lg_u32 s{sW}, 0
s_cbranch_scc1 {ok}
s_mov_b32 s{sSPIN}, 0
""")
        if wait is True: a("s_waitcnt vmcnt(0)")
        elif wait: a(f"s_waitcnt vmcnt({wait})")
        a(f"""
{sp}:
v_cmp_ne_u32 vcc, s{sTAG}, v{vPOLL}
s_nop 4
s_cmp_eq_u64 vcc, 0
s_cbranch_scc1 {ok}
s_add_u32 s{sSPIN}, s{sSPIN}, 1
s_cmp_gt_u32 s{sSPIN}, 0x8000
s_cbranch_scc1 {bail}
s_sleep 1
global_load_dword v{vPOLL}, v{vaddr}, s[{SRD_WS}:{SRD_WS+1}] sc1
s_waitcnt vmcnt(0)
s_branch {sp}
{ok}:
""")
        if self.stamps:
            if site == 2: self.stamp(12)

    def prologue(self):
        a = self.a; L = self.L
        a(f"""
s_cmp_ge_u32 s2, 256
s_cbranch_scc1 {L('end')}
s_load_dwordx4 s[4:7], s[0:1], 0
s_load_dwordx4 s[60:63], s[0:1], 32
s_load_dwordx2 s[{pW2}:{pW2+1}], s[0:1], 48
s_load_dwordx2 s[{pWO}:{pWO+1}], s[0:1], 16
s_load_dwordx4 s[64:67], s[0:1], 56
s_load_dwordx2 s[68:69], s[0:1], 72
""")
        if self.stamps:
            a(f"{'s_memrealtime' if 'rt' in self.opt else 's_memtime'} s[70:71]")
            a("s_memrealtime s[96:97]")
        a(f"""
v_lshrrev_b32 v1, 6, v0
v_and_b32 v0, 63, v0
s_and_b32 s29, s2, 7
v_readfirstlane_b32 s{sW}, v1
s_lshr_b32 s30, s2, 3
s_and_b32 s31, s29, 1
s_lshl_b32 s31, s31, 3
s_and_b32 s32, s30, 7
s_add_u32 s{sRB}, s31, s32
s_lshr_b32 s31, s29, 1
s_lshl_b32 s31, s31, 2
s_lshr_b32 s33, s30, 3
s_add_u32 s{sCS}, s31, s33
s_lshl_b32 s31, s29, 2
s_add_u32 s{sHD}, s31, s33
s_mov_b32 s{sQB}, s32
s_mov_b32 s{sRB64}, s{sHD}
s_mov_b32 s{sCB}, s32
v_lshlrev_b32 v{vL16}, 4, v0
v_mov_b32 v7, 0
s_and_b32 s{sTB}, s{sW}, 3
s_lshr_b32 s{sUH}, s{sW}, 2
s_lshl_b32 s{sTBG}, s{sRB}, 2
s_add_u32 s{sTBG}, s{sTBG}, s{sTB}
""")
        a(f"""
v_lshrrev_b32 v1, 3, v0
s_lshl_b32 s29, s{sRB}, 7
s_lshl_b32 s30, s{sTB}, 5
s_add_u32 s29, s29, s30
v_add_u32 v1, s29, v1
v_lshlrev_b32 v1, 10, v1
v_lshrrev_b32 v2, 4, v0
v_and_b32 v3, 7, v0
v_xor_b32 v4, v2, v3
v_lshl_add_u32 v{VX}, v4, 4, v1
v_xor_b32 v4, 4, v4
v_lshl_add_u32 v{VX+1}, v4, 4, v1
v_add_u32 v{VX+1}, 8192, v{VX+1}
s_mul_i32 s31, s{sCS}, 192
s_mul_i32 s29, s{sTB}, {16*3072}
s_add_u32 s{sWB}, s29, s31
s_mov_b32 s32, 43691
s_movk_i32 s33, 3072
""")
        for q in range(3):
            a(f"""
v_add_u32 v1, {64*q}, v0
v_mul_u32_u24 v2, s32, v1
v_lshrrev_b32 v2, 19, v2
v_mul_u32_u24 v3, 12, v2
v_sub_u32 v3, v1, v3
v_mul_u32_u24 v2, s33, v2
v_lshl_add_u32 v{VW+q}, v3, 4, v2
""")
        a(f"""
s_mul_i32 s30, s{sTB}, 3072
s_add_u32 s{sWD}, s30, 16384
s_lshl_b32 s{sXD}, s{sTB}, 12
s_waitcnt lgkmcnt(0)
s_mov_b32 s{SRD_X}, s4
s_mov_b32 s{SRD_X+1}, s5
s_mov_b32 s{SRD_X+2}, {2048*1024}
s_mov_b32 s{SRD_X+3}, 0x20000
s_mov_b32 s{SRD_WQ}, s6
s_mov_b32 s{SRD_WQ+1}, s7
s_mov_b32 s{SRD_WQ+2}, {512*3072}
s_mov_b32 s{SRD_WQ+3}, 0x20000
s_mov_b32 s{SRD_WF}, s60
s_mov_b32 s{SRD_WF+1}, s61
s_mov_b32 s{SRD_WF+2}, {512*2752}
s_mov_b32 s{SRD_WF+3}, 0x20000
s_mov_b32 s{SRD_WS}, s68
s_mov_b32 s{SRD_WS+1}, s69
s_mov_b32 s{SRD_WS+2}, {WSEND}
s_mov_b32 s{SRD_WS+3}, 0x20000
s_mov_b32 s{pOUT}, s64
s_mov_b32 s{pOUT+1}, s65
s_mov_b32 s{sVER}, 0
s_add_u32 s30, s68, {FW0}
s_addc_u32 s31, s69, 0
s_load_dword s{sTAG}, s[30:31], 0
s_mov_b32 s{SRD_W3}, s62
s_mov_b32 s{SRD_W3+1}, s63
s_mov_b32 s{SRD_W3+2}, {512*2752}
s_mov_b32 s{SRD_W3+3}, 0x20000
""")

    def prologue2(self):
        a = self.a
        a(f"s_movk_i32 s33, 2752")
        a(f"s_mov_b32 s32, 43691")
        for q in range(3):
            a(f"""
v_add_u32 v1, {64*q}, v0
v_mul_u32_u24 v2, s32, v1
v_lshrrev_b32 v2, 19, v2
v_mul_u32_u24 v3, 12, v2
v_sub_u32 v3, v1, v3
""")
            if "f16" in self.opt or "f16all" in self.opt:
                a("v_bfe_u32 v4, v2, 3, 1\nv_lshlrev_b32 v4, 1, v4")
                if "f16all" not in self.opt:
                    a("v_cmp_gt_u32 vcc, 8, v3\ns_nop 1\nv_cndmask_b32 v4, 0, v4, vcc")
                a("v_xor_b32 v4, v4, v3")
            else: a("v_mov_b32 v4, v3")
            a(f"""
v_mul_u32_u24 v2, s33, v2
v_lshl_add_u32 v{VFo+q}, v4, 4, v2
""")
            if "nozero" not in self.opt:
                a(f"""
v_lshrrev_b32 v3, 2, v3
s_mul_i32 s29, s{sCS}, 3
v_add_u32 v3, s29, v3
v_cmp_lt_u32 vcc, 42, v3
v_mov_b32 v2, 0x7ff00000
s_nop 0
v_cndmask_b32 v{VFo+q}, v{VFo+q}, v2, vcc
""")
        a(f"""
s_mul_i32 s31, s{sCS}, 192
s_mul_i32 s{sFD}, s{sTB}, 3072
s_mul_i32 s29, s{sTB}, {16*2752}
s_add_u32 s{sFB}, s29, s31
v_and_b32 v1, 31, v0
v_lshrrev_b32 v2, 5, v0
s_lshl_b32 s29, s{sTB}, 5
v_add_u32 v3, s29, v1
v_lshlrev_b32 v3, 7, v3
v_lshlrev_b32 v4, 2, v2
v_or_b32 v4, s{sTB}, v4
v_bfe_u32 v5, v1, 1, 3
v_xor_b32 v4, v4, v5
v_lshl_add_u32 v{AX}, v4, 4, v3
v_xor_b32 v{AX+1}, 16, v{AX}
v_xor_b32 v{AX+2}, 32, v{AX}
v_xor_b32 v{AX+3}, 48, v{AX}
v_lshlrev_b32 v3, 5, v2
v_bfe_u32 v4, v0, 2, 2
v_add_u32 v3, v3, v4
v_mul_u32_u24 v3, 0xc0, v3
v_bfe_u32 v4, v0, 4, 1
v_lshl_add_u32 v3, v4, 5, v3
v_and_b32 v4, 3, v0
v_lshl_add_u32 v3, v4, 3, v3
""")
        for j in range(4):
            a(f"s_xor_b32 s29, s{sTB}, {j}")
            a(f"s_mul_i32 s29, s29, 1536")
            a(f"v_add_u32 v{AW+j}, s29, v3")

    def mall_prefetch(self, which):
        a = self.a; L = self.L
        def one(tb, srd, n, glob=False):
            l = a.newlabel(L("mpf"))
            t = f"s_cmp_lg_u32 s{sTB}, {tb}\ns_cbranch_scc1 {l}\n"
            t += f"s_mul_i32 s29, s2, {n}\nv_add_u32 v1, s29, v0\nv_lshlrev_b32 v1, 7, v1\n"
            if n < 64: t += f"s_mov_b32 s30, {hex((1 << min(n,32)) - 1)}\ns_mov_b32 s31, {hex((1 << max(n-32,0)) - 1)}\ns_mov_b64 exec, s[30:31]\n"
            if glob: t += f"global_load_dword v250, v1, s[{srd}:{srd+1}]\n"
            else: t += f"buffer_load_dword v250, v1, s[{srd}:{srd+3}], 0 offen {'nt' if 'pnt' in self.opt else ''}\n"
            t += f"s_mov_b64 exec, -1\n{l}:"
            a(t)
        if "x" in which: one(0, SRD_X, 64); one(1, SRD_WQ, 48)
        if "f" in which: one(2, SRD_WF, 43); one(3, SRD_W3, 43)

    def code_prefetch(self):
        a = self.a; L = self.L
        l, here = a.newlabel(L("cpf")), a.newlabel(L("here"))
        a(f"""
s_cmp_lg_u32 s{sTB}, 2
s_cbranch_scc1 {l}
s_getpc_b64 s[30:31]
{here}:
s_sub_u32 s30, s30, {here}-{self.name}
s_subb_u32 s31, s31, 0
s_lshr_b32 s29, s2, 3
s_mul_i32 s29, s29, 10
v_add_u32 v1, s29, v0
v_min_u32 v1, ({L('end')}-{self.name})/128, v1
v_lshlrev_b32 v1, 7, v1
s_mov_b64 exec, 0x3ff
global_load_dword v250, v1, s[30:31]
s_mov_b64 exec, -1
{l}:
""")

    def l2_pf_qkv(self):
        a = self.a; D = 250
        l3, ld = a.newlabel(self.L("pf3")), a.newlabel(self.L("pfd"))
        a(f"""
s_cmp_eq_u32 s{sTB}, 3
s_cbranch_scc1 {l3}
s_and_b32 s29, s{sCS}, 3
s_lshl_b32 s29, s29, 5
s_lshl_b32 s30, s{sRB}, 7
s_add_u32 s29, s29, s30
v_and_b32 v1, 31, v0
v_add_u32 v1, s29, v1
v_lshlrev_b32 v1, 10, v1
v_lshrrev_b32 v2, 5, v0
s_lshl_b32 s30, s{sTB}, 1
s_add_u32 s30, s30, 3
v_add_u32 v2, s30, v2
v_min_u32 v2, 7, v2
v_lshl_add_u32 v1, v2, 7, v1
buffer_load_dword v{D}, v1, s[{SRD_X}:{SRD_X+3}], 0 offen
s_branch {ld}
{l3}:
s_and_b32 s29, s{sRB}, 7
s_mul_i32 s29, s29, 40
s_add_u32 s29, s29, 192
v_lshrrev_b32 v1, 1, v0
v_add_u32 v1, s29, v1
s_movk_i32 s30, 3072
v_mul_lo_u32 v1, s30, v1
v_and_b32 v2, 1, v0
v_lshl_add_u32 v1, v2, 7, v1
s_mul_i32 s30, s{sCS}, 192
buffer_load_dword v{D}, v1, s[{SRD_WQ}:{SRD_WQ+3}], s30 offen
v_add_u32 v1, {32*3072}, v1
s_mov_b32 exec_hi, 0
s_mov_b32 exec_lo, 0xffff
buffer_load_dword v{D}, v1, s[{SRD_WQ}:{SRD_WQ+3}], s30 offen
s_mov_b64 exec, -1
{ld}:
""")
    def l2_pf_ffn(self):
        a = self.a; D = 250
        a(f"""
s_and_b32 s29, s{sRB}, 7
s_lshl_b32 s29, s29, 6
s_lshl_b32 s30, s{sTB}, 4
s_add_u32 s29, s29, s30
v_bfe_u32 v1, v0, 1, 4
v_add_u32 v1, s29, v1
s_movk_i32 s30, 2752
v_mul_lo_u32 v1, s30, v1
v_and_b32 v2, 1, v0
v_lshl_add_u32 v1, v2, 7, v1
s_mul_i32 s30, s{sCS}, 192
s_mov_b32 exec_hi, 0
buffer_load_dword v{D}, v1, s[{SRD_WF}:{SRD_WF+3}], s30 offen
buffer_load_dword v{D}, v1, s[{SRD_W3}:{SRD_W3+3}], s30 offen
s_mov_b64 exec, -1
""")

    def phaseA(self, uh):
        a = self.a; L = self.L; opt = self.opt; stamp = self.stamp
        lg, vm = a.lg, a.vm
        lg.reset(); vm.reset()
        P = f"u{uh}"
        CS = CSA
        CT = CSA + 8
        def dma_pieces(gs):
            if gs > 15 or ("nodma" in opt and gs >= 3): return []
            sb = (gs % 4) * SLOT
            out = []
            def piece(m0base, m0off, static_soff, sreg_base, vreg, srd):
                def f():
                    a(f"s_add_u32 m0, s{m0base}, {m0off}")
                    if sreg_base is None: a(f"s_mov_b32 s29, {static_soff}")
                    else: a(f"s_add_u32 s29, s{sreg_base}, {static_soff}")
                    a(f"buffer_load_dwordx4 v{vreg}, s[{srd}:{srd+3}], s29 offen {'nt ' if ('ant' in opt or ('antq' in opt and gs < 8) or ('antf' in opt and gs >= 8)) else ''}lds"); vm.issue(f"d{gs}")
                return f
            if uh == 0: return []
            if gs < 8:
                c = gs
                xs = [piece(sXD, sb+q2*2048+p*1024, c*128+q2*16384, None, VX+p, SRD_X) for q2 in range(2) for p in range(2)]
                ws = [piece(sWD, sb+q*1024, c*64*3072, sWB, VW+q, SRD_WQ) for q in range(3)]
                out = [xs[0], ws[0], xs[1], ws[1], xs[2], ws[2], xs[3]]
            else:
                f_ = gs - 8
                for q in range(3):
                    out.append(piece(sFD, sb+q*1024, f_*64*2752, sFB, VFo+q, SRD_WF))
                    out.append(piece(sFD, sb+12288+q*1024, f_*64*2752, sFB, VFo+q, SRD_W3))
            return out
        pending = []
        def dma(gs):
            for p in dma_pieces(gs): p()
        def dma_one():
            if pending: pending.pop(0)()
        def xreg(ks): return X + 4*ks
        f16 = ("f16" in opt and uh == 0) or "f16all" in opt
        def xconv(u, part=None):
            r0 = xreg(2*u)
            for i in (range(4) if part is None else part): a(f"v_permlane16_swap_b32 v{r0+i}, v{r0+4+i}")
        def bump(reg, gs):
            if gs % 4 == 1: a(f"v_add_u32 v{reg}, {2*SLOT}, v{reg}")
            if gs % 4 == 3: a(f"v_subrev_u32 v{reg}, {2*SLOT}, v{reg}")
        def wread(dst, gs, j, off, tag):
            imm = (gs & 1)*SLOT + off
            a(f"ds_read_b64_tr_b16 {vr(dst,2)}, v{AW+j} offset:{imm}"); lg.issue(tag)
            a(f"ds_read_b64_tr_b16 {vr(dst+2,2)}, v{AW+j} offset:{imm+768}"); lg.issue(tag)
        SELR = CSA + 12 if uh == 0 else ACC + 48
        def sel_init(r):
            a(f"""
v_and_b32 v1, 15, v0
v_bfe_u32 v2, v0, 4, 1
v_cmp_eq_u32 vcc, v1, v2
v_mov_b32 v3, 0x3f803f80
s_nop 0
v_cndmask_b32 v{r}, 0, v3, vcc
v_mov_b32 v{r+1}, v{r}
v_mov_b32 v{r+2}, v{r}
v_mov_b32 v{r+3}, v{r}
""")
        def sel(t, frag, selr):
            if "nocs" in opt: return
            a(f"v_mfma_f32_16x16x32_bf16 {vr(CS+4*t,4)}, {vr(selr,4)}, {vr(frag,4)}, {vr(CS+4*t,4)}")
        def midbar(gs):
            vm.wait(f"d{gs+1}")
            if gs == 10: vm.wait("st")
            if "nobar" not in opt: a("s_barrier")
            if gs == 10:
                a(f"s_lshl_b32 s29, s{sCS}, 7")
                a(f"s_lshl_b32 s30, s{sRB}, 2")
                a(f"s_add_u32 s29, s29, s30")
                a(f"s_add_u32 s29, s29, {F1}")
                self.signal(29)
            assert not pending
            pending.extend(dma_pieces(gs+3))
            if gs == 14 and uh == 0 and "nokvpf" not in opt:
                l = a.newlabel(L("kvpf"))
                a(f"""
s_cmp_lg_u32 s{sW}, 0
s_cbranch_scc1 {l}
s_waitcnt vmcnt(0)
v_cmp_ne_u32 vcc, s{sTAG}, v{vPOLL}
s_nop 4
s_cmp_eq_u64 vcc, 0
s_cbranch_scc0 {l}
s_lshl_b32 s29, s{sHD}, 16
s_lshl_b32 s30, s{sQB}, 13
s_add_u32 s29, s29, s30
v_lshlrev_b32 v1, 7, v0
buffer_load_dword v244, v1, s[{SRD_WS}:{SRD_WS+3}], s29 offen
s_add_u32 s29, s29, {KF}
buffer_load_dword v245, v1, s[{SRD_WS}:{SRD_WS+3}], s29 offen
s_add_u32 s29, s29, {VF-KF}
buffer_load_dword v246, v1, s[{SRD_WS}:{SRD_WS+3}], s29 offen
s_mov_b32 s{sVER}, 1
{l}:
""")
            if gs == 12 and uh == 0:
                a(f"""
s_lshr_b32 s29, s{sHD}, 1
v_and_b32 v1, 48, v0
v_min_u32 v1, 32, v1
v_add_u32 v1, s29, v1
v_mul_u32_u24 v1, 0x5556, v1
v_lshrrev_b32 v1, 16, v1
v_lshlrev_b32 v1, 7, v1
v_and_b32 v7, 15, v0
v_lshl_add_u32 v7, v7, 2, v1
v_add_u32 v7, {F1}, v7
""")
                self.poll_issue(7)
        def csp_write(tiles, t0):
            a(f"v_lshlrev_b32 v1, 4, v0")
            a(f"s_lshl_b32 s29, s{sTB}, 2")
            a(f"s_add_u32 s29, s29, {CSP + t0*512}")
            a(f"v_add_u32 v1, s29, v1")
            a("s_mov_b64 exec, 0xffff")
            for t in range(tiles):
                a(f"ds_write_b32 v1, v{CS+4*t} offset:{t*512}"); lg.issue("csp")
                a(f"ds_write_b32 v1, v{CS+4*t+1} offset:{t*512+256}"); lg.issue("csp")
            a("s_mov_b64 exec, -1")

        S2, S2b, S1, S1b, ONES = ACC+48, ACC+52, ACC+56, ACC+60, 248
        sHI = 34
        for gs in range(3): dma(gs)
        if uh == 0 and "tlb" in opt:
            a(f"""
v_and_b32 v1, 1, v0
v_lshlrev_b32 v1, 20, v1
s_mov_b64 exec, 3
buffer_load_dword v250, v1, s[{SRD_WF}:{SRD_WF+3}], 0 offen
buffer_load_dword v250, v1, s[{SRD_W3}:{SRD_W3+3}], 0 offen
global_load_dword v250, v1, s[{pW2}:{pW2+1}]
s_mov_b64 exec, 1
global_load_dword v250, v1, s[{pWO}:{pWO+1}]
global_load_dword v250, v1, s[{pOUT}:{pOUT+1}]
s_mov_b64 exec, -1
""")
        if uh == 0 and "nompx" not in opt and "mpx1" not in opt: self.mall_prefetch("x")
        if uh == 0 and "nocode" not in opt: self.code_prefetch()
        self.prologue2()
        a(f"s_mov_b32 s{sHI}, 0xffff0000")
        if uh == 0:
            for i in range(64): a(f"v_mov_b32 v{ACC+i}, 0")
            for i in range(12): a(f"v_mov_b32 v{CS+i}, 0")
            for i in range(2): a(f"v_mov_b32 v{ONES+i}, 0x3f803f80")
            sel_init(SELR)
        a(f"""
s_waitcnt lgkmcnt(0)
s_mul_i32 s{sTAG}, s{sTAG}, 0x9E3779B1
s_add_u32 s{sTAG}, s{sTAG}, 0x7F4A7C15
""")
        vm.wait("d0")
        a("s_barrier")
        stamp(1)
        if (f"pq{uh}" in opt): a("s_setprio 1")
        def xread(ks):
            c, j = ks >> 2, ks & 3
            a(f"ds_read_b128 {vr(xreg(ks),4)}, v{AX+j} offset:{(c&1)*SLOT}"); lg.issue(f"x{ks}")
            bump(AX+j, c)
        if uh == 1:
            for ks in range(32):
                c, j = ks >> 2, ks & 3
                if j == 2:
                    if c > 0: lg.wait(f"x{4*c-1}")
                    midbar(c)
                xread(ks)
                dma_one(); dma_one()
            while pending: dma_one()
            stamp(2)
            a("s_waitcnt lgkmcnt(0)"); lg.reset()
            if f16:
                for u in range(8): xconv(u)
            a("s_barrier")
            if f16:
                for u in range(8, 16): xconv(u)
            else:
                a(f"""
v_and_b32 v1, 31, v0
s_lshl_b32 s29, s{sTB}, 5
v_add_u32 v1, s29, v1
v_lshlrev_b32 v1, 3, v1
v_add_u32 v1, {STAT}, v1
ds_read_b64 v[2:3], v1
v_cmp_gt_u32 vcc, 32, v0
s_waitcnt lgkmcnt(0)
v_mov_b32 v{vS}, v3
v_rcp_f32 v{vR}, v3
v_cndmask_b32 v{vNM}, 0, v2, vcc
""")
        else:
            QS = [[WF, WF+4, WF+8], [WF+12, SEL, 244]]
            def qread(ks, part):
                c, j = ks >> 2, ks & 3
                if part == 0: xread(ks)
                wread(QS[ks & 1][part], c, j, 16384 + part*64, f"w{ks}_{part}")
                if part == 2: bump(AW+j, c)
            for p_ in range(3): qread(0, p_)
            if "mpx1" in opt: self.mall_prefetch("x")
            if "pf" in opt: self.l2_pf_qkv()
            for ks in range(32):
                c, j = ks >> 2, ks & 3
                if ks == 8 and ("pf" in opt or "pff" in opt): self.l2_pf_ffn()
                if ks == (8 if "mf8" in opt else 4) and "nomf" not in opt: self.mall_prefetch("f")
                if j == 3: midbar(c)
                fr = QS[ks & 1]; xr = xreg(ks)
                for t in range(3):
                    lg.wait(f"x{ks}", f"w{ks}_{t}")
                    a(mfma(ACC+16*t, fr[t], xr, ACC+16*t))
                    if ks + 1 < 32: qread(ks+1, t)
                if j < 3: sel(j, fr[j], SELR)
                if f16 and c > 0: xconv(2*(c-1) + (j >> 1), (0, 1) if (j & 1) == 0 else (2, 3))
                if j == 3 and "nomf4" not in opt:
                    for q in range(4):
                        x4 = xreg(4*c+q)
                        a(mf4(S2, x4, x4)); a(mf4(S1, x4, ONES)); a(mf4(S2b, x4+2, x4+2)); a(mf4(S1b, x4+2, ONES))
            if f16: xconv(14); xconv(15)
            else: a.nop(2)
            csp_write(3, 0)
            if "pfdummy" in opt: pass
            stamp(2)
            T = WF
            a.nop(4)
            for i in range(4):
                a(f"v_add_f32 v{S2+i}, v{S2+i}, v{S2b+i}")
                a(f"v_add_f32 v{S1+i}, v{S1+i}, v{S1b+i}")
            a(f"""
v_and_b32 v1, 3, v0
v_cmp_eq_u32 vcc, 1, v1
v_cmp_eq_u32 s[30:31], 2, v1
v_cmp_eq_u32 s[32:33], 3, v1
s_nop 1
v_cndmask_b32 v{S2}, v{S2}, v{S2+1}, vcc
v_cndmask_b32 v{S1}, v{S1}, v{S1+1}, vcc
v_cndmask_b32 v{S2}, v{S2}, v{S2+2}, s[30:31]
v_cndmask_b32 v{S1}, v{S1}, v{S1+2}, s[30:31]
v_cndmask_b32 v{S2}, v{S2}, v{S2+3}, s[32:33]
v_cndmask_b32 v{S1}, v{S1}, v{S1+3}, s[32:33]
v_and_b32 v1, 31, v0
s_lshl_b32 s29, s{sTB}, 5
v_mov_b32 v{S1+1}, v{S1}
v_mov_b32 v{S2+1}, v{S2}
v_add_u32 v1, s29, v1
v_lshlrev_b32 v1, 3, v1
v_permlane32_swap_b32 v{S1}, v{S1+1}
v_permlane32_swap_b32 v{S2}, v{S2+1}
v_add_u32 v1, {STAT}, v1
s_nop 0
v_add_f32 v{S1}, v{S1}, v{S1+1}
v_add_f32 v{S2}, v{S2}, v{S2+1}
v_mul_f32 v{S1}, 0x3b000000, v{S1}
v_mul_f32 v{S2}, 0x3b000000, v{S2}
v_fma_f32 v{S2}, -v{S1}, v{S1}, v{S2}
v_max_f32 v{S2}, 0, v{S2}
v_cvt_pk_bf16_f32 v{T}, v{S1}, v{S1}
v_cvt_pk_bf16_f32 v{T+1}, v{S2}, v{S2}
v_xor_b32 v{T}, 0x80008000, v{T}
v_lshlrev_b32 v{T+1}, 16, v{T+1}
v_add_f32 v{T+1}, 0x3727c5ac, v{T+1}
v_cvt_pk_bf16_f32 v{T+1}, v{T+1}, v{T+1}
v_lshlrev_b32 v{T+1}, 16, v{T+1}
v_sqrt_f32 v{T+1}, v{T+1}
v_cmp_gt_u32 vcc, 32, v0
v_cvt_pk_bf16_f32 v{T+1}, v{T+1}, v{T+1}
v_lshlrev_b32 v{T+1}, 16, v{T+1}
s_mov_b32 exec_hi, 0
ds_write_b64 v1, {vr(T,2)}
s_mov_b64 exec, -1
v_mov_b32 v{vS}, v{T+1}
v_rcp_f32 v{vR}, v{T+1}
v_cndmask_b32 v{vNM}, 0, v{T}, vcc
v_and_b32 v4, 31, v0
v_lshlrev_b32 v4, 4, v4
v_add_u32 v4, {CSP}, v4
""")
            a("s_waitcnt lgkmcnt(0)"); lg.reset()
            a("s_barrier")
        def rank1(tiles, t0, accs, frs, xn, stat=False):
            for t in range(tiles):
                a(f"ds_read_b128 {vr(frs[t],4)}, v4 offset:{(t0+t)*512}")
            if stat:
                a(f"""
s_waitcnt lgkmcnt({tiles})
v_mov_b32 v{vS}, v3
v_rcp_f32 v{vR}, v3
v_cndmask_b32 v{vNM}, 0, v2, vcc
""")
            a(f"""
v_mov_b32 v{xn+1}, 0
v_mov_b32 v{xn+2}, 0
v_mov_b32 v{xn+3}, 0
v_mov_b32 v{xn}, v{vNM}
""")
            for t in range(tiles):
                f = frs[t]
                a(f"s_waitcnt lgkmcnt({tiles-1-t})")
                a(f"v_add_f32 v{f}, v{f}, v{f+1}")
                a(f"v_add_f32 v{f+2}, v{f+2}, v{f+3}")
                a(f"v_mov_b32 v{f+3}, 0")
                a(f"v_add_f32 v{f}, v{f}, v{f+2}")
                a(f"v_cvt_pk_bf16_f32 v{f+1}, v{f}, v{f}")
                a(f"v_lshlrev_b32 v{f+1}, 16, v{f+1}")
                a(f"v_sub_f32 v{f+2}, v{f}, v{f+1}")
                a(f"v_cvt_pk_bf16_f32 v{f}, v{f+1}, v{f+2}")
                a(f"v_mov_b32 v{f+1}, 0")
                a(f"v_mov_b32 v{f+2}, 0")
                a("s_nop 1")
                a(mfma(accs[t], frs[t], xn, accs[t]))
        if uh == 0:
            rank1(3, 0, [ACC, ACC+16, ACC+32], [WF, WF+4, WF+8], WF+12)
            a.nop(6)
            PK = [WF, WF+8, CSA]
            sB = [66, 69, 43]
            nva = L(f"{P}_nva")
            a(f"""
s_cmp_lt_u32 s{sCS}, 10
s_cbranch_scc1 {nva}
s_mul_i32 s33, s{sTB}, 6144
s_add_u32 s33, s33, {VSCR}
v_and_b32 v1, 31, v0
v_lshlrev_b32 v1, 6, v1
v_lshrrev_b32 v2, 5, v0
v_lshl_add_u32 v1, v2, 3, v1
v_bfe_u32 v7, v0, 1, 2
v_lshl_add_u32 v1, v7, 4, v1
v_add_u32 v1, s33, v1
v_lshlrev_b32 v5, 3, v2
v_bfe_u32 v3, v0, 2, 2
v_add_u32 v5, v5, v3
v_lshlrev_b32 v5, 6, v5
v_bfe_u32 v3, v0, 4, 1
v_lshl_add_u32 v5, v3, 5, v5
v_and_b32 v7, 3, v0
v_lshl_add_u32 v5, v7, 3, v5
v_bfe_u32 v7, v0, 3, 1
v_lshlrev_b32 v7, 4, v7
v_xor_b32 v5, v7, v5
v_lshlrev_b32 v3, 16, v3
v_lshl_add_u32 v3, v2, 8, v3
v_and_b32 v7, 15, v0
v_lshl_add_u32 v3, v7, 4, v3
v_add_u32 v2, s33, v5
v_xor_b32 v4, 32, v5
v_add_u32 v4, s33, v4
{nva}:
s_mul_i32 s31, s{sCS}, 3
""")
            for t in range(3):
                A_ = ACC + 16*t; Pk = PK[t]
                lv, ld = L(f"{P}_v{t}"), L(f"{P}_d{t}")
                a(f"""
s_add_u32 s30, s31, {t}
s_cmp_lt_u32 s30, 16
s_cselect_b32 s29, {CQ_BITS}, 1.0
v_mul_f32 v6, s29, v{vR}
s_lshl_b32 s{sB[t]}, s30, 17
s_lshl_b32 s32, s{sTBG}, 10
s_add_u32 s{sB[t]}, s{sB[t]}, s32
""")
                if t == 2: a.nop(4)
                for i in range(16): a(f"v_mul_f32 v{A_+i}, v{A_+i}, v6")
                for i in range(8): a(f"v_cvt_pk_bf16_f32 v{Pk+i}, v{A_+2*i}, v{A_+2*i+1}")
                a(f"""
s_cmp_ge_u32 s30, 32
s_cbranch_scc1 {lv}
s_add_u32 s32, s{sB[t]}, 65536
buffer_store_dwordx4 {vr(Pk,4)}, v{vL16}, s[{SRD_WS}:{SRD_WS+3}], s{sB[t]} offen sc1
buffer_store_dwordx4 {vr(Pk+4,4)}, v{vL16}, s[{SRD_WS}:{SRD_WS+3}], s32 offen sc1
s_branch {ld}
{lv}:
""")
                for j in range(4):
                    if j: a(f"v_xor_b32 v5, {16*j}, v1")
                    a(f"ds_write_b64 v{5 if j else 1}, {vr(Pk+2*j,2)} offset:{2048*t}")
                a(f"{ld}:")
            nov = L(f"{P}_nov")
            a(f"""
s_cmp_lt_u32 s{sCS}, 10
s_cbranch_scc1 {nov}
s_waitcnt lgkmcnt(0)
""")
            for t in range(3):
                Pk = PK[t]; l = L(f"{P}_vr{t}")
                if t < 2: a(f"s_cmp_eq_u32 s{sCS}, 10\ns_cbranch_scc1 {l}")
                for q, off in enumerate((0, 256, 1024, 1280)):
                    a(f"ds_read_b64_tr_b16 {vr(Pk+2*q,2)}, v{4 if q & 1 else 2} offset:{2048*t+off}")
                if t < 2: a(f"{l}:")
            a("s_waitcnt lgkmcnt(0)")
            for t in range(3):
                Pk = PK[t]; l = L(f"{P}_vs{t}")
                if t < 2: a(f"s_cmp_eq_u32 s{sCS}, 10\ns_cbranch_scc1 {l}")
                a(f"buffer_store_dwordx4 {vr(Pk,4)}, v3, s[{SRD_WS}:{SRD_WS+3}], s{sB[t]} offen sc1")
                a(f"buffer_store_dwordx4 {vr(Pk+4,4)}, v3, s[{SRD_WS}:{SRD_WS+3}], s{sB[t]} offen offset:512 sc1")
                if t < 2: a(f"{l}:")
            a(f"{nov}:")
            vm.issue("st", 6)
        stamp(3)
        a(f"s_setprio {1 if f'pf{uh}' in opt else 0}") if any(o in opt for o in ("pq0","pq1","pf0","pf1")) else None
        def ffn32():
            nonlocal SELR
            nf = 4 if uh == 0 else 2
            tf0 = 0 if uh == 0 else 4
            def foff(t):
                tt = tf0 + t
                return (tt & 1)*12288 + (tt >> 1)*64
            a("s_nop 1")
            if uh == 0:
                for t in range(4): wread(WF+4*t, 8, 0, foff(t), f"f0_{t}")
            else:
                FS = [[WF, WF+4], [WF+8, WF+12], [ACC+40, ACC+44]]
                def freads(ks):
                    f, j = ks >> 2, ks & 3
                    for t in range(2): wread(FS[ks % 3][t], 8+f, j, foff(t), f"f{ks}")
                    bump(AW+j, 8+f)
                freads(0); freads(1)
            for i in range(16*nf): a(f"v_mov_b32 v{ACC+i}, 0")
            if uh == 0:
                for i in range(12): a(f"v_mov_b32 v{CS+i}, 0")
                for i in range(4): a(f"v_mov_b32 v{SEL+i}, v{CSA+12+i}")
                for i in range(4): a(f"v_mov_b32 v{CS+12+i}, 0")
                SELR = SEL
            else:
                for i in range(8): a(f"v_mov_b32 v{CS+i}, 0")
                sel_init(SELR)
            adds = []
            def flush_adds(n):
                for _ in range(n):
                    if adds: a(adds.pop(0))
            for ks in range(32):
                f, j = ks >> 2, ks & 3
                gs = 8 + f
                if j == 2 and f < 7: midbar(gs)
                if uh == 0:
                    for t in range(4):
                        lg.wait(f"f{ks}_{t}")
                        a(mfma(ACC+16*t, WF+4*t, xreg(ks), ACC+16*t))
                        if j == t: sel(t, WF+4*t, SELR)
                        if ks + 1 < 32:
                            k2 = ks + 1
                            wread(WF+4*t, 8+(k2>>2), k2&3, foff(t), f"f{k2}_{t}")
                    k2 = ks + 1
                    if k2 < 32: bump(AW+(k2&3), 8+(k2>>2))
                else:
                    if ks + 2 < 32: freads(ks+2)
                    lg.wait(f"f{ks}")
                    for t in range(2):
                        a(mfma(ACC+16*t, FS[ks % 3][t], xreg(ks), ACC+16*t))
                        dma_one()
                    if j < 2: sel(j, FS[ks % 3][j], SELR)
            a.nop(8)
            csp_write(nf, tf0)
            stamp(4)
            if uh == 0:
                lv_ = a.newlabel(L("ver"))
                a(f"s_cmp_eq_u32 s{sVER}, 1\ns_cbranch_scc1 {lv_}")
                self.poll_check(7, 0)
                a(f"{lv_}:")
            if self.stamps and uh == 0: a(f"s_mov_b32 s101, s{sVER}")
            a("s_waitcnt lgkmcnt(0)"); lg.reset()
            a("s_barrier")
            kv = self.attn_loads(uh)
            def kv_one(n=1):
                for _ in range(n):
                    if kv: a(kv.pop(0))
            XN2 = X
            a(f"""
v_and_b32 v4, 31, v0
v_lshlrev_b32 v4, 4, v4
v_add_u32 v4, {CSP}, v4
""")
            kv_one(2 if uh == 0 else 10)
            rank1(nf, tf0, [ACC+16*t for t in range(nf)], [WF+4*t for t in range(nf)], XN2)
            cA, cB = X+4, X+6
            a(f"""
v_mul_f32 v{cA}, 0xbfb8aa3b, v{vR}
v_mul_f32 v{cB}, v{vS}, v{vS}
""")
            a.nop(12)
            stores = []
            npairs = nf//2
            for i in range(npairs):
                G, U = ACC+32*i, ACC+32*i+16
                T = X + 8 + 32*i; Pk = X + 8 + 32*i + 16
                body = []
                body += [f"v_pk_mul_f32 {vr(T+r,2)}, {vr(G+r,2)}, {vr(cA,2)} op_sel_hi:[1,0]" for r in range(0,16,2)]
                body += [f"v_exp_f32 v{T+r}, v{T+r}" for r in range(16)]
                body += [f"v_pk_mul_f32 {vr(G+r,2)}, {vr(G+r,2)}, {vr(U+r,2)}" for r in range(0,16,2)]
                body += [f"v_pk_fma_f32 {vr(T+r,2)}, {vr(T+r,2)}, {vr(cB,2)}, {vr(cB,2)} op_sel_hi:[1,0,0]" for r in range(0,16,2)]
                body += [f"v_rcp_f32 v{T+r}, v{T+r}" for r in range(16)]
                body += ["s_nop 0"]
                body += [f"v_pk_mul_f32 {vr(G+r,2)}, {vr(G+r,2)}, {vr(T+r,2)}" for r in range(0,16,2)]
                body += [f"v_cvt_pk_bf16_f32 v{Pk+r}, v{G+2*r}, v{G+2*r+1}" for r in range(8)]
                for ins in body: a(ins)
                stores.append((i, Pk))
            for (i, Pk) in stores:
                a(f"""
s_mul_i32 s29, s{sCS}, 3
s_add_u32 s29, s29, {(tf0>>1)+i}
s_mul_i32 s30, s{sTBG}, 86
s_lshl_b32 s31, s29, 1
s_add_u32 s30, s30, s31
s_lshl_b32 s30, s30, 10
s_add_u32 s30, s30, {HF}
s_cmp_ge_u32 s29, 43
s_cselect_b32 s30, {WSEND}, s30
buffer_store_dwordx4 {vr(Pk,4)}, v{vL16}, s[{SRD_WS}:{SRD_WS+3}], s30 offen sc1
buffer_store_dwordx4 {vr(Pk+4,4)}, v{vL16}, s[{SRD_WS}:{SRD_WS+3}], s30 offen offset:1024 sc1
""")
            if uh == 1: self.kv_stage1 = list(kv)

        def ffn16():
            npl = 2 if uh == 0 else 1
            p0 = 0 if uh == 0 else 2
            nfr = 4*npl
            def mf16(d, A, B): return f"v_mfma_f32_16x16x32_bf16 {vr(d,4)}, {vr(A,4)}, {vr(B,4)}, {vr(d,4)}"
            def acc(il, mat, s_, sb): return ACC + 4*(((il*2+mat)*2+s_)*2+sb)
            BW = lambda kk, s_: AW + 2*kk + s_
            a(f"""
v_lshrrev_b32 v1, 5, v0
v_lshlrev_b32 v1, 5, v1
v_bfe_u32 v2, v0, 2, 2
v_add_u32 v1, v1, v2
v_bfe_u32 v3, v0, 4, 1
v_and_b32 v4, 3, v0
v_lshrrev_b32 v5, 1, v4
v_and_b32 v4, 1, v4
v_lshl_or_b32 v4, v4, 1, v5
v_lshlrev_b32 v4, 3, v4
""")
            for kk in range(2):
                a(f"""
v_or_b32 v5, {2*kk}, v3
v_xor_b32 v5, s{sTB}, v5
v_lshl_add_u32 v5, v5, 3, v1
v_mul_u32_u24 v5, 0xc0, v5
v_add_u32 v5, v5, v4
v_lshl_add_u32 v{BW(kk,0)}, v3, 5, v5
v_xor_b32 v6, 1, v3
v_lshl_add_u32 v{BW(kk,1)}, v6, 5, v5
""")
            BUF = [WF, WF+4, WF+8, WF+12]
            def fread(q, half):
                if q >= 16*nfr: return
                u, fr = divmod(q, nfr)
                f, kk = u >> 1, u & 1
                il, mat, s_ = fr >> 2, (fr >> 1) & 1, fr & 1
                imm = ((8+f) & 1)*SLOT + mat*12288 + (p0+il)*64
                d = BUF[q & 3]
                a(f"ds_read_b64_tr_b16 {vr(d+2*half,2)}, v{BW(kk,s_)} offset:{imm+768*half}"); lg.issue(f"g{q}")
                if half == 1 and fr >= nfr-2: bump(BW(kk,s_), 8+f)
            for q in range(3): fread(q, 0); fread(q, 1)
            for i in range(16*2*npl): a(f"v_mov_b32 v{ACC+i}, 0")
            SR = SEL if uh == 0 else ACC + 48
            for i in range(8*npl): a(f"v_mov_b32 v{CS+i}, 0")
            a(f"""
v_and_b32 v1, 15, v0
v_cmp_eq_u32 vcc, 0, v1
v_mov_b32 v3, 0x3f803f80
s_nop 0
v_cndmask_b32 v{SR}, 0, v3, vcc
v_mov_b32 v{SR+1}, v{SR}
v_mov_b32 v{SR+2}, v{SR}
v_mov_b32 v{SR+3}, v{SR}
""")
            for u in range(16):
                f, kk = u >> 1, u & 1
                if kk == 1 and f < 7: midbar(8+f)
                for fr in range(nfr):
                    il, mat, s_ = fr >> 2, (fr >> 1) & 1, fr & 1
                    q = u*nfr + fr
                    b = BUF[q & 3]
                    lg.wait(f"g{q}")
                    a(mf16(acc(il,mat,s_,0), b, xreg(2*u)))
                    fread(q+3, 0)
                    a(mf16(acc(il,mat,s_,1), b, xreg(2*u+1)))
                    fread(q+3, 1)
                    if kk == 0 and s_ == 0 and "nocs" not in opt:
                        t = il*2+mat
                        a(f"v_mfma_f32_16x16x32_bf16 {vr(CS+4*t,4)}, {vr(SR,4)}, {vr(b,4)}, {vr(CS+4*t,4)}")
                    if uh == 1 and fr != 3: dma_one()
            a.nop(8)
            a(f"""
v_lshlrev_b32 v1, 3, v0
s_and_b32 s29, s{sTB}, 1
s_lshl_b32 s29, s29, 7
s_lshr_b32 s30, s{sTB}, 1
s_lshl_b32 s30, s30, 2
s_add_u32 s29, s29, s30
s_add_u32 s29, s29, {CSP + p0*512}
v_add_u32 v1, s29, v1
s_mov_b64 exec, 0xffff
""")
            for t in range(2*npl): a(f"ds_write_b32 v1, v{CS+4*t} offset:{t*256}")
            a("s_mov_b64 exec, -1")
            stamp(4)
            if uh == 0:
                lv_ = a.newlabel(L("ver"))
                a(f"s_cmp_eq_u32 s{sVER}, 1\ns_cbranch_scc1 {lv_}")
                self.poll_check(7, 0)
                a(f"{lv_}:")
            if self.stamps and uh == 0: a(f"s_mov_b32 s101, s{sVER}")
            a("s_waitcnt lgkmcnt(0)"); lg.reset()
            a("s_barrier")
            kv = self.attn_loads(uh)
            def kv_one(n=1):
                for _ in range(n):
                    if kv: a(kv.pop(0))
            XN = [X, X+4]; cA = [X+8, X+10]; cB = [X+12, X+14]; vC = [X+16, X+17]
            a(f"""
v_and_b32 v1, 15, v0
s_lshl_b32 s29, s{sTB}, 5
v_add_u32 v2, s29, v1
v_lshlrev_b32 v2, 3, v2
v_add_u32 v2, {STAT}, v2
ds_read_b64 v[{X+20}:{X+21}], v2
ds_read_b64 v[{X+22}:{X+23}], v2 offset:128
v_lshlrev_b32 v1, 3, v1
s_and_b32 s29, s{sTB}, 1
s_lshl_b32 s29, s29, 7
s_add_u32 s30, s29, {CSP + p0*512}
v_add_u32 v{vC[0]}, s30, v1
s_xor_b32 s29, s29, 128
s_add_u32 s30, s29, {CSP + p0*512}
v_add_u32 v{vC[1]}, s30, v1
""")
            kv_one(2 if uh == 0 else 10)
            PR = [X+24+2*k for k in range(4*npl)]
            for t in range(2*npl):
                for s_ in range(2):
                    a(f"ds_read_b64 {vr(PR[t*2+s_],2)}, v{vC[s_]} offset:{t*256}")
            a(f"""
v_cmp_gt_u32 vcc, 16, v0
s_waitcnt lgkmcnt({4*npl})
""")
            for sb in range(2):
                nm, sd = X+20+2*sb, X+21+2*sb
                a(f"""
v_cndmask_b32 v{XN[sb]}, 0, v{nm}, vcc
v_mov_b32 v{XN[sb]+1}, 0
v_mov_b32 v{XN[sb]+2}, 0
v_mov_b32 v{XN[sb]+3}, 0
v_rcp_f32 v{cA[sb]}, v{sd}
v_mul_f32 v{cB[sb]}, v{sd}, v{sd}
""")
            for sb in range(2): a(f"v_mul_f32 v{cA[sb]}, 0xbfb8aa3b, v{cA[sb]}")
            for k in range(1, 4):
                for b_ in BUF: a(f"v_mov_b32 v{b_+k}, 0")
            a("s_waitcnt lgkmcnt(0)")
            for t in range(2*npl):
                for s_ in range(2):
                    pr = PR[t*2+s_]; b_ = BUF[(t*2+s_) & 3]
                    a(f"v_add_f32 v{pr}, v{pr}, v{pr+1}")
                    a(f"v_cvt_pk_bf16_f32 v{pr+1}, v{pr}, v{pr}")
                    a(f"v_lshlrev_b32 v{pr+1}, 16, v{pr+1}")
                    a(f"v_sub_f32 v{pr}, v{pr}, v{pr+1}")
                    a(f"v_cvt_pk_bf16_f32 v{b_}, v{pr+1}, v{pr}")
                    a("s_nop 1")
                    il, mat = t >> 1, t & 1
                    for sb in range(2): a(mf16(acc(il,mat,s_,sb), b_, XN[sb]))
            a.nop(8)
            stores = []
            for il in range(npl):
                T = X + 48 + 32*il; Pk = X + 48 + 32*il + 16
                body = []
                el = [(s_, sb) for s_ in range(2) for sb in range(2)]
                G = lambda s_, sb: acc(il, 0, s_, sb)
                U = lambda s_, sb: acc(il, 1, s_, sb)
                for n_, (s_, sb) in enumerate(el):
                    for r in (0, 2): body.append(f"v_pk_mul_f32 {vr(T+4*n_+r,2)}, {vr(G(s_,sb)+r,2)}, {vr(cA[sb],2)} op_sel_hi:[1,0]")
                body += [f"v_exp_f32 v{T+r}, v{T+r}" for r in range(16)]
                for n_, (s_, sb) in enumerate(el):
                    for r in (0, 2): body.append(f"v_pk_mul_f32 {vr(G(s_,sb)+r,2)}, {vr(G(s_,sb)+r,2)}, {vr(U(s_,sb)+r,2)}")
                for n_, (s_, sb) in enumerate(el):
                    for r in (0, 2): body.append(f"v_pk_fma_f32 {vr(T+4*n_+r,2)}, {vr(T+4*n_+r,2)}, {vr(cB[sb],2)}, {vr(cB[sb],2)} op_sel_hi:[1,0,0]")
                body += [f"v_rcp_f32 v{T+r}, v{T+r}" for r in range(16)]
                body += ["s_nop 0"]
                for n_, (s_, sb) in enumerate(el):
                    for r in (0, 2): body.append(f"v_pk_mul_f32 {vr(G(s_,sb)+r,2)}, {vr(G(s_,sb)+r,2)}, {vr(T+4*n_+r,2)}")
                for n_, (s_, sb) in enumerate(el):
                    for r in range(2): body.append(f"v_cvt_pk_bf16_f32 v{Pk+4*s_+2*sb+r}, v{G(s_,sb)+2*r}, v{G(s_,sb)+2*r+1}")
                body += ["s_nop 1"]
                for s_ in range(2):
                    for r in range(2): body.append(f"v_permlane16_swap_b32 v{Pk+4*s_+r}, v{Pk+4*s_+2+r}")
                for ins in body: a(ins)
                stores.append((il, Pk))
            for (il, Pk) in stores:
                a(f"""
s_mul_i32 s29, s{sCS}, 3
s_add_u32 s29, s29, {p0+il}
s_mul_i32 s30, s{sTBG}, 86
s_lshl_b32 s31, s29, 1
s_add_u32 s30, s30, s31
s_and_b32 s31, s{sTB}, 1
s_add_u32 s32, s30, s31
s_xor_b32 s31, s31, 1
s_add_u32 s30, s30, s31
s_lshl_b32 s32, s32, 10
s_lshl_b32 s30, s30, 10
s_add_u32 s32, s32, {HF}
s_add_u32 s30, s30, {HF}
s_cmp_ge_u32 s29, 43
s_cselect_b32 s32, {WSEND}, s32
s_cselect_b32 s30, {WSEND}, s30
buffer_store_dwordx4 {vr(Pk,4)}, v{vL16}, s[{SRD_WS}:{SRD_WS+3}], s32 offen sc1
buffer_store_dwordx4 {vr(Pk+4,4)}, v{vL16}, s[{SRD_WS}:{SRD_WS+3}], s30 offen sc1
""")
            if uh == 1: self.kv_stage1 = list(kv)
        if f16: ffn16()
        else: ffn32()
        if any(o in opt for o in ("pf0","pf1")): a("s_setprio 0")
        stamp(5)

    BQ = [216, 220]
    def kv_scalars(self):
        self.a(f"""
s_lshl_b32 s33, s{sHD}, 16
s_lshr_b32 s29, s{sW}, 1
s_and_b32 s29, s29, 1
s_and_b32 s30, s{sW}, 1
s_lshl_b32 s30, s30, 2
s_lshl_b32 s31, s{sUH}, 5
s_add_u32 s30, s30, s31
s_lshl_b32 s30, s30, 10
s_lshl_b32 s31, s29, 16
s_add_u32 s{sDST}, s31, s30
s_lshl_b32 s31, s29, 21
s_add_u32 s{sSRC}, s31, s30
s_add_u32 s{sSRC}, s{sSRC}, s33
s_add_u32 s{sSRC}, s{sSRC}, {KF}
""")
    def attn_loads(self, uh):
        a = self.a; Q = self.BQ
        a(f"""
s_lshl_b32 s33, s{sHD}, 16
s_lshl_b32 s{sTB0}, s{sQB}, 3
s_lshl_b32 s29, s{sTB}, 1
s_add_u32 s{sTB0}, s{sTB0}, s29
s_lshl_b32 s29, s{sTB0}, 10
s_add_u32 s69, s33, s29
""")
        self.kv_scalars()
        a(f"s_add_u32 s{sSRC}, s{sSRC}, 16384\ns_add_u32 s{sDST}, s{sDST}, 16384")
        g = []
        g.append(f"buffer_load_dwordx4 {vr(Q[0],4)}, v{vL16}, s[{SRD_WS}:{SRD_WS+3}], s69 offen sc1")
        g.append(f"buffer_load_dwordx4 {vr(Q[1],4)}, v{vL16}, s[{SRD_WS}:{SRD_WS+3}], s69 offen offset:1024 sc1")
        if uh == 1:
            a(f"""
s_and_b32 s29, s{sTB}, 1
s_lshr_b32 s30, s{sTB}, 1
s_lshl_b32 s30, s30, 15
s_lshl_b32 s31, s29, 16
s_add_u32 s{sK0D}, s31, s30
s_lshl_b32 s31, s29, 21
s_add_u32 s{sK0S}, s31, s30
s_add_u32 s{sK0S}, s{sK0S}, s33
s_add_u32 s{sK0S}, s{sK0S}, {KF}
""")
            for h_ in range(4):
                for q in range(4):
                    t = ""
                    if q == 0: t += f"s_mov_b32 m0, s{sK0D}\ns_add_u32 s{sK0D}, s{sK0D}, 4096\n"
                    t += f"buffer_load_dwordx4 v{vL16}, s[{SRD_WS}:{SRD_WS+3}], s{sK0S} offen offset:{q*1024} sc1 lds"
                    if q == 3: t += f"\ns_add_u32 s{sK0S}, s{sK0S}, 4096"
                    g.append(t)
        return g

    def phaseB(self):
        a = self.a; L = self.L; opt = self.opt; stamp = self.stamp
        vAK, vAV, vIDX = 2, 3, 4
        Q = self.BQ; K = [16, 20]; V = [24, 32]; S = [40, 56]; O = [72, 88]; C = [104, 120]; T = 136
        NST = 4
        a("s_nop 1")
        a(f"""
v_mov_b32 v{vIDX}, 0xdddddddd
v_and_b32 v5, 27, v0
v_cmp_eq_u32 vcc, 16, v5
v_mov_b32 v6, 0x3f803f80
s_mov_b32 s{sMASK}, 0x0000ffff
v_cndmask_b32 v{V[0]}, 0, v6, vcc
""")
        a(f"v_mov_b32 v{V[0]+1}, v{V[0]}")
        for i in range(2,16,2): a(f"v_mov_b64 {vr(V[0]+i,2)}, {vr(V[0],2)}")
        a(f"""
s_mov_b32 s{sMASK+1}, 0x0000ffff
s_mov_b32 s{sREDO}, 0
s_lshl_b32 s35, s{sUH}, 15
v_lshrrev_b32 v5, 5, v0
v_lshlrev_b32 v5, 8, v5
v_and_b32 v6, 15, v0
v_lshl_add_u32 v5, v6, 4, v5
s_add_u32 s29, s35, 65536
v_add_u32 v1, s29, v5
v_mov_b32 v5, {FLAG}
v_mov_b32 v6, 0
ds_write_b32 v5, v6
""")
        for t in range(2):
            for i in range(0,16,2): a(f"v_mov_b64 {vr(O[t]+i,2)}, 0")
        a(f"""
s_waitcnt vmcnt(4) lgkmcnt(0)
s_cmp_eq_u32 s{sUH}, 0
s_cbranch_scc1 {L('bw0')}
s_waitcnt vmcnt(2)
{L('bw0')}:
s_barrier
""")
        stamp(6)
        a.label(L('redo'))
        a(f"""
s_cmp_eq_u32 s{sREDO}, 0
s_cselect_b32 s29, 1, 32
v_add_u32 v{vAK}, s35, v{vL16}
v_mov_b32 v{T}, 0xff800000
v_mov_b32 v{T+1}, 0xff800000
""")
        a.label(L('maxloop'))
        a(f"""
ds_read_b128 {vr(K[0],4)}, v{vAK}
v_add_u32 v{vAK}, 1024, v{vAK}
s_waitcnt lgkmcnt(0)
{mfma(S[0],K[0],Q[0],None)}
{mfma(S[1],K[0],Q[1],None)}
s_sub_u32 s29, s29, 1
""")
        a.nop(12)
        for i in range(8):
            for t in range(2):
                a(f"v_max3_f32 v{T+t}, v{T+t}, v{S[t]+2*i}, v{S[t]+2*i+1}")
        a(f"""
s_cmp_lg_u32 s29, 0
s_cbranch_scc1 {L('maxloop')}
v_mov_b32 v{T+2}, v{T}
v_mov_b32 v{T+3}, v{T+1}
v_add_u32 v{vAK}, s35, v{vL16}
v_mov_b32 v{vAV}, v1
v_permlane32_swap_b32 v{T}, v{T+2}
v_permlane32_swap_b32 v{T+1}, v{T+3}
s_mov_b64 exec, s[{sMASK}:{sMASK+1}]
ds_read_b128 {vr(V[0],4)}, v{vAV}
ds_read_b128 {vr(V[0]+4,4)}, v{vAV} offset:512
s_mov_b64 exec, -1
v_max_f32 v{T}, v{T}, v{T+2}
v_max_f32 v{T+1}, v{T+1}, v{T+3}
""")
        a(f"ds_read_b128 {vr(K[0],4)}, v{vAK}")
        for i in range(16): a(f"v_sub_f32 v{C[0]+i}, 0, v{T}")
        a("s_waitcnt lgkmcnt(0)")
        a("s_nop 0")
        a(mfma(S[0],K[0],Q[0],C[0]))
        for i in range(16): a(f"v_sub_f32 v{C[1]+i}, 0, v{T+1}")
        for i in range(8,16): a(f"v_mov_b32 v{S[1]+i}, 0")
        def tile(p, off):
            exA = [f"v_exp_f32 v{S[0]+i}, v{S[0]+i}" for i in range(16)]
            exB = [f"v_exp_f32 v{S[1]+i}, v{S[1]+i}" for i in range(16)]
            insA = [
                (3, smf(O[1], V[p^1]+4, S[1]+8, vIDX)),
                (5, mfma(S[1], K[p], Q[1], None if "c0" in opt else C[1])),
                (8, f"ds_read_b128 {vr(K[p^1],4)}, v{vAK} offset:{off}"),
                (8, f"s_mov_b64 exec, s[{sMASK}:{sMASK+1}]"),
                (8, f"ds_read_b128 {vr(V[p^1],4)}, v{vAV} offset:{off}"),
                (8, f"ds_read_b128 {vr(V[p^1]+4,4)}, v{vAV} offset:{off+512}"),
                (8, f"s_mov_b64 exec, -1"),
                (11, smf(O[0], V[p], S[0], vIDX)),
            ]
            insB = [
                (3, smf(O[0], V[p]+4, S[0]+8, vIDX)),
                (5, "s_waitcnt lgkmcnt(0)"),
                (5, mfma(S[0], K[p^1], Q[0], None if "c0" in opt else C[0])),
                (11, smf(O[1], V[p], S[1], vIDX)),
            ]
            for l in interleave(exA, insA): a(l)
            for l in interleave(exB, insB): a(l)
        def kv_stage():
            a(f"s_mov_b32 m0, s{sDST}\ns_add_u32 s{sDST}, s{sDST}, 8192")
            for q in range(4):
                a(f"buffer_load_dwordx4 v{vL16}, s[{SRD_WS}:{SRD_WS+3}], s{sSRC} offen offset:{q*1024} sc1 lds")
            a(f"s_add_u32 s{sSRC}, s{sSRC}, 8192")
        a(f"s_cmp_lg_u32 s{sREDO}, 0")
        a(f"s_cbranch_scc1 {L('rloop0')}")
        stamp(7)
        for o_, who in (("prio_old", 0), ("prio_young", 1)):
            if o_ in opt or (o_ == "prio_young" and "noprio" not in opt and "prio_old" not in opt):
                lp_ = a.newlabel(L("prio"))
                a(f"s_cmp_lg_u32 s{sUH}, {who}\ns_cbranch_scc1 {lp_}\ns_setprio 3\n{lp_}:")
        for T_ in range(32):
            st_, t = T_ >> 3, T_ & 7
            if T_ == 0:
                l1_ = L('kv1')
                a(f"s_cmp_eq_u32 s{sUH}, 0\ns_cbranch_scc1 {l1_}")
                for g_ in self.kv_stage1: a(g_)
                a(f"{l1_}:")
            if st_ == 0 and t in (2, 4): kv_stage()
            if st_ == 0 and t == 6:
                a("s_waitcnt vmcnt(8)\ns_barrier")
                a(f"""
s_lshl_b32 s29, s{sRB}, 7
s_lshl_b32 s30, s{sCS}, 2
s_add_u32 s29, s29, s30
s_add_u32 s29, s29, {F2}
""")
                self.signal(29)
                a(f"""
s_lshr_b32 s29, s{sRB64}, 1
s_lshl_b32 s29, s29, 7
s_add_u32 s29, s29, {F2}
v_and_b32 v7, 15, v0
v_lshl_add_u32 v7, v7, 2, s29
""")
            if st_ == 1 and t == 6:
                a("s_waitcnt vmcnt(0)\ns_barrier")
                self.poll_issue(7)
            if st_ == 2 and t < 4 and "nocpf" not in opt:
                lp = L(f'cpf{t}')
                a(f"""
s_cmp_lg_u32 s{sTB}, {t}
s_cbranch_scc1 {lp}
s_lshr_b32 s29, s2, 3
s_lshl_b32 s29, s29, 9
s_lshl_b32 s30, s{sW}, 6
s_add_u32 s29, s29, s30
v_add_u32 v5, s29, v0
v_lshlrev_b32 v5, 7, v5
s_mov_b32 s{SRD_WQ}, s{pW2}
s_mov_b32 s{SRD_WQ+1}, s{pW2+1}
s_mov_b32 s{SRD_WQ+2}, {1376*1024}
buffer_load_dword v163, v5, s[{SRD_WQ}:{SRD_WQ+3}], 0 offen
v_subrev_u32 v6, {1376*1024}, v5
s_mov_b32 s{SRD_WF}, s{pWO}
s_mov_b32 s{SRD_WF+1}, s{pWO+1}
s_mov_b32 s{SRD_WF+2}, {512*1024}
buffer_load_dword v164, v6, s[{SRD_WF}:{SRD_WF+3}], 0 offen
{lp}:
""")
            early = "cearly" in opt
            if st_ == 2 and t == 5: self.c_setup()
            if early and st_ == 2 and t == 6:
                self.poll_check(7, 1, wait=(True if "nocpf" in opt else 2))
                a("s_barrier")
                cq = self.c_pieces() + self.c_pieces()
            if early and st_ == 3 and t == 6:
                a("s_barrier")
                cq = self.c_pieces()
            if early and ((st_ == 2 and t >= 6) or (st_ == 3 and (t < 2 or t >= 6))):
                lq = a.newlabel(L("cq"))
                a(f"s_cmp_eq_u32 s{sUH}, 0\ns_cbranch_scc1 {lq}")
                for _ in range(4): a(cq.pop(0))
                a(f"{lq}:")
            if not early and st_ == 2 and t == 6 and "nohpf" not in opt:
                l3 = L('hpf')
                a(f"""
s_cmp_lg_u32 s{sW}, 0
s_cbranch_scc1 {l3}
s_waitcnt vmcnt({0 if "nocpf" in opt else 2})
v_cmp_ne_u32 vcc, s{sTAG}, v{vPOLL}
s_nop 4
s_cmp_eq_u64 vcc, 0
s_cbranch_scc0 {l3}
s_mul_i32 s29, s{sRB64}, 176128
s_mul_i32 s30, s{sCB}, {172*128}
s_add_u32 s29, s29, s30
s_add_u32 s29, s29, {HF}
v_lshlrev_b32 v5, 7, v0
buffer_load_dword v160, v5, s[{SRD_WS}:{SRD_WS+3}], s29 offen
v_add_u32 v5, 8192, v5
buffer_load_dword v161, v5, s[{SRD_WS}:{SRD_WS+3}], s29 offen
v_add_u32 v5, 8192, v5
v_min_u32 v5, {171*128}, v5
buffer_load_dword v162, v5, s[{SRD_WS}:{SRD_WS+3}], s29 offen
{l3}:
""")
            tile(T_ & 1, (T_+1)*1024)
        a(f"s_branch {L('mdone')}")
        a.label(L('rloop0'))
        a(f"s_mov_b32 s{sSTG}, 0")
        a.label(L('rloop'))
        tile(0, 1024); tile(1, 2048)
        a(f"""
v_add_u32 v{vAK}, 2048, v{vAK}
v_add_u32 v{vAV}, 2048, v{vAV}
s_add_u32 s{sSTG}, s{sSTG}, 1
s_cmp_lt_u32 s{sSTG}, 16
s_cbranch_scc1 {L('rloop')}
""")
        a.label(L('mdone'))
        if "noprio" not in opt: a("s_setprio 0")
        a(smf(O[1], V[1]+4, S[1]+8, vIDX))
        stamp(8)
        a(f"""
s_mul_i32 s29, s{sW}, 2560
s_add_u32 s29, s29, {EX}
s_xor_b32 s30, s{sW}, 4
s_mul_i32 s30, s30, 2560
s_add_u32 s30, s30, {EX}
v_add_u32 v5, s29, v{vL16}
v_lshlrev_b32 v6, 3, v0
v_add_u32 v6, s29, v6
v_add_u32 v165, s30, v{vL16}
v_lshlrev_b32 v166, 3, v0
v_add_u32 v166, s30, v166
s_nop 3
s_cmp_lg_u32 s{sREDO}, 0
s_cbranch_scc1 {L('nochk')}
""")
        a(f"v_mul_f32 v{T}, 0, v{O[0]}")
        for t in range(2):
            for i in range(8):
                if t == 0 and i == 0: continue
                a(f"v_fma_f32 v{T}, v{O[t]+i}, 0, v{T}")
        a(f"""
v_max_f32 v{T+1}, v{O[0]+8}, v{O[1]+8}
v_add_f32 v{T+2}, v{O[0]+8}, v{O[1]+8}
v_add_f32 v{T+1}, v{T+1}, v{T}
v_mul_f32 v{T+2}, 0, v{T+2}
v_add_f32 v{T+1}, v{T+1}, v{T+2}
v_mov_b32 v{T+3}, 0x4e800000
v_mov_b32 v167, {FLAG}
v_cmp_nle_f32 vcc, v{T+1}, v{T+3}
v_mov_b32 v{T+3}, 1
s_nop 3
s_cmp_eq_u64 vcc, 0
s_cbranch_scc1 {L('nochk')}
ds_write_b32 v167, v{T+3}
{L('nochk')}:
s_cmp_eq_u32 s{sUH}, 0
s_cbranch_scc1 {L('noswap')}
""")
        for i in range(9): a(f"v_swap_b32 v{O[0]+i}, v{O[1]+i}")
        a(f"v_swap_b32 v{C[0]}, v{C[1]}")
        a.label(L('noswap'))
        a(f"""
v_mov_b32 v{T}, v{O[1]+8}
v_mov_b32 v{T+1}, v{C[1]}
ds_write_b128 v5, {vr(O[1],4)}
ds_write_b128 v5, {vr(O[1]+4,4)} offset:1024
ds_write_b64 v6, {vr(T,2)} offset:2048
""")
        def c_part(order):
            l = a.newlabel(L("cp"))
            a(f"s_cmp_eq_u32 s{sUH}, 0\ns_cbranch_scc1 {l}")
            for g_ in self.c_pieces(order): a(g_)
            a(f"{l}:")
        c_part("hw")
        self.poll_check(7, 1)
        a(f"""
s_waitcnt lgkmcnt(0)
s_barrier
v_mov_b32 v167, {FLAG}
ds_read_b32 v167, v167
ds_read_b64 {vr(T,2)}, v166 offset:2048
ds_read_b128 {vr(O[1],4)}, v165
ds_read_b128 {vr(O[1]+4,4)}, v165 offset:1024
""")
        c_part("a")
        a(f"""
s_waitcnt lgkmcnt(3)
v_readfirstlane_b32 s29, v167
s_cmp_lg_u32 s{sREDO}, 0
s_cbranch_scc1 {L('ok')}
s_nop 2
s_cmp_eq_u32 s29, 0
s_cbranch_scc1 {L('ok')}
s_mov_b32 s{sREDO}, 1
""")
        a("s_waitcnt vmcnt(0) lgkmcnt(0)")
        a("s_barrier")
        self.kv_scalars()
        for st_ in range(4):
            a(f"s_mov_b32 m0, s{sDST}\ns_add_u32 s{sDST}, s{sDST}, 8192")
            for q in range(4):
                a(f"buffer_load_dwordx4 v{vL16}, s[{SRD_WS}:{SRD_WS+3}], s{sSRC} offen offset:{q*1024} sc1 lds")
            a(f"s_add_u32 s{sSRC}, s{sSRC}, 8192")
        self.c_setup()
        for t in range(2):
            for i in range(16): a(f"v_mov_b32 v{O[t]+i}, 0")
        for i in range(8,16): a(f"v_mov_b32 v{S[1]+i}, 0")
        a(f"""
s_waitcnt vmcnt(0)
s_barrier
s_branch {L('redo')}
{L('ok')}:
""")
        a(f"""
s_waitcnt lgkmcnt(2)
v_min_f32 v{T+2}, v{T+1}, v{C[0]}
v_sub_f32 v{T+3}, v{T+2}, v{C[0]}
v_sub_f32 v{T+4}, v{T+2}, v{T+1}
v_exp_f32 v{T+3}, v{T+3}
v_exp_f32 v{T+4}, v{T+4}
s_nop 0
v_mul_f32 v{T+5}, v{T+3}, v{O[0]+8}
v_fma_f32 v{T+5}, v{T+4}, v{T}, v{T+5}
v_rcp_f32 v{T+5}, v{T+5}
s_nop 0
v_mul_f32 v{T+3}, v{T+3}, v{T+5}
v_mul_f32 v{T+4}, v{T+4}, v{T+5}
s_waitcnt lgkmcnt(0)
""")
        for i in range(8): a(f"v_mul_f32 v{O[0]+i}, v{O[0]+i}, v{T+3}")
        for i in range(8): a(f"v_fma_f32 v{O[0]+i}, v{O[1]+i}, v{T+4}, v{O[0]+i}")
        for i in range(4): a(f"v_cvt_pk_bf16_f32 v{T+8+i}, v{O[0]+2*i}, v{O[0]+2*i+1}")
        if "olate" in opt: c_part("haw")
        a(f"""
s_add_u32 s29, s{sTB0}, s{sUH}
s_lshl_b32 s29, s29, 5
s_add_u32 s29, s29, s{sHD}
s_lshl_b32 s29, s29, 10
s_add_u32 s29, s29, {OF}
buffer_store_dwordx4 {vr(T+8,4)}, v{vL16}, s[{SRD_WS}:{SRD_WS+3}], s29 offen sc1
""")
        stamp(9)

    cSRC, cA, cW = 224, 225, 226
    SRD_C = 4
    def c_setup(self):
        a = self.a; L = self.L
        vS_ = self.cSRC; C4 = self.SRD_C
        a(f"""
v_lshrrev_b32 v165, 3, v0
v_lshrrev_b32 v166, 4, v0
v_and_b32 v166, 1, v166
v_lshlrev_b32 v166, 2, v166
v_and_b32 v167, 7, v0
v_xor_b32 v166, v166, v167
v_lshlrev_b32 v166, 4, v166
v_lshl_add_u32 v{vS_}, v165, 10, v166
s_lshl_b32 s29, s{sCB}, 7
v_add_u32 v{vS_}, s29, v{vS_}
s_mov_b32 s{SRD_WF}, s{pOUT}
s_mov_b32 s{SRD_WF+1}, s{pOUT+1}
s_mov_b32 s{SRD_WF+2}, {2048*1024}
s_mov_b32 s{C4}, s{pW2}
s_mov_b32 s{C4+1}, s{pW2+1}
s_mov_b32 s{C4+2}, {1376*1024}
s_mov_b32 s{C4+3}, 0x20000
s_lshr_b32 s29, s{sTB}, 1
s_lshl_b32 s30, s{sRB64}, 1
s_add_u32 s30, s30, s29
s_mul_i32 s31, s30, 86
s_and_b32 s32, s{sTB}, 1
s_lshl_b32 s32, s32, 2
s_add_u32 s31, s31, s32
s_lshl_b32 s31, s31, 10
s_add_u32 s{sAOFF}, s31, {HF}
s_lshl_b32 s30, s30, 5
s_add_u32 s30, s30, s32
s_lshl_b32 s30, s30, 10
s_add_u32 s{sALT}, s30, {OF}
s_lshl_b32 s29, s29, 15
s_lshl_b32 s32, s32, 10
s_add_u32 s{sLOFF}, s29, s32
s_add_u32 s{sWL}, s{sLOFF}, 65536
s_lshl_b32 s{sWOFF}, s{sTB}, 15
s_mov_b32 s{sISS}, 0
""")
    def c_pieces(self, order="haw"):
        a = self.a; L = self.L; vS_ = self.cSRC; C4 = self.SRD_C
        out = []; pre = ""
        for part in order:
            if part == "h":
                lns = a.newlabel(L('ns'))
                pre = f"""s_cmp_lg_u32 s{sISS}, 11
s_cbranch_scc1 {lns}
s_mov_b32 s{sAOFF}, s{sALT}
s_lshl_b32 s{sWOFF}, s{sTB}, 15
s_mov_b32 s{C4}, s{pWO}
s_mov_b32 s{C4+1}, s{pWO+1}
s_mov_b32 s{C4+2}, {512*1024}
{lns}:
s_cmp_eq_u32 s{sISS}, 10
s_cselect_b32 s{sA2}, s{sTB}, 0
s_and_b32 s{sA2}, s{sA2}, 1
s_lshl_b32 s{sA2}, s{sA2}, 11
s_sub_u32 s{sA2}, s{sAOFF}, s{sA2}
s_and_b32 s{sTMP}, s{sISS}, 3
s_lshl_b32 s{sTMP}, s{sTMP}, 13
s_add_u32 s{sISS}, s{sISS}, 1
"""
            elif part == "a":
                for q in range(4):
                    t = pre; pre = ""
                    if q == 0: t += f"s_add_u32 m0, s{sTMP}, s{sLOFF}\ns_nop 0\n"
                    t += f"buffer_load_dwordx4 v{vL16}, s[{SRD_WS}:{SRD_WS+3}], s{sAOFF if q < 2 else sA2} offen offset:{q*1024} sc1 lds"
                    if q == 3: t += f"\ns_add_u32 s{sAOFF}, s{sAOFF}, 8192"
                    out.append(t)
            else:
                for q in range(4):
                    t = pre; pre = ""
                    if q == 0: t += f"s_add_u32 s{sWM}, s{sTMP}, s{sWL}\n"
                    t += f"s_mov_b32 m0, s{sWM}\ns_add_u32 s{sWM}, s{sWM}, 1024\n"
                    t += f"buffer_load_dwordx4 v{vS_}, s[{C4}:{C4+3}], s{sWOFF} offen lds\n"
                    t += f"s_add_u32 s{sWOFF}, s{sWOFF}, {8192 if q < 3 else 8192 + 96*1024}"
                    out.append(t)
        return out

    def pst(self):
        if "pst" in self.opt:
            a = self.a
            for slot, stg in enumerate(((0,11) if "pst2" in self.opt else (0,2,4,7,8,10,13)), 1):
                l = a.newlabel(self.L("ps"))
                a(f"s_cmp_lg_u32 s{sCST}, {stg}\ns_cbranch_scc1 {l}")
                a(f"s_memtime s[{70+2*slot}:{71+2*slot}]")
                a(f"{l}:")
    def phaseC(self):
        a = self.a; L = self.L; stamp = self.stamp
        vA, vW = self.cA, self.cW
        vA0, vW0, vAn, vWn = 227, 228, 229, 230
        ACCc = 16; AF = [32+4*i for i in range(8)]; WFr = [64+4*i for i in range(8)]; T = 96
        NST = 15
        a(f"s_cmp_eq_u32 s{sUH}, 0")
        a(f"s_cbranch_scc0 {L('cprod')}")
        a(f"""
s_lshr_b32 s29, s{sW}, 1
s_lshl_b32 s30, s{sRB64}, 1
s_add_u32 s30, s30, s29
s_lshl_b32 s30, s30, 15
s_and_b32 s31, s{sW}, 1
s_lshl_b32 s31, s31, 6
s_lshl_b32 s32, s{sCB}, 7
s_add_u32 s30, s30, s31
s_add_u32 s34, s30, s32
v_and_b32 v8, 31, v0
v_lshlrev_b32 v8, 10, v8
v_lshrrev_b32 v6, 5, v0
v_lshl_add_u32 v8, v6, 4, v8
buffer_load_dwordx4 v[{T}:{T+3}], v8, s[{SRD_X}:{SRD_X+3}], s34 offen
buffer_load_dwordx4 v[{T+4}:{T+7}], v8, s[{SRD_X}:{SRD_X+3}], s34 offen offset:32
s_lshl_b32 s29, s29, 15
v_add_u32 v{vA0}, s29, v{vL16}
v_lshrrev_b32 v5, 5, v0
v_lshlrev_b32 v5, 2, v5
v_bfe_u32 v6, v0, 2, 2
v_add_u32 v5, v5, v6
v_lshlrev_b32 v5, 7, v5
v_lshrrev_b32 v6, 1, v6
s_and_b32 s30, s{sW}, 1
v_xor_b32 v6, s30, v6
v_lshl_add_u32 v5, v6, 6, v5
v_bfe_u32 v6, v0, 4, 1
v_lshl_add_u32 v5, v6, 5, v5
v_and_b32 v6, 3, v0
v_lshl_add_u32 v5, v6, 3, v5
v_add_u32 v{vW0}, 65536, v5
v_mov_b32 v{vA}, v{vA0}
v_mov_b32 v{vW}, v{vW0}
s_lshr_b32 s29, s{sRB64}, 2
s_lshl_b32 s29, s29, 7
s_add_u32 s29, s29, {F3}
v_and_b32 v7, 31, v0
v_lshl_add_u32 v7, v7, 2, s29
""")
        for i in range(16): a(f"v_mov_b32 v{ACCc+i}, 0")
        def rd(j, ra, rw):
            a(f"ds_read_b128 {vr(AF[j],4)}, v{ra} offset:{j*1024}")
            a(f"ds_read_b64_tr_b16 {vr(WFr[j],2)}, v{rw} offset:{(j>>2)*32768+(j&3)*2048}")
            a(f"ds_read_b64_tr_b16 {vr(WFr[j]+2,2)}, v{rw} offset:{(j>>2)*32768+(j&3)*2048+1024}")
        a(f"s_mov_b32 s{sVER}, 0")
        a(f"s_mov_b32 s{sCST}, 0")
        if "pc0" in self.opt: a("s_setprio 1")
        a("s_barrier")
        for j in range(3): rd(j, vA, vW)
        a.label(L('cloop'))
        n1, n2, n3, n4 = L('c_n1'), L('c_n2'), L('c_n3'), L('c_n4')
        npoll, nchk = L('c_np'), L('c_nc')
        a(f"""
s_cmp_lg_u32 s{sCST}, {1 if "olate" in self.opt else 0}
s_cbranch_scc1 {n4}
s_waitcnt vmcnt(2)
{n4}:
s_add_u32 s29, s{sCST}, 1
s_and_b32 s29, s29, 3
s_lshl_b32 s29, s29, 13
v_add_u32 v{vAn}, s29, v{vA0}
v_add_u32 v{vWn}, s29, v{vW0}
s_cmp_lg_u32 s{sW}, 0
s_cbranch_scc1 {n2}
s_cmp_eq_u32 s{sVER}, 1
s_cbranch_scc1 {n2}
s_cmp_lt_u32 s{sCST}, 3
s_cbranch_scc1 {n2}
s_cmp_eq_u32 s{sCST}, 3
s_cbranch_scc1 {npoll}
s_waitcnt vmcnt(0)
v_cmp_ne_u32 vcc, s{sTAG}, v{vPOLL}
s_nop 4
s_cmp_eq_u64 vcc, 0
s_cbranch_scc0 {nchk}
s_mov_b32 s{sVER}, 1
""")
        if self.stamps:
            self.stamp(12); a(f"s_mov_b32 s69, s{sCST}")
        a(f"""
s_branch {n2}
{nchk}:
s_cmp_lt_u32 s{sCST}, 8
s_cbranch_scc1 {npoll}
""")
        self.poll_check(7, 2)
        if self.stamps: a(f"s_add_u32 s69, s{sSPIN}, 100")
        a(f"""
s_mov_b32 s{sVER}, 1
s_branch {n2}
{npoll}:
global_load_dword v{vPOLL}, v7, s[{SRD_WS}:{SRD_WS+1}] sc1
{n2}:
s_barrier
s_cmp_lg_u32 s{sCST}, {1 if "olate" in self.opt else 0}
s_cbranch_scc1 {n1}
s_lshl_b32 s29, s{sQB}, 7
s_lshl_b32 s30, s{sHD}, 2
s_add_u32 s29, s29, s30
s_add_u32 s29, s29, {F3}
""")
        self.signal(29)
        a(f"{n1}:")
        self.pst()
        if "cnocomp" not in self.opt:
            for j in range(8):
                a("s_waitcnt lgkmcnt(6)")
                a(mfma(ACCc, WFr[j], AF[j], ACCc))
                if j + 3 < 8: rd(j+3, vA, vW)
                else: rd(j-5, vAn, vWn)
        a(f"""
v_mov_b32 v{vA}, v{vAn}
v_mov_b32 v{vW}, v{vWn}
s_add_u32 s{sCST}, s{sCST}, 1
s_cmp_lt_u32 s{sCST}, {NST}
s_cbranch_scc1 {L('cloop')}
s_waitcnt lgkmcnt(0)
""")
        stamp(10)
        a("s_waitcnt vmcnt(0)")
        a.nop(9)
        for h_ in range(2):
            A_ = ACCc + 8*h_; Xr = T + 4*h_; U = T + 8
            for i in range(4): a(f"v_permlane32_swap_b32 v{A_+i}, v{A_+4+i}")
            for i in range(4):
                a(f"v_lshlrev_b32 v{U+2*i}, 16, v{Xr+i}")
                a(f"v_and_b32 v{U+2*i+1}, 0xffff0000, v{Xr+i}")
            for i in range(8): a(f"v_add_f32 v{A_+i}, v{A_+i}, v{U+i}")
            for i in range(4): a(f"v_cvt_pk_bf16_f32 v{Xr+i}, v{A_+2*i}, v{A_+2*i+1}")
            fl_ = "sc1" if "outsc1" in self.opt else ("nt" if "outnt" in self.opt else ("sc0 sc1" if "outsys" in self.opt else ""))
            a(f"buffer_store_dwordx4 v[{Xr}:{Xr+3}], v8, s[{SRD_WF}:{SRD_WF+3}], s34 offen offset:{32*h_} {fl_}")
        a(f"s_cmp_lg_u32 s2, 0")
        a(f"s_cbranch_scc1 {L('cdone')}")
        a(f"s_mov_b32 s29, {FW0}")
        self.signal(29)
        a(f"s_branch {L('cdone')}")
        a.label(L('cprod'))
        if "pc1" in self.opt: a("s_setprio 1")
        olate = "olate" in self.opt
        if not olate:
            for g_ in self.c_pieces(): a(g_)
        a(f"s_mov_b32 s{sCST}, 0")
        a("s_waitcnt vmcnt(9)")
        a("s_barrier")
        for g_ in self.c_pieces(): a(g_)
        if olate:
            a("s_waitcnt vmcnt(9)")
            a(f"s_branch {L('pbar')}")
        a.label(L('ploop'))
        a("s_waitcnt vmcnt(8)")
        a.label(L('pbar'))
        a("s_barrier")
        self.pst()
        lskip = L('pskip')
        a(f"s_cmp_ge_u32 s{sISS}, {NST}\ns_cbranch_scc1 {lskip}")
        if "cnodma" in self.opt: a(f"s_add_u32 s{sISS}, s{sISS}, 1")
        else:
            for g_ in self.c_pieces(): a(g_)
        a(f"""
s_branch {L('pnext')}
{lskip}:
s_waitcnt vmcnt(0)
{L('pnext')}:
s_add_u32 s{sCST}, s{sCST}, 1
s_cmp_lt_u32 s{sCST}, {NST}
s_cbranch_scc1 {L('ploop')}
""")
        stamp(10)
        a.label(L('cdone'))

    def build(self):
        a = self.a; L = self.L
        self.prologue()
        a(f"s_cmp_eq_u32 s{sUH}, 0")
        a(f"s_cbranch_scc0 {L('uh1')}")
        self.phaseA(0)
        a(f"s_branch {L('join')}")
        a.label(L('uh1'))
        self.phaseA(1)
        a.label(L('join'))
        self.phaseB()
        self.phaseC()
        if self.stamps:
            a("s_waitcnt vmcnt(0)")
            self.stamp(11)
            a("s_memrealtime s[98:99]")
            a("s_waitcnt lgkmcnt(0)")
            for i in range(1,12): a(f"s_sub_u32 s{70+2*i}, s{70+2*i}, s70")
            a("s_sub_u32 s98, s98, s96")
            a("s_sub_u32 s94, s94, s70")
            a("s_mov_b32 s29, s96")
            a("s_mov_b32 s96, s94")
            a("s_mov_b32 s94, s29")
            a(f"""
s_lshl_b32 s29, s2, 3
s_add_u32 s29, s29, s{sW}
s_lshl_b32 s29, s29, 6
s_add_u32 s29, s29, 0xE00000
""")
            for i in range(1,12): a(f"v_mov_b32 v{7+i}, s{70+2*i}")
            a(f"""
v_mov_b32 v19, s98
v_mov_b32 v20, s96
v_mov_b32 v21, s94
v_mov_b32 v22, s69
v_mov_b32 v23, s101
v_mov_b32 v24, s29
s_mov_b64 exec, 1
global_store_dwordx4 v24, v[8:11], s[20:21]
global_store_dwordx4 v24, v[12:15], s[20:21] offset:16
global_store_dwordx4 v24, v[16:19], s[20:21] offset:32
global_store_dwordx4 v24, v[20:23], s[20:21] offset:48
""")
        a.label(L('bail'))
        a.label(L('end'))
        a("s_endpgm")
        return kernel_text(self.name, a.text(), vgpr=256, sgpr=(102 if self.stamps else 100))

HDR = open("parallel_sum__mha_block__glu_gated_swiglu__prompt.s.ref").read().split("; Override launch geometry")[0]
def make(stamps=False, opt=(), name=KNAME):
    s = HDR + f"; @launch grid=(256,1,1) block=(512,1,1) lds={LDS_TOTAL}\n"
    s += '.amdgcn_target "amdgcn-amd-amdhsa--gfx950"\n'
    s += Gen(name, stamps, opt).build()
    return s
if __name__ == "__main__":
    open("pk.s","w").write(make())
```

```python
import sys
from mk import build
import pk
def t(name, **kw): return pk.Gen(name, prefix="L"+name, **kw).build()
V = {"pk_kernel":dict(), "pks_kernel":dict(stamps=True)}
for o in eval(sys.argv[1]) if len(sys.argv)>1 else ():
    V["e_"+"_".join(o)+"_kernel"]=dict(stamps=True,opt=o)
build("tp",[t(n,**kw) for n,kw in V.items()], list(V))
open("tp_names.txt","w").write("\n".join(V))
```

```python
from asmlib import *
import struct
QF, KF, VF, HF, OF, WSEND = 0, 0x200000, 0x400000, 0x600000, 0xB60000, 0xD60000
SLOT = 28672
MISC = 131072
STAT = MISC
CSP  = MISC + 1024
VSCR = MISC + 4096
EX   = MISC
FLAG = MISC + 20480
LDS_TOTAL = MISC + 4096 + 4*6144
FL = 0xD60000
F1, F2, F3, FW0 = FL, FL + 4096, FL + 8192, FL + 12288
CQ_BITS = 0x3EB8AA3B
KNAME = "parallel_sum__mha_block__glu_gated_swiglu__prompt_kernel"

def mfma(d, a, b, c):
    cc = vr(c, 16) if c is not None else "0"
    return f"v_mfma_f32_32x32x16_bf16 {vr(d,16)}, {vr(a,4)}, {vr(b,4)}, {cc}"
def smf(d, a, b, idx):
    return f"v_smfmac_f32_32x32x32_bf16 {vr(d,16)}, {vr(a,4)}, {vr(b,8)}, v{idx}"
def mf4(d, a, b):
    return f"v_mfma_f32_4x4x4_16b_bf16 {vr(d,4)}, {vr(a,2)}, {vr(b,2)}, {vr(d,4)}"

SRD_X, SRD_WQ, SRD_WF, SRD_WS = 8, 12, 16, 20
SRD_W3 = 4
sW, sTB, sUH, sCS, sRB = 24, 25, 26, 27, 28
pOUT, pW2, pWO, pDBG = 36, 38, 40, 42
sXD, sWD, sFD, sFB, sTBG = 44, 45, 46, 47, 48
sHD, sQB, sSRC, sDST, sSTG, sREDO, sTB0 = 49, 50, 51, 52, 53, 54, 55
sMASK = 56
sRB64, sCB, sAOFF, sALT, sLOFF, sISS, sTMP, sCST = 58, 59, 60, 61, 62, 63, 64, 65
sSPIN = 66
sWOFF, sWL = 67, 68
sK0D, sK0S = 67, 68
sTAG = 3
sWB = 35
sVER = 42
sWM = 33
sA2 = 43
X = 8; ACC = 136; WF = 200; CSA = 216; SEL = 232
AW = 236; AX = 240; VX = 244; VW = 246; VFo = 232
vNM, vS, vR = 251, 252, 253
vPOLL = 254
vL16 = 255

class Gen:
    def __init__(self, name=KNAME, stamps=False, opt=(), prefix="L"):
        self.a = Asm(); self.name = name; self.stamps = stamps; self.opt = set(opt); self.prefix = prefix
    def L(self, s): return f"{self.prefix}_{s}"
    def stamp(self, i, c=False):
        if ("cst2" in self.opt or "cst3" in self.opt or "pst" in self.opt) and 1 <= i <= 7: return
        if "cstamps" in self.opt and (1 <= i <= 7) != c:
            if not (i == 0 or i >= 8): return
            if c: return
        if self.stamps: self.a(f"{'s_memrealtime' if 'rt' in self.opt else 's_memtime'} s[{70+2*i}:{71+2*i}]")

    def signal(self, off_sgpr):
        a = self.a; l = a.newlabel(self.L("sig"))
        a(f"""
s_cmp_lg_u32 s{sW}, 0
s_cbranch_scc1 {l}
v_mov_b32 v5, s{off_sgpr}
v_mov_b32 v6, s{sTAG}
s_mov_b64 exec, 1
global_store_dword v5, v6, s[{SRD_WS}:{SRD_WS+1}] sc1
s_mov_b64 exec, -1
{l}:
""")
    def poll_issue(self, vaddr):
        a = self.a; l = a.newlabel(self.L("pi"))
        a(f"""
s_cmp_lg_u32 s{sW}, 0
s_cbranch_scc1 {l}
global_load_dword v{vPOLL}, v{vaddr}, s[{SRD_WS}:{SRD_WS+1}] sc1
{l}:
""")
    def poll_check(self, vaddr, site=0, wait=True):
        a = self.a; ok = a.newlabel(self.L("pok")); sp = a.newlabel(self.L("psp")); bail = self.L("bail")
        a(f"""
s_cmp_lg_u32 s{sW}, 0
s_cbranch_scc1 {ok}
s_mov_b32 s{sSPIN}, 0
""")
        if wait is True: a("s_waitcnt vmcnt(0)")
        elif wait: a(f"s_waitcnt vmcnt({wait})")
        a(f"""
{sp}:
v_cmp_ne_u32 vcc, s{sTAG}, v{vPOLL}
s_nop 4
s_cmp_eq_u64 vcc, 0
s_cbranch_scc1 {ok}
s_add_u32 s{sSPIN}, s{sSPIN}, 1
s_cmp_gt_u32 s{sSPIN}, 0x8000
s_cbranch_scc1 {bail}
s_sleep 1
global_load_dword v{vPOLL}, v{vaddr}, s[{SRD_WS}:{SRD_WS+1}] sc1
s_waitcnt vmcnt(0)
s_branch {sp}
{ok}:
""")
        if self.stamps:
            if site == 2: self.stamp(12)

    def prologue(self):
        a = self.a; L = self.L
        a(f"""
s_cmp_ge_u32 s2, 256
s_cbranch_scc1 {L('end')}
s_load_dwordx4 s[4:7], s[0:1], 0
s_load_dwordx4 s[60:63], s[0:1], 32
s_load_dwordx2 s[{pW2}:{pW2+1}], s[0:1], 48
s_load_dwordx2 s[{pWO}:{pWO+1}], s[0:1], 16
s_load_dwordx4 s[64:67], s[0:1], 56
s_load_dwordx2 s[68:69], s[0:1], 72
""")
        if self.stamps:
            a(f"{'s_memrealtime' if 'rt' in self.opt else 's_memtime'} s[70:71]")
            a("s_memrealtime s[96:97]")
        a(f"""
v_lshrrev_b32 v1, 6, v0
v_and_b32 v0, 63, v0
s_and_b32 s29, s2, 7
v_readfirstlane_b32 s{sW}, v1
s_lshr_b32 s30, s2, 3
s_and_b32 s31, s29, 1
s_lshl_b32 s31, s31, 3
s_and_b32 s32, s30, 7
s_add_u32 s{sRB}, s31, s32
s_lshr_b32 s31, s29, 1
s_lshl_b32 s31, s31, 2
s_lshr_b32 s33, s30, 3
s_add_u32 s{sCS}, s31, s33
s_lshl_b32 s31, s29, 2
s_add_u32 s{sHD}, s31, s33
s_mov_b32 s{sQB}, s32
s_mov_b32 s{sRB64}, s{sHD}
s_mov_b32 s{sCB}, s32
v_lshlrev_b32 v{vL16}, 4, v0
v_mov_b32 v7, 0
s_and_b32 s{sTB}, s{sW}, 3
s_lshr_b32 s{sUH}, s{sW}, 2
s_lshl_b32 s{sTBG}, s{sRB}, 2
s_add_u32 s{sTBG}, s{sTBG}, s{sTB}
""")
        a(f"""
v_lshrrev_b32 v1, 3, v0
s_lshl_b32 s29, s{sRB}, 7
s_lshl_b32 s30, s{sTB}, 5
s_add_u32 s29, s29, s30
v_add_u32 v1, s29, v1
v_lshlrev_b32 v1, 10, v1
v_lshrrev_b32 v2, 4, v0
v_and_b32 v3, 7, v0
v_xor_b32 v4, v2, v3
v_lshl_add_u32 v{VX}, v4, 4, v1
v_xor_b32 v4, 4, v4
v_lshl_add_u32 v{VX+1}, v4, 4, v1
v_add_u32 v{VX+1}, 8192, v{VX+1}
s_mul_i32 s31, s{sCS}, 192
s_mul_i32 s29, s{sTB}, {16*3072}
s_add_u32 s{sWB}, s29, s31
s_mov_b32 s32, 43691
s_movk_i32 s33, 3072
""")
        for q in range(3):
            a(f"""
v_add_u32 v1, {64*q}, v0
v_mul_u32_u24 v2, s32, v1
v_lshrrev_b32 v2, 19, v2
v_mul_u32_u24 v3, 12, v2
v_sub_u32 v3, v1, v3
v_mul_u32_u24 v2, s33, v2
v_lshl_add_u32 v{VW+q}, v3, 4, v2
""")
        a(f"""
s_mul_i32 s30, s{sTB}, 3072
s_add_u32 s{sWD}, s30, 16384
s_lshl_b32 s{sXD}, s{sTB}, 12
s_waitcnt lgkmcnt(0)
s_mov_b32 s{SRD_X}, s4
s_mov_b32 s{SRD_X+1}, s5
s_mov_b32 s{SRD_X+2}, {2048*1024}
s_mov_b32 s{SRD_X+3}, 0x20000
s_mov_b32 s{SRD_WQ}, s6
s_mov_b32 s{SRD_WQ+1}, s7
s_mov_b32 s{SRD_WQ+2}, {512*3072}
s_mov_b32 s{SRD_WQ+3}, 0x20000
s_mov_b32 s{sVER}, 0
""")

    def prologue2(self):
        a = self.a
        a(f"""
s_mov_b32 s{SRD_WF}, s60
s_mov_b32 s{SRD_WF+1}, s61
s_mov_b32 s{SRD_WF+2}, {512*2752}
s_mov_b32 s{SRD_WF+3}, 0x20000
s_mov_b32 s{SRD_WS}, s68
s_mov_b32 s{SRD_WS+1}, s69
s_mov_b32 s{SRD_WS+2}, {WSEND}
s_mov_b32 s{SRD_WS+3}, 0x20000
s_mov_b32 s{pOUT}, s64
s_mov_b32 s{pOUT+1}, s65
s_mov_b32 s{sVER}, 0
s_add_u32 s30, s68, {FW0}
s_addc_u32 s31, s69, 0
s_load_dword s{sTAG}, s[30:31], 0
s_mov_b32 s{SRD_W3}, s62
s_mov_b32 s{SRD_W3+1}, s63
s_mov_b32 s{SRD_W3+2}, {512*2752}
s_mov_b32 s{SRD_W3+3}, 0x20000
""")
        a(f"s_movk_i32 s33, 2752")
        a(f"s_mov_b32 s32, 43691")
        for q in range(3):
            a(f"""
v_add_u32 v1, {64*q}, v0
v_mul_u32_u24 v2, s32, v1
v_lshrrev_b32 v2, 19, v2
v_mul_u32_u24 v3, 12, v2
v_sub_u32 v3, v1, v3
""")
            if "f16" in self.opt or "f16all" in self.opt:
                a("v_bfe_u32 v4, v2, 3, 1\nv_lshlrev_b32 v4, 1, v4")
                if "f16all" not in self.opt:
                    a("v_cmp_gt_u32 vcc, 8, v3\ns_nop 1\nv_cndmask_b32 v4, 0, v4, vcc")
                a("v_xor_b32 v4, v4, v3")
            else: a("v_mov_b32 v4, v3")
            a(f"""
v_mul_u32_u24 v2, s33, v2
v_lshl_add_u32 v{VFo+q}, v4, 4, v2
""")
            if "nozero" not in self.opt:
                a(f"""
v_lshrrev_b32 v3, 2, v3
s_mul_i32 s29, s{sCS}, 3
v_add_u32 v3, s29, v3
v_cmp_lt_u32 vcc, 42, v3
v_mov_b32 v2, 0x7ff00000
s_nop 0
v_cndmask_b32 v{VFo+q}, v{VFo+q}, v2, vcc
""")
        a(f"""
s_mul_i32 s31, s{sCS}, 192
s_mul_i32 s{sFD}, s{sTB}, 3072
s_mul_i32 s29, s{sTB}, {16*2752}
s_add_u32 s{sFB}, s29, s31
v_and_b32 v1, 31, v0
v_lshrrev_b32 v2, 5, v0
s_lshl_b32 s29, s{sTB}, 5
v_add_u32 v3, s29, v1
v_lshlrev_b32 v3, 7, v3
v_lshlrev_b32 v4, 2, v2
v_or_b32 v4, s{sTB}, v4
v_bfe_u32 v5, v1, 1, 3
v_xor_b32 v4, v4, v5
v_lshl_add_u32 v{AX}, v4, 4, v3
v_xor_b32 v{AX+1}, 16, v{AX}
v_xor_b32 v{AX+2}, 32, v{AX}
v_xor_b32 v{AX+3}, 48, v{AX}
v_lshlrev_b32 v3, 5, v2
v_bfe_u32 v4, v0, 2, 2
v_add_u32 v3, v3, v4
v_mul_u32_u24 v3, 0xc0, v3
v_bfe_u32 v4, v0, 4, 1
v_lshl_add_u32 v3, v4, 5, v3
v_and_b32 v4, 3, v0
v_lshl_add_u32 v3, v4, 3, v3
""")
        for j in range(4):
            a(f"s_xor_b32 s29, s{sTB}, {j}")
            a(f"s_mul_i32 s29, s29, 1536")
            a(f"v_add_u32 v{AW+j}, s29, v3")

    def mall_prefetch(self, which):
        a = self.a; L = self.L
        def one(tb, srd, n, glob=False):
            l = a.newlabel(L("mpf"))
            t = f"s_cmp_lg_u32 s{sTB}, {tb}\ns_cbranch_scc1 {l}\n"
            t += f"s_mul_i32 s29, s2, {n}\nv_add_u32 v1, s29, v0\nv_lshlrev_b32 v1, 7, v1\n"
            if n < 64: t += f"s_mov_b32 s30, {hex((1 << min(n,32)) - 1)}\ns_mov_b32 s31, {hex((1 << max(n-32,0)) - 1)}\ns_mov_b64 exec, s[30:31]\n"
            if glob: t += f"global_load_dword v250, v1, s[{srd}:{srd+1}]\n"
            else: t += f"buffer_load_dword v250, v1, s[{srd}:{srd+3}], 0 offen {'nt' if 'pnt' in self.opt else ''}\n"
            t += f"s_mov_b64 exec, -1\n{l}:"
            a(t)
        if "x" in which: one(0, SRD_X, 64); one(1, SRD_WQ, 48)
        if "f" in which: one(2, SRD_WF, 43); one(3, SRD_W3, 43)

    def code_prefetch(self):
        a = self.a; L = self.L
        l, here = a.newlabel(L("cpf")), a.newlabel(L("here"))
        a(f"""
s_cmp_lg_u32 s{sTB}, 2
s_cbranch_scc1 {l}
s_getpc_b64 s[30:31]
{here}:
s_sub_u32 s30, s30, {here}-{self.name}
s_subb_u32 s31, s31, 0
s_lshr_b32 s29, s2, 3
s_mul_i32 s29, s29, 10
v_add_u32 v1, s29, v0
v_min_u32 v1, ({L('end')}-{self.name})/128, v1
v_lshlrev_b32 v1, 7, v1
s_mov_b64 exec, 0x3ff
global_load_dword v250, v1, s[30:31]
s_mov_b64 exec, -1
{l}:
""")

    def l2_pf_qkv(self):
        a = self.a; D = 250
        l3, ld = a.newlabel(self.L("pf3")), a.newlabel(self.L("pfd"))
        a(f"""
s_cmp_eq_u32 s{sTB}, 3
s_cbranch_scc1 {l3}
s_and_b32 s29, s{sCS}, 3
s_lshl_b32 s29, s29, 5
s_lshl_b32 s30, s{sRB}, 7
s_add_u32 s29, s29, s30
v_and_b32 v1, 31, v0
v_add_u32 v1, s29, v1
v_lshlrev_b32 v1, 10, v1
v_lshrrev_b32 v2, 5, v0
s_lshl_b32 s30, s{sTB}, 1
s_add_u32 s30, s30, 3
v_add_u32 v2, s30, v2
v_min_u32 v2, 7, v2
v_lshl_add_u32 v1, v2, 7, v1
buffer_load_dword v{D}, v1, s[{SRD_X}:{SRD_X+3}], 0 offen
s_branch {ld}
{l3}:
s_and_b32 s29, s{sRB}, 7
s_mul_i32 s29, s29, 40
s_add_u32 s29, s29, 192
v_lshrrev_b32 v1, 1, v0
v_add_u32 v1, s29, v1
s_movk_i32 s30, 3072
v_mul_lo_u32 v1, s30, v1
v_and_b32 v2, 1, v0
v_lshl_add_u32 v1, v2, 7, v1
s_mul_i32 s30, s{sCS}, 192
buffer_load_dword v{D}, v1, s[{SRD_WQ}:{SRD_WQ+3}], s30 offen
v_add_u32 v1, {32*3072}, v1
s_mov_b32 exec_hi, 0
s_mov_b32 exec_lo, 0xffff
buffer_load_dword v{D}, v1, s[{SRD_WQ}:{SRD_WQ+3}], s30 offen
s_mov_b64 exec, -1
{ld}:
""")
    def l2_pf_ffn(self):
        a = self.a; D = 250
        a(f"""
s_and_b32 s29, s{sRB}, 7
s_lshl_b32 s29, s29, 6
s_lshl_b32 s30, s{sTB}, 4
s_add_u32 s29, s29, s30
v_bfe_u32 v1, v0, 1, 4
v_add_u32 v1, s29, v1
s_movk_i32 s30, 2752
v_mul_lo_u32 v1, s30, v1
v_and_b32 v2, 1, v0
v_lshl_add_u32 v1, v2, 7, v1
s_mul_i32 s30, s{sCS}, 192
s_mov_b32 exec_hi, 0
buffer_load_dword v{D}, v1, s[{SRD_WF}:{SRD_WF+3}], s30 offen
buffer_load_dword v{D}, v1, s[{SRD_W3}:{SRD_W3+3}], s30 offen
s_mov_b64 exec, -1
""")

    def phaseA(self, uh):
        a = self.a; L = self.L; opt = self.opt; stamp = self.stamp
        lg, vm = a.lg, a.vm
        lg.reset(); vm.reset()
        P = f"u{uh}"
        CS = CSA
        CT = CSA + 8
        def dma_pieces(gs):
            if gs > 15 or ("nodma" in opt and gs >= 3): return []
            sb = (gs % 4) * SLOT
            out = []
            def piece(m0base, m0off, static_soff, sreg_base, vreg, srd):
                def f():
                    a(f"s_add_u32 m0, s{m0base}, {m0off}")
                    if sreg_base is None: a(f"s_mov_b32 s29, {static_soff}")
                    else: a(f"s_add_u32 s29, s{sreg_base}, {static_soff}")
                    a(f"buffer_load_dwordx4 v{vreg}, s[{srd}:{srd+3}], s29 offen {'nt ' if ('ant' in opt or ('antq' in opt and gs < 8) or ('antf' in opt and gs >= 8)) else ''}lds"); vm.issue(f"d{gs}")
                return f
            if uh == 0: return []
            if gs < 8:
                c = gs
                xs = [piece(sXD, sb+q2*2048+p*1024, c*128+q2*16384, None, VX+p, SRD_X) for q2 in range(2) for p in range(2)]
                ws = [piece(sWD, sb+q*1024, c*64*3072, sWB, VW+q, SRD_WQ) for q in range(3)]
                out = [xs[0], ws[0], xs[1], ws[1], xs[2], ws[2], xs[3]]
            else:
                f_ = gs - 8
                for q in range(3):
                    out.append(piece(sFD, sb+q*1024, f_*64*2752, sFB, VFo+q, SRD_WF))
                    out.append(piece(sFD, sb+12288+q*1024, f_*64*2752, sFB, VFo+q, SRD_W3))
            return out
        pending = []
        def dma(gs):
            for p in dma_pieces(gs): p()
        def dma_one():
            if pending: pending.pop(0)()
        def xreg(ks): return X + 4*ks
        f16 = ("f16" in opt and uh == 0) or "f16all" in opt
        def xconv(u, part=None):
            r0 = xreg(2*u)
            for i in (range(4) if part is None else part): a(f"v_permlane16_swap_b32 v{r0+i}, v{r0+4+i}")
        def bump(reg, gs):
            if gs % 4 == 1: a(f"v_add_u32 v{reg}, {2*SLOT}, v{reg}")
            if gs % 4 == 3: a(f"v_subrev_u32 v{reg}, {2*SLOT}, v{reg}")
        def wread(dst, gs, j, off, tag):
            imm = (gs & 1)*SLOT + off
            a(f"ds_read_b64_tr_b16 {vr(dst,2)}, v{AW+j} offset:{imm}"); lg.issue(tag)
            a(f"ds_read_b64_tr_b16 {vr(dst+2,2)}, v{AW+j} offset:{imm+768}"); lg.issue(tag)
        SELR = CSA + 12 if uh == 0 else ACC + 48
        def sel_init(r):
            a(f"""
v_and_b32 v1, 15, v0
v_bfe_u32 v2, v0, 4, 1
v_cmp_eq_u32 vcc, v1, v2
v_mov_b32 v3, 0x3f803f80
s_nop 0
v_cndmask_b32 v{r}, 0, v3, vcc
v_mov_b32 v{r+1}, v{r}
v_mov_b32 v{r+2}, v{r}
v_mov_b32 v{r+3}, v{r}
""")
        def sel(t, frag, selr):
            if "nocs" in opt: return
            a(f"v_mfma_f32_16x16x32_bf16 {vr(CS+4*t,4)}, {vr(selr,4)}, {vr(frag,4)}, {vr(CS+4*t,4)}")
        def midbar(gs):
            vm.wait(f"d{gs+1}")
            if gs == 10: vm.wait("st")
            if "nobar" not in opt: a("s_barrier")
            if gs == 10:
                a(f"s_lshl_b32 s29, s{sCS}, 7")
                a(f"s_lshl_b32 s30, s{sRB}, 2")
                a(f"s_add_u32 s29, s29, s30")
                a(f"s_add_u32 s29, s29, {F1}")
                self.signal(29)
            assert not pending
            pending.extend(dma_pieces(gs+3))
            if gs == 14 and uh == 0 and "nokvpf" not in opt:
                l = a.newlabel(L("kvpf"))
                a(f"""
s_cmp_lg_u32 s{sW}, 0
s_cbranch_scc1 {l}
s_waitcnt vmcnt(0)
v_cmp_ne_u32 vcc, s{sTAG}, v{vPOLL}
s_nop 4
s_cmp_eq_u64 vcc, 0
s_cbranch_scc0 {l}
s_lshl_b32 s29, s{sHD}, 16
s_lshl_b32 s30, s{sQB}, 13
s_add_u32 s29, s29, s30
v_lshlrev_b32 v1, 7, v0
buffer_load_dword v244, v1, s[{SRD_WS}:{SRD_WS+3}], s29 offen
s_add_u32 s29, s29, {KF}
buffer_load_dword v245, v1, s[{SRD_WS}:{SRD_WS+3}], s29 offen
s_add_u32 s29, s29, {VF-KF}
buffer_load_dword v246, v1, s[{SRD_WS}:{SRD_WS+3}], s29 offen
s_mov_b32 s{sVER}, 1
{l}:
""")
            if gs == 12 and uh == 0:
                a(f"""
s_lshr_b32 s29, s{sHD}, 1
v_and_b32 v1, 48, v0
v_min_u32 v1, 32, v1
v_add_u32 v1, s29, v1
v_mul_u32_u24 v1, 0x5556, v1
v_lshrrev_b32 v1, 16, v1
v_lshlrev_b32 v1, 7, v1
v_and_b32 v7, 15, v0
v_lshl_add_u32 v7, v7, 2, v1
v_add_u32 v7, {F1}, v7
""")
                self.poll_issue(7)
        def csp_write(tiles, t0):
            a(f"v_lshlrev_b32 v1, 4, v0")
            a(f"s_lshl_b32 s29, s{sTB}, 2")
            a(f"s_add_u32 s29, s29, {CSP + t0*512}")
            a(f"v_add_u32 v1, s29, v1")
            a("s_mov_b64 exec, 0xffff")
            for t in range(tiles):
                a(f"ds_write_b32 v1, v{CS+4*t} offset:{t*512}"); lg.issue("csp")
                a(f"ds_write_b32 v1, v{CS+4*t+1} offset:{t*512+256}"); lg.issue("csp")
            a("s_mov_b64 exec, -1")

        S2, S2b, S1, S1b, ONES = ACC+48, ACC+52, ACC+56, ACC+60, 248
        sHI = 34
        for gs in range(3): dma(gs)
        if uh == 0 and "tlb" in opt:
            a(f"""
v_and_b32 v1, 1, v0
v_lshlrev_b32 v1, 20, v1
s_mov_b64 exec, 3
buffer_load_dword v250, v1, s[{SRD_WF}:{SRD_WF+3}], 0 offen
buffer_load_dword v250, v1, s[{SRD_W3}:{SRD_W3+3}], 0 offen
global_load_dword v250, v1, s[{pW2}:{pW2+1}]
s_mov_b64 exec, 1
global_load_dword v250, v1, s[{pWO}:{pWO+1}]
global_load_dword v250, v1, s[{pOUT}:{pOUT+1}]
s_mov_b64 exec, -1
""")
        if uh == 0 and "nompx" not in opt and "mpx1" not in opt: self.mall_prefetch("x")
        if uh == 0 and "nocode" not in opt: self.code_prefetch()
        self.prologue2()
        a(f"s_mov_b32 s{sHI}, 0xffff0000")
        if uh == 0:
            for i in range(64): a(f"v_mov_b32 v{ACC+i}, 0")
            for i in range(12): a(f"v_mov_b32 v{CS+i}, 0")
            for i in range(2): a(f"v_mov_b32 v{ONES+i}, 0x3f803f80")
            sel_init(SELR)
        a(f"""
s_waitcnt lgkmcnt(0)
s_mul_i32 s{sTAG}, s{sTAG}, 0x9E3779B1
s_add_u32 s{sTAG}, s{sTAG}, 0x7F4A7C15
""")
        vm.wait("d0")
        a("s_barrier")
        stamp(1)
        if "a4" in opt: a("s_nop 0")
        if (f"pq{uh}" in opt): a("s_setprio 1")
        def xread(ks):
            c, j = ks >> 2, ks & 3
            a(f"ds_read_b128 {vr(xreg(ks),4)}, v{AX+j} offset:{(c&1)*SLOT}"); lg.issue(f"x{ks}")
            bump(AX+j, c)
        if uh == 1:
            for ks in range(32):
                c, j = ks >> 2, ks & 3
                if j == 2:
                    if c > 0: lg.wait(f"x{4*c-1}")
                    midbar(c)
                xread(ks)
                dma_one(); dma_one()
            while pending: dma_one()
            stamp(2)
            a("s_waitcnt lgkmcnt(0)"); lg.reset()
            if f16:
                for u in range(8): xconv(u)
            a("s_barrier")
            if f16:
                for u in range(8, 16): xconv(u)
            else:
                a(f"""
v_and_b32 v1, 31, v0
s_lshl_b32 s29, s{sTB}, 5
v_add_u32 v1, s29, v1
v_lshlrev_b32 v1, 3, v1
v_add_u32 v1, {STAT}, v1
ds_read_b64 v[2:3], v1
v_cmp_gt_u32 vcc, 32, v0
s_waitcnt lgkmcnt(0)
v_mov_b32 v{vS}, v3
v_rcp_f32 v{vR}, v3
v_cndmask_b32 v{vNM}, 0, v2, vcc
""")
        else:
            QS = [[WF, WF+4, WF+8], [WF+12, SEL, 244]]
            def qread(ks, part):
                c, j = ks >> 2, ks & 3
                if part == 0: xread(ks)
                wread(QS[ks & 1][part], c, j, 16384 + part*64, f"w{ks}_{part}")
                if part == 2: bump(AW+j, c)
            for p_ in range(3): qread(0, p_)
            if "mpx1" in opt: self.mall_prefetch("x")
            if "pf" in opt: self.l2_pf_qkv()
            for ks in range(32):
                c, j = ks >> 2, ks & 3
                if ks == 8 and ("pf" in opt or "pff" in opt): self.l2_pf_ffn()
                if ks == (8 if "mf8" in opt else 4) and "nomf" not in opt: self.mall_prefetch("f")
                if j == 3: midbar(c)
                fr = QS[ks & 1]; xr = xreg(ks)
                for t in range(3):
                    lg.wait(f"x{ks}", f"w{ks}_{t}")
                    a(mfma(ACC+16*t, fr[t], xr, ACC+16*t))
                    if ks + 1 < 32: qread(ks+1, t)
                if j < 3: sel(j, fr[j], SELR)
                if f16 and c > 0: xconv(2*(c-1) + (j >> 1), (0, 1) if (j & 1) == 0 else (2, 3))
                if j == 3 and "nomf4" not in opt:
                    for q in range(4):
                        x4 = xreg(4*c+q)
                        a(mf4(S2, x4, x4)); a(mf4(S1, x4, ONES)); a(mf4(S2b, x4+2, x4+2)); a(mf4(S1b, x4+2, ONES))
            if f16: xconv(14); xconv(15)
            else: a.nop(2)
            csp_write(3, 0)
            if "pfdummy" in opt: pass
            stamp(2)
            T = WF
            a.nop(4)
            for i in range(4):
                a(f"v_add_f32 v{S2+i}, v{S2+i}, v{S2b+i}")
                a(f"v_add_f32 v{S1+i}, v{S1+i}, v{S1b+i}")
            a(f"""
v_and_b32 v1, 3, v0
v_cmp_eq_u32 vcc, 1, v1
v_cmp_eq_u32 s[30:31], 2, v1
v_cmp_eq_u32 s[32:33], 3, v1
s_nop 1
v_cndmask_b32 v{S2}, v{S2}, v{S2+1}, vcc
v_cndmask_b32 v{S1}, v{S1}, v{S1+1}, vcc
v_cndmask_b32 v{S2}, v{S2}, v{S2+2}, s[30:31]
v_cndmask_b32 v{S1}, v{S1}, v{S1+2}, s[30:31]
v_cndmask_b32 v{S2}, v{S2}, v{S2+3}, s[32:33]
v_cndmask_b32 v{S1}, v{S1}, v{S1+3}, s[32:33]
v_and_b32 v1, 31, v0
s_lshl_b32 s29, s{sTB}, 5
v_mov_b32 v{S1+1}, v{S1}
v_mov_b32 v{S2+1}, v{S2}
v_add_u32 v1, s29, v1
v_lshlrev_b32 v1, 3, v1
v_permlane32_swap_b32 v{S1}, v{S1+1}
v_permlane32_swap_b32 v{S2}, v{S2+1}
v_add_u32 v1, {STAT}, v1
s_nop 0
v_add_f32 v{S1}, v{S1}, v{S1+1}
v_add_f32 v{S2}, v{S2}, v{S2+1}
v_mul_f32 v{S1}, 0x3b000000, v{S1}
v_mul_f32 v{S2}, 0x3b000000, v{S2}
v_fma_f32 v{S2}, -v{S1}, v{S1}, v{S2}
v_max_f32 v{S2}, 0, v{S2}
v_cvt_pk_bf16_f32 v{T}, v{S1}, v{S1}
v_cvt_pk_bf16_f32 v{T+1}, v{S2}, v{S2}
v_xor_b32 v{T}, 0x80008000, v{T}
v_lshlrev_b32 v{T+1}, 16, v{T+1}
v_add_f32 v{T+1}, 0x3727c5ac, v{T+1}
v_cvt_pk_bf16_f32 v{T+1}, v{T+1}, v{T+1}
v_lshlrev_b32 v{T+1}, 16, v{T+1}
v_sqrt_f32 v{T+1}, v{T+1}
v_cmp_gt_u32 vcc, 32, v0
v_cvt_pk_bf16_f32 v{T+1}, v{T+1}, v{T+1}
v_lshlrev_b32 v{T+1}, 16, v{T+1}
s_mov_b32 exec_hi, 0
ds_write_b64 v1, {vr(T,2)}
s_mov_b64 exec, -1
v_mov_b32 v{vS}, v{T+1}
v_rcp_f32 v{vR}, v{T+1}
v_cndmask_b32 v{vNM}, 0, v{T}, vcc
v_and_b32 v4, 31, v0
v_lshlrev_b32 v4, 4, v4
v_add_u32 v4, {CSP}, v4
""")
            a("s_waitcnt lgkmcnt(0)"); lg.reset()
            a("s_barrier")
        def rank1(tiles, t0, accs, frs, xn, stat=False):
            for t in range(tiles):
                a(f"ds_read_b128 {vr(frs[t],4)}, v4 offset:{(t0+t)*512}")
            if stat:
                a(f"""
s_waitcnt lgkmcnt({tiles})
v_mov_b32 v{vS}, v3
v_rcp_f32 v{vR}, v3
v_cndmask_b32 v{vNM}, 0, v2, vcc
""")
            a(f"""
v_mov_b32 v{xn+1}, 0
v_mov_b32 v{xn+2}, 0
v_mov_b32 v{xn+3}, 0
v_mov_b32 v{xn}, v{vNM}
""")
            for t in range(tiles):
                f = frs[t]
                a(f"s_waitcnt lgkmcnt({tiles-1-t})")
                a(f"v_add_f32 v{f}, v{f}, v{f+1}")
                a(f"v_add_f32 v{f+2}, v{f+2}, v{f+3}")
                a(f"v_mov_b32 v{f+3}, 0")
                a(f"v_add_f32 v{f}, v{f}, v{f+2}")
                a(f"v_cvt_pk_bf16_f32 v{f+1}, v{f}, v{f}")
                a(f"v_lshlrev_b32 v{f+1}, 16, v{f+1}")
                a(f"v_sub_f32 v{f+2}, v{f}, v{f+1}")
                a(f"v_cvt_pk_bf16_f32 v{f}, v{f+1}, v{f+2}")
                a(f"v_mov_b32 v{f+1}, 0")
                a(f"v_mov_b32 v{f+2}, 0")
                a("s_nop 1")
                a(mfma(accs[t], frs[t], xn, accs[t]))
        if uh == 0:
            rank1(3, 0, [ACC, ACC+16, ACC+32], [WF, WF+4, WF+8], WF+12)
            a.nop(6)
            PK = [WF, WF+8, CSA]
            sB = [66, 69, 43]
            nva = L(f"{P}_nva")
            a(f"""
s_cmp_lt_u32 s{sCS}, 10
s_cbranch_scc1 {nva}
s_mul_i32 s33, s{sTB}, 6144
s_add_u32 s33, s33, {VSCR}
v_and_b32 v1, 31, v0
v_lshlrev_b32 v1, 6, v1
v_lshrrev_b32 v2, 5, v0
v_lshl_add_u32 v1, v2, 3, v1
v_bfe_u32 v7, v0, 1, 2
v_lshl_add_u32 v1, v7, 4, v1
v_add_u32 v1, s33, v1
v_lshlrev_b32 v5, 3, v2
v_bfe_u32 v3, v0, 2, 2
v_add_u32 v5, v5, v3
v_lshlrev_b32 v5, 6, v5
v_bfe_u32 v3, v0, 4, 1
v_lshl_add_u32 v5, v3, 5, v5
v_and_b32 v7, 3, v0
v_lshl_add_u32 v5, v7, 3, v5
v_bfe_u32 v7, v0, 3, 1
v_lshlrev_b32 v7, 4, v7
v_xor_b32 v5, v7, v5
v_lshlrev_b32 v3, 16, v3
v_lshl_add_u32 v3, v2, 8, v3
v_and_b32 v7, 15, v0
v_lshl_add_u32 v3, v7, 4, v3
v_add_u32 v2, s33, v5
v_xor_b32 v4, 32, v5
v_add_u32 v4, s33, v4
{nva}:
s_mul_i32 s31, s{sCS}, 3
""")
            for t in range(3):
                A_ = ACC + 16*t; Pk = PK[t]
                lv, ld = L(f"{P}_v{t}"), L(f"{P}_d{t}")
                a(f"""
s_add_u32 s30, s31, {t}
s_cmp_lt_u32 s30, 16
s_cselect_b32 s29, {CQ_BITS}, 1.0
v_mul_f32 v6, s29, v{vR}
s_lshl_b32 s{sB[t]}, s30, 17
s_lshl_b32 s32, s{sTBG}, 10
s_add_u32 s{sB[t]}, s{sB[t]}, s32
""")
                if t == 2: a.nop(4)
                for i in range(16): a(f"v_mul_f32 v{A_+i}, v{A_+i}, v6")
                for i in range(8): a(f"v_cvt_pk_bf16_f32 v{Pk+i}, v{A_+2*i}, v{A_+2*i+1}")
                a(f"""
s_cmp_ge_u32 s30, 32
s_cbranch_scc1 {lv}
s_add_u32 s32, s{sB[t]}, 65536
buffer_store_dwordx4 {vr(Pk,4)}, v{vL16}, s[{SRD_WS}:{SRD_WS+3}], s{sB[t]} offen sc1
buffer_store_dwordx4 {vr(Pk+4,4)}, v{vL16}, s[{SRD_WS}:{SRD_WS+3}], s32 offen sc1
s_branch {ld}
{lv}:
""")
                for j in range(4):
                    if j: a(f"v_xor_b32 v5, {16*j}, v1")
                    a(f"ds_write_b64 v{5 if j else 1}, {vr(Pk+2*j,2)} offset:{2048*t}")
                a(f"{ld}:")
            nov = L(f"{P}_nov")
            a(f"""
s_cmp_lt_u32 s{sCS}, 10
s_cbranch_scc1 {nov}
s_waitcnt lgkmcnt(0)
""")
            for t in range(3):
                Pk = PK[t]; l = L(f"{P}_vr{t}")
                if t < 2: a(f"s_cmp_eq_u32 s{sCS}, 10\ns_cbranch_scc1 {l}")
                for q, off in enumerate((0, 256, 1024, 1280)):
                    a(f"ds_read_b64_tr_b16 {vr(Pk+2*q,2)}, v{4 if q & 1 else 2} offset:{2048*t+off}")
                if t < 2: a(f"{l}:")
            a("s_waitcnt lgkmcnt(0)")
            for t in range(3):
                Pk = PK[t]; l = L(f"{P}_vs{t}")
                if t < 2: a(f"s_cmp_eq_u32 s{sCS}, 10\ns_cbranch_scc1 {l}")
                a(f"buffer_store_dwordx4 {vr(Pk,4)}, v3, s[{SRD_WS}:{SRD_WS+3}], s{sB[t]} offen sc1")
                a(f"buffer_store_dwordx4 {vr(Pk+4,4)}, v3, s[{SRD_WS}:{SRD_WS+3}], s{sB[t]} offen offset:512 sc1")
                if t < 2: a(f"{l}:")
            a(f"{nov}:")
            vm.issue("st", 6)
        stamp(3)
        a(f"s_setprio {1 if f'pf{uh}' in opt else 0}") if any(o in opt for o in ("pq0","pq1","pf0","pf1")) else None
        def ffn32():
            nonlocal SELR
            nf = 4 if uh == 0 else 2
            tf0 = 0 if uh == 0 else 4
            def foff(t):
                tt = tf0 + t
                return (tt & 1)*12288 + (tt >> 1)*64
            a("s_nop 1")
            if uh == 0:
                for t in range(4): wread(WF+4*t, 8, 0, foff(t), f"f0_{t}")
            else:
                FS = [[WF, WF+4], [WF+8, WF+12], [ACC+40, ACC+44]]
                def freads(ks):
                    f, j = ks >> 2, ks & 3
                    for t in range(2): wread(FS[ks % 3][t], 8+f, j, foff(t), f"f{ks}")
                    bump(AW+j, 8+f)
                freads(0); freads(1)
            for i in range(16*nf): a(f"v_mov_b32 v{ACC+i}, 0")
            if uh == 0:
                for i in range(12): a(f"v_mov_b32 v{CS+i}, 0")
                for i in range(4): a(f"v_mov_b32 v{SEL+i}, v{CSA+12+i}")
                for i in range(4): a(f"v_mov_b32 v{CS+12+i}, 0")
                SELR = SEL
            else:
                for i in range(8): a(f"v_mov_b32 v{CS+i}, 0")
                sel_init(SELR)
            adds = []
            def flush_adds(n):
                for _ in range(n):
                    if adds: a(adds.pop(0))
            for ks in range(32):
                f, j = ks >> 2, ks & 3
                gs = 8 + f
                if j == 2 and f < 7: midbar(gs)
                if uh == 0:
                    for t in range(4):
                        lg.wait(f"f{ks}_{t}")
                        a(mfma(ACC+16*t, WF+4*t, xreg(ks), ACC+16*t))
                        if j == t: sel(t, WF+4*t, SELR)
                        if ks + 1 < 32:
                            k2 = ks + 1
                            wread(WF+4*t, 8+(k2>>2), k2&3, foff(t), f"f{k2}_{t}")
                    k2 = ks + 1
                    if k2 < 32: bump(AW+(k2&3), 8+(k2>>2))
                else:
                    if ks + 2 < 32: freads(ks+2)
                    lg.wait(f"f{ks}")
                    for t in range(2):
                        a(mfma(ACC+16*t, FS[ks % 3][t], xreg(ks), ACC+16*t))
                        dma_one()
                    if j < 2: sel(j, FS[ks % 3][j], SELR)
            a.nop(8)
            csp_write(nf, tf0)
            stamp(4)
            if uh == 0:
                lv_ = a.newlabel(L("ver"))
                a(f"s_cmp_eq_u32 s{sVER}, 1\ns_cbranch_scc1 {lv_}")
                self.poll_check(7, 0)
                a(f"{lv_}:")
            if self.stamps and uh == 0: a(f"s_mov_b32 s101, s{sVER}")
            a("s_waitcnt lgkmcnt(0)"); lg.reset()
            a("s_barrier")
            kv = self.attn_loads(uh)
            def kv_one(n=1):
                for _ in range(n):
                    if kv: a(kv.pop(0))
            XN2 = X
            a(f"""
v_and_b32 v4, 31, v0
v_lshlrev_b32 v4, 4, v4
v_add_u32 v4, {CSP}, v4
""")
            kv_one(2 if uh == 0 else 10)
            rank1(nf, tf0, [ACC+16*t for t in range(nf)], [WF+4*t for t in range(nf)], XN2)
            cA, cB = X+4, X+6
            a(f"""
v_mul_f32 v{cA}, 0xbfb8aa3b, v{vR}
v_mul_f32 v{cB}, v{vS}, v{vS}
""")
            a.nop(12)
            stores = []
            npairs = nf//2
            for i in range(npairs):
                G, U = ACC+32*i, ACC+32*i+16
                T = X + 8 + 32*i; Pk = X + 8 + 32*i + 16
                body = []
                body += [f"v_pk_mul_f32 {vr(T+r,2)}, {vr(G+r,2)}, {vr(cA,2)} op_sel_hi:[1,0]" for r in range(0,16,2)]
                body += [f"v_exp_f32 v{T+r}, v{T+r}" for r in range(16)]
                body += [f"v_pk_mul_f32 {vr(G+r,2)}, {vr(G+r,2)}, {vr(U+r,2)}" for r in range(0,16,2)]
                body += [f"v_pk_fma_f32 {vr(T+r,2)}, {vr(T+r,2)}, {vr(cB,2)}, {vr(cB,2)} op_sel_hi:[1,0,0]" for r in range(0,16,2)]
                body += [f"v_rcp_f32 v{T+r}, v{T+r}" for r in range(16)]
                body += ["s_nop 0"]
                body += [f"v_pk_mul_f32 {vr(G+r,2)}, {vr(G+r,2)}, {vr(T+r,2)}" for r in range(0,16,2)]
                body += [f"v_cvt_pk_bf16_f32 v{Pk+r}, v{G+2*r}, v{G+2*r+1}" for r in range(8)]
                for ins in body: a(ins)
                stores.append((i, Pk))
            for (i, Pk) in stores:
                a(f"""
s_mul_i32 s29, s{sCS}, 3
s_add_u32 s29, s29, {(tf0>>1)+i}
s_mul_i32 s30, s{sTBG}, 86
s_lshl_b32 s31, s29, 1
s_add_u32 s30, s30, s31
s_lshl_b32 s30, s30, 10
s_add_u32 s30, s30, {HF}
s_cmp_ge_u32 s29, 43
s_cselect_b32 s30, {WSEND}, s30
buffer_store_dwordx4 {vr(Pk,4)}, v{vL16}, s[{SRD_WS}:{SRD_WS+3}], s30 offen sc1
buffer_store_dwordx4 {vr(Pk+4,4)}, v{vL16}, s[{SRD_WS}:{SRD_WS+3}], s30 offen offset:1024 sc1
""")
            if uh == 1: self.kv_stage1 = list(kv)

        def ffn16():
            npl = 2 if uh == 0 else 1
            p0 = 0 if uh == 0 else 2
            nfr = 4*npl
            def mf16(d, A, B): return f"v_mfma_f32_16x16x32_bf16 {vr(d,4)}, {vr(A,4)}, {vr(B,4)}, {vr(d,4)}"
            def acc(il, mat, s_, sb): return ACC + 4*(((il*2+mat)*2+s_)*2+sb)
            BW = lambda kk, s_: AW + 2*kk + s_
            a(f"""
v_lshrrev_b32 v1, 5, v0
v_lshlrev_b32 v1, 5, v1
v_bfe_u32 v2, v0, 2, 2
v_add_u32 v1, v1, v2
v_bfe_u32 v3, v0, 4, 1
v_and_b32 v4, 3, v0
v_lshrrev_b32 v5, 1, v4
v_and_b32 v4, 1, v4
v_lshl_or_b32 v4, v4, 1, v5
v_lshlrev_b32 v4, 3, v4
""")
            for kk in range(2):
                a(f"""
v_or_b32 v5, {2*kk}, v3
v_xor_b32 v5, s{sTB}, v5
v_lshl_add_u32 v5, v5, 3, v1
v_mul_u32_u24 v5, 0xc0, v5
v_add_u32 v5, v5, v4
v_lshl_add_u32 v{BW(kk,0)}, v3, 5, v5
v_xor_b32 v6, 1, v3
v_lshl_add_u32 v{BW(kk,1)}, v6, 5, v5
""")
            BUF = [WF, WF+4, WF+8, WF+12]
            def fread(q, half):
                if q >= 16*nfr: return
                u, fr = divmod(q, nfr)
                f, kk = u >> 1, u & 1
                il, mat, s_ = fr >> 2, (fr >> 1) & 1, fr & 1
                imm = ((8+f) & 1)*SLOT + mat*12288 + (p0+il)*64
                d = BUF[q & 3]
                a(f"ds_read_b64_tr_b16 {vr(d+2*half,2)}, v{BW(kk,s_)} offset:{imm+768*half}"); lg.issue(f"g{q}")
                if half == 1 and fr >= nfr-2: bump(BW(kk,s_), 8+f)
            for q in range(3): fread(q, 0); fread(q, 1)
            for i in range(16*2*npl): a(f"v_mov_b32 v{ACC+i}, 0")
            SR = SEL if uh == 0 else ACC + 48
            for i in range(8*npl): a(f"v_mov_b32 v{CS+i}, 0")
            a(f"""
v_and_b32 v1, 15, v0
v_cmp_eq_u32 vcc, 0, v1
v_mov_b32 v3, 0x3f803f80
s_nop 0
v_cndmask_b32 v{SR}, 0, v3, vcc
v_mov_b32 v{SR+1}, v{SR}
v_mov_b32 v{SR+2}, v{SR}
v_mov_b32 v{SR+3}, v{SR}
""")
            for u in range(16):
                f, kk = u >> 1, u & 1
                if kk == 1 and f < 7: midbar(8+f)
                for fr in range(nfr):
                    il, mat, s_ = fr >> 2, (fr >> 1) & 1, fr & 1
                    q = u*nfr + fr
                    b = BUF[q & 3]
                    lg.wait(f"g{q}")
                    a(mf16(acc(il,mat,s_,0), b, xreg(2*u)))
                    fread(q+3, 0)
                    a(mf16(acc(il,mat,s_,1), b, xreg(2*u+1)))
                    fread(q+3, 1)
                    if kk == 0 and s_ == 0 and "nocs" not in opt:
                        t = il*2+mat
                        a(f"v_mfma_f32_16x16x32_bf16 {vr(CS+4*t,4)}, {vr(SR,4)}, {vr(b,4)}, {vr(CS+4*t,4)}")
                    if uh == 1 and fr != 3: dma_one()
            a.nop(8)
            a(f"""
v_lshlrev_b32 v1, 3, v0
s_and_b32 s29, s{sTB}, 1
s_lshl_b32 s29, s29, 7
s_lshr_b32 s30, s{sTB}, 1
s_lshl_b32 s30, s30, 2
s_add_u32 s29, s29, s30
s_add_u32 s29, s29, {CSP + p0*512}
v_add_u32 v1, s29, v1
s_mov_b64 exec, 0xffff
""")
            for t in range(2*npl): a(f"ds_write_b32 v1, v{CS+4*t} offset:{t*256}")
            a("s_mov_b64 exec, -1")
            stamp(4)
            if uh == 0:
                lv_ = a.newlabel(L("ver"))
                a(f"s_cmp_eq_u32 s{sVER}, 1\ns_cbranch_scc1 {lv_}")
                self.poll_check(7, 0)
                a(f"{lv_}:")
            if self.stamps and uh == 0: a(f"s_mov_b32 s101, s{sVER}")
            a("s_waitcnt lgkmcnt(0)"); lg.reset()
            a("s_barrier")
            kv = self.attn_loads(uh)
            def kv_one(n=1):
                for _ in range(n):
                    if kv: a(kv.pop(0))
            XN = [X, X+4]; cA = [X+8, X+10]; cB = [X+12, X+14]; vC = [X+16, X+17]
            a(f"""
v_and_b32 v1, 15, v0
s_lshl_b32 s29, s{sTB}, 5
v_add_u32 v2, s29, v1
v_lshlrev_b32 v2, 3, v2
v_add_u32 v2, {STAT}, v2
ds_read_b64 v[{X+20}:{X+21}], v2
ds_read_b64 v[{X+22}:{X+23}], v2 offset:128
v_lshlrev_b32 v1, 3, v1
s_and_b32 s29, s{sTB}, 1
s_lshl_b32 s29, s29, 7
s_add_u32 s30, s29, {CSP + p0*512}
v_add_u32 v{vC[0]}, s30, v1
s_xor_b32 s29, s29, 128
s_add_u32 s30, s29, {CSP + p0*512}
v_add_u32 v{vC[1]}, s30, v1
""")
            kv_one(2 if uh == 0 else 10)
            PR = [X+24+2*k for k in range(4*npl)]
            for t in range(2*npl):
                for s_ in range(2):
                    a(f"ds_read_b64 {vr(PR[t*2+s_],2)}, v{vC[s_]} offset:{t*256}")
            a(f"""
v_cmp_gt_u32 vcc, 16, v0
s_waitcnt lgkmcnt({4*npl})
""")
            for sb in range(2):
                nm, sd = X+20+2*sb, X+21+2*sb
                a(f"""
v_cndmask_b32 v{XN[sb]}, 0, v{nm}, vcc
v_mov_b32 v{XN[sb]+1}, 0
v_mov_b32 v{XN[sb]+2}, 0
v_mov_b32 v{XN[sb]+3}, 0
v_rcp_f32 v{cA[sb]}, v{sd}
v_mul_f32 v{cB[sb]}, v{sd}, v{sd}
""")
            for sb in range(2): a(f"v_mul_f32 v{cA[sb]}, 0xbfb8aa3b, v{cA[sb]}")
            for k in range(1, 4):
                for b_ in BUF: a(f"v_mov_b32 v{b_+k}, 0")
            a("s_waitcnt lgkmcnt(0)")
            for t in range(2*npl):
                for s_ in range(2):
                    pr = PR[t*2+s_]; b_ = BUF[(t*2+s_) & 3]
                    a(f"v_add_f32 v{pr}, v{pr}, v{pr+1}")
                    a(f"v_cvt_pk_bf16_f32 v{pr+1}, v{pr}, v{pr}")
                    a(f"v_lshlrev_b32 v{pr+1}, 16, v{pr+1}")
                    a(f"v_sub_f32 v{pr}, v{pr}, v{pr+1}")
                    a(f"v_cvt_pk_bf16_f32 v{b_}, v{pr+1}, v{pr}")
                    a("s_nop 1")
                    il, mat = t >> 1, t & 1
                    for sb in range(2): a(mf16(acc(il,mat,s_,sb), b_, XN[sb]))
            a.nop(8)
            stores = []
            for il in range(npl):
                T = X + 48 + 32*il; Pk = X + 48 + 32*il + 16
                body = []
                el = [(s_, sb) for s_ in range(2) for sb in range(2)]
                G = lambda s_, sb: acc(il, 0, s_, sb)
                U = lambda s_, sb: acc(il, 1, s_, sb)
                for n_, (s_, sb) in enumerate(el):
                    for r in (0, 2): body.append(f"v_pk_mul_f32 {vr(T+4*n_+r,2)}, {vr(G(s_,sb)+r,2)}, {vr(cA[sb],2)} op_sel_hi:[1,0]")
                body += [f"v_exp_f32 v{T+r}, v{T+r}" for r in range(16)]
                for n_, (s_, sb) in enumerate(el):
                    for r in (0, 2): body.append(f"v_pk_mul_f32 {vr(G(s_,sb)+r,2)}, {vr(G(s_,sb)+r,2)}, {vr(U(s_,sb)+r,2)}")
                for n_, (s_, sb) in enumerate(el):
                    for r in (0, 2): body.append(f"v_pk_fma_f32 {vr(T+4*n_+r,2)}, {vr(T+4*n_+r,2)}, {vr(cB[sb],2)}, {vr(cB[sb],2)} op_sel_hi:[1,0,0]")
                body += [f"v_rcp_f32 v{T+r}, v{T+r}" for r in range(16)]
                body += ["s_nop 0"]
                for n_, (s_, sb) in enumerate(el):
                    for r in (0, 2): body.append(f"v_pk_mul_f32 {vr(G(s_,sb)+r,2)}, {vr(G(s_,sb)+r,2)}, {vr(T+4*n_+r,2)}")
                for n_, (s_, sb) in enumerate(el):
                    for r in range(2): body.append(f"v_cvt_pk_bf16_f32 v{Pk+4*s_+2*sb+r}, v{G(s_,sb)+2*r}, v{G(s_,sb)+2*r+1}")
                body += ["s_nop 1"]
                for s_ in range(2):
                    for r in range(2): body.append(f"v_permlane16_swap_b32 v{Pk+4*s_+r}, v{Pk+4*s_+2+r}")
                for ins in body: a(ins)
                stores.append((il, Pk))
            for (il, Pk) in stores:
                a(f"""
s_mul_i32 s29, s{sCS}, 3
s_add_u32 s29, s29, {p0+il}
s_mul_i32 s30, s{sTBG}, 86
s_lshl_b32 s31, s29, 1
s_add_u32 s30, s30, s31
s_and_b32 s31, s{sTB}, 1
s_add_u32 s32, s30, s31
s_xor_b32 s31, s31, 1
s_add_u32 s30, s30, s31
s_lshl_b32 s32, s32, 10
s_lshl_b32 s30, s30, 10
s_add_u32 s32, s32, {HF}
s_add_u32 s30, s30, {HF}
s_cmp_ge_u32 s29, 43
s_cselect_b32 s32, {WSEND}, s32
s_cselect_b32 s30, {WSEND}, s30
buffer_store_dwordx4 {vr(Pk,4)}, v{vL16}, s[{SRD_WS}:{SRD_WS+3}], s32 offen sc1
buffer_store_dwordx4 {vr(Pk+4,4)}, v{vL16}, s[{SRD_WS}:{SRD_WS+3}], s30 offen sc1
""")
            if uh == 1: self.kv_stage1 = list(kv)
        if f16: ffn16()
        else: ffn32()
        if any(o in opt for o in ("pf0","pf1")): a("s_setprio 0")
        stamp(5)

    BQ = [216, 220]
    def kv_scalars(self):
        self.a(f"""
s_lshl_b32 s33, s{sHD}, 16
s_lshr_b32 s29, s{sW}, 1
s_and_b32 s29, s29, 1
s_and_b32 s30, s{sW}, 1
s_lshl_b32 s30, s30, 2
s_lshl_b32 s31, s{sUH}, 5
s_add_u32 s30, s30, s31
s_lshl_b32 s30, s30, 10
s_lshl_b32 s31, s29, 16
s_add_u32 s{sDST}, s31, s30
s_lshl_b32 s31, s29, 21
s_add_u32 s{sSRC}, s31, s30
s_add_u32 s{sSRC}, s{sSRC}, s33
s_add_u32 s{sSRC}, s{sSRC}, {KF}
""")
    def attn_loads(self, uh):
        a = self.a; Q = self.BQ
        a(f"""
s_lshl_b32 s33, s{sHD}, 16
s_lshl_b32 s{sTB0}, s{sQB}, 3
s_lshl_b32 s29, s{sTB}, 1
s_add_u32 s{sTB0}, s{sTB0}, s29
s_lshl_b32 s29, s{sTB0}, 10
s_add_u32 s69, s33, s29
""")
        self.kv_scalars()
        a(f"s_add_u32 s{sSRC}, s{sSRC}, 16384\ns_add_u32 s{sDST}, s{sDST}, 16384")
        g = []
        g.append(f"buffer_load_dwordx4 {vr(Q[0],4)}, v{vL16}, s[{SRD_WS}:{SRD_WS+3}], s69 offen sc1")
        g.append(f"buffer_load_dwordx4 {vr(Q[1],4)}, v{vL16}, s[{SRD_WS}:{SRD_WS+3}], s69 offen offset:1024 sc1")
        if uh == 1:
            a(f"""
s_and_b32 s29, s{sTB}, 1
s_lshr_b32 s30, s{sTB}, 1
s_lshl_b32 s30, s30, 15
s_lshl_b32 s31, s29, 16
s_add_u32 s{sK0D}, s31, s30
s_lshl_b32 s31, s29, 21
s_add_u32 s{sK0S}, s31, s30
s_add_u32 s{sK0S}, s{sK0S}, s33
s_add_u32 s{sK0S}, s{sK0S}, {KF}
""")
            for h_ in range(4):
                for q in range(4):
                    t = ""
                    if q == 0: t += f"s_mov_b32 m0, s{sK0D}\ns_add_u32 s{sK0D}, s{sK0D}, 4096\n"
                    t += f"buffer_load_dwordx4 v{vL16}, s[{SRD_WS}:{SRD_WS+3}], s{sK0S} offen offset:{q*1024} sc1 lds"
                    if q == 3: t += f"\ns_add_u32 s{sK0S}, s{sK0S}, 4096"
                    g.append(t)
        return g

    def phaseB(self):
        a = self.a; L = self.L; opt = self.opt; stamp = self.stamp
        vAK, vAV, vIDX = 2, 3, 4
        Q = self.BQ; K = [16, 20]; V = [24, 32]; S = [40, 56]; O = [72, 88]; C = [104, 120]; T = 136
        NST = 4
        a("s_nop 1")
        a(f"""
v_mov_b32 v{vIDX}, 0xdddddddd
v_and_b32 v5, 27, v0
v_cmp_eq_u32 vcc, 16, v5
v_mov_b32 v6, 0x3f803f80
s_mov_b32 s{sMASK}, 0x0000ffff
v_cndmask_b32 v{V[0]}, 0, v6, vcc
""")
        a(f"v_mov_b32 v{V[0]+1}, v{V[0]}")
        for i in range(2,16,2): a(f"v_mov_b64 {vr(V[0]+i,2)}, {vr(V[0],2)}")
        a(f"""
s_mov_b32 s{sMASK+1}, 0x0000ffff
s_mov_b32 s{sREDO}, 0
s_lshl_b32 s35, s{sUH}, 15
v_lshrrev_b32 v5, 5, v0
v_lshlrev_b32 v5, 8, v5
v_and_b32 v6, 15, v0
v_lshl_add_u32 v5, v6, 4, v5
s_add_u32 s29, s35, 65536
v_add_u32 v1, s29, v5
v_mov_b32 v5, {FLAG}
v_mov_b32 v6, 0
ds_write_b32 v5, v6
""")
        for t in range(2):
            for i in range(0,16,2): a(f"v_mov_b64 {vr(O[t]+i,2)}, 0")
        a(f"""
s_waitcnt vmcnt(4) lgkmcnt(0)
s_cmp_eq_u32 s{sUH}, 0
s_cbranch_scc1 {L('bw0')}
s_waitcnt vmcnt(2)
{L('bw0')}:
s_barrier
""")
        stamp(6)
        a.label(L('redo'))
        a(f"""
s_cmp_eq_u32 s{sREDO}, 0
s_cselect_b32 s29, 1, 32
v_add_u32 v{vAK}, s35, v{vL16}
v_mov_b32 v{T}, 0xff800000
v_mov_b32 v{T+1}, 0xff800000
""")
        a.label(L('maxloop'))
        a(f"""
ds_read_b128 {vr(K[0],4)}, v{vAK}
v_add_u32 v{vAK}, 1024, v{vAK}
s_waitcnt lgkmcnt(0)
{mfma(S[0],K[0],Q[0],None)}
{mfma(S[1],K[0],Q[1],None)}
s_sub_u32 s29, s29, 1
""")
        a.nop(12)
        for i in range(8):
            for t in range(2):
                a(f"v_max3_f32 v{T+t}, v{T+t}, v{S[t]+2*i}, v{S[t]+2*i+1}")
        a(f"""
s_cmp_lg_u32 s29, 0
s_cbranch_scc1 {L('maxloop')}
v_mov_b32 v{T+2}, v{T}
v_mov_b32 v{T+3}, v{T+1}
v_add_u32 v{vAK}, s35, v{vL16}
v_mov_b32 v{vAV}, v1
v_permlane32_swap_b32 v{T}, v{T+2}
v_permlane32_swap_b32 v{T+1}, v{T+3}
s_mov_b64 exec, s[{sMASK}:{sMASK+1}]
ds_read_b128 {vr(V[0],4)}, v{vAV}
ds_read_b128 {vr(V[0]+4,4)}, v{vAV} offset:512
s_mov_b64 exec, -1
v_max_f32 v{T}, v{T}, v{T+2}
v_max_f32 v{T+1}, v{T+1}, v{T+3}
""")
        a(f"ds_read_b128 {vr(K[0],4)}, v{vAK}")
        for i in range(16): a(f"v_sub_f32 v{C[0]+i}, 0, v{T}")
        a("s_waitcnt lgkmcnt(0)")
        a("s_nop 0")
        a(mfma(S[0],K[0],Q[0],C[0]))
        for i in range(16): a(f"v_sub_f32 v{C[1]+i}, 0, v{T+1}")
        for i in range(8,16): a(f"v_mov_b32 v{S[1]+i}, 0")
        def tile(p, off):
            exA = [f"v_exp_f32 v{S[0]+i}, v{S[0]+i}" for i in range(16)]
            exB = [f"v_exp_f32 v{S[1]+i}, v{S[1]+i}" for i in range(16)]
            insA = [
                (3, smf(O[1], V[p^1]+4, S[1]+8, vIDX)),
                (5, mfma(S[1], K[p], Q[1], None if "c0" in opt else C[1])),
                (8, f"ds_read_b128 {vr(K[p^1],4)}, v{vAK} offset:{off}"),
                (8, f"s_mov_b64 exec, s[{sMASK}:{sMASK+1}]"),
                (8, f"ds_read_b128 {vr(V[p^1],4)}, v{vAV} offset:{off}"),
                (8, f"ds_read_b128 {vr(V[p^1]+4,4)}, v{vAV} offset:{off+512}"),
                (8, f"s_mov_b64 exec, -1"),
                (11, smf(O[0], V[p], S[0], vIDX)),
            ]
            insB = [
                (3, smf(O[0], V[p]+4, S[0]+8, vIDX)),
                (5, "s_waitcnt lgkmcnt(0)"),
                (5, mfma(S[0], K[p^1], Q[0], None if "c0" in opt else C[0])),
                (11, smf(O[1], V[p], S[1], vIDX)),
            ]
            for l in interleave(exA, insA): a(l)
            for l in interleave(exB, insB): a(l)
        def kv_stage():
            a(f"s_mov_b32 m0, s{sDST}\ns_add_u32 s{sDST}, s{sDST}, 8192")
            for q in range(4):
                a(f"buffer_load_dwordx4 v{vL16}, s[{SRD_WS}:{SRD_WS+3}], s{sSRC} offen offset:{q*1024} sc1 lds")
            a(f"s_add_u32 s{sSRC}, s{sSRC}, 8192")
        a(f"s_cmp_lg_u32 s{sREDO}, 0")
        a(f"s_cbranch_scc1 {L('rloop0')}")
        stamp(7)
        for o_, who in (("prio_old", 0), ("prio_young", 1)):
            if o_ in opt or (o_ == "prio_young" and "noprio" not in opt and "prio_old" not in opt):
                lp_ = a.newlabel(L("prio"))
                a(f"s_cmp_lg_u32 s{sUH}, {who}\ns_cbranch_scc1 {lp_}\ns_setprio 3\n{lp_}:")
        if "al64" in opt: a(".p2align 6")
        if "al64s" in opt: a(".p2align 6\ns_nop 0")
        if "sh4" in opt: a("s_nop 0")
        for T_ in range(32):
            st_, t = T_ >> 3, T_ & 7
            if T_ == 0:
                l1_ = L('kv1')
                a(f"s_cmp_eq_u32 s{sUH}, 0\ns_cbranch_scc1 {l1_}")
                for g_ in self.kv_stage1: a(g_)
                a(f"{l1_}:")
            if st_ == 0 and t in (2, 4): kv_stage()
            if st_ == 0 and t == 6:
                a("s_waitcnt vmcnt(8)\ns_barrier")
                a(f"""
s_lshl_b32 s29, s{sRB}, 7
s_lshl_b32 s30, s{sCS}, 2
s_add_u32 s29, s29, s30
s_add_u32 s29, s29, {F2}
""")
                self.signal(29)
                a(f"""
s_lshr_b32 s29, s{sRB64}, 1
s_lshl_b32 s29, s29, 7
s_add_u32 s29, s29, {F2}
v_and_b32 v7, 15, v0
v_lshl_add_u32 v7, v7, 2, s29
""")
            if st_ == 1 and t == 6:
                a("s_waitcnt vmcnt(0)\ns_barrier")
                self.poll_issue(7)
            if st_ == 2 and t < 4 and "nocpf" not in opt:
                lp = L(f'cpf{t}')
                a(f"""
s_cmp_lg_u32 s{sTB}, {t}
s_cbranch_scc1 {lp}
s_lshr_b32 s29, s2, 3
s_lshl_b32 s29, s29, 9
s_lshl_b32 s30, s{sW}, 6
s_add_u32 s29, s29, s30
v_add_u32 v5, s29, v0
v_lshlrev_b32 v5, 7, v5
s_mov_b32 s{SRD_WQ}, s{pW2}
s_mov_b32 s{SRD_WQ+1}, s{pW2+1}
s_mov_b32 s{SRD_WQ+2}, {1376*1024}
buffer_load_dword v163, v5, s[{SRD_WQ}:{SRD_WQ+3}], 0 offen
v_subrev_u32 v6, {1376*1024}, v5
s_mov_b32 s{SRD_WF}, s{pWO}
s_mov_b32 s{SRD_WF+1}, s{pWO+1}
s_mov_b32 s{SRD_WF+2}, {512*1024}
buffer_load_dword v164, v6, s[{SRD_WF}:{SRD_WF+3}], 0 offen
{lp}:
""")
            early = "cearly" in opt
            if st_ == 2 and t == 5: self.c_setup()
            if early and st_ == 2 and t == 6:
                self.poll_check(7, 1, wait=(True if "nocpf" in opt else 2))
                a("s_barrier")
                cq = self.c_pieces() + self.c_pieces()
            if early and st_ == 3 and t == 6:
                a("s_barrier")
                cq = self.c_pieces()
            if early and ((st_ == 2 and t >= 6) or (st_ == 3 and (t < 2 or t >= 6))):
                lq = a.newlabel(L("cq"))
                a(f"s_cmp_eq_u32 s{sUH}, 0\ns_cbranch_scc1 {lq}")
                for _ in range(4): a(cq.pop(0))
                a(f"{lq}:")
            if not early and st_ == 2 and t == 6 and "nohpf" not in opt:
                l3 = L('hpf')
                a(f"""
s_cmp_lg_u32 s{sW}, 0
s_cbranch_scc1 {l3}
s_waitcnt vmcnt({0 if "nocpf" in opt else 2})
v_cmp_ne_u32 vcc, s{sTAG}, v{vPOLL}
s_nop 4
s_cmp_eq_u64 vcc, 0
s_cbranch_scc0 {l3}
s_mul_i32 s29, s{sRB64}, 176128
s_mul_i32 s30, s{sCB}, {172*128}
s_add_u32 s29, s29, s30
s_add_u32 s29, s29, {HF}
v_lshlrev_b32 v5, 7, v0
buffer_load_dword v160, v5, s[{SRD_WS}:{SRD_WS+3}], s29 offen
v_add_u32 v5, 8192, v5
buffer_load_dword v161, v5, s[{SRD_WS}:{SRD_WS+3}], s29 offen
v_add_u32 v5, 8192, v5
v_min_u32 v5, {171*128}, v5
buffer_load_dword v162, v5, s[{SRD_WS}:{SRD_WS+3}], s29 offen
{l3}:
""")
            tile(T_ & 1, (T_+1)*1024)
        a(f"s_branch {L('mdone')}")
        a.label(L('rloop0'))
        a(f"s_mov_b32 s{sSTG}, 0")
        a.label(L('rloop'))
        tile(0, 1024); tile(1, 2048)
        a(f"""
v_add_u32 v{vAK}, 2048, v{vAK}
v_add_u32 v{vAV}, 2048, v{vAV}
s_add_u32 s{sSTG}, s{sSTG}, 1
s_cmp_lt_u32 s{sSTG}, 16
s_cbranch_scc1 {L('rloop')}
""")
        a.label(L('mdone'))
        if "noprio" not in opt: a("s_setprio 0")
        a(smf(O[1], V[1]+4, S[1]+8, vIDX))
        stamp(8)
        a(f"""
s_mul_i32 s29, s{sW}, 2560
s_add_u32 s29, s29, {EX}
s_xor_b32 s30, s{sW}, 4
s_mul_i32 s30, s30, 2560
s_add_u32 s30, s30, {EX}
v_add_u32 v5, s29, v{vL16}
v_lshlrev_b32 v6, 3, v0
v_add_u32 v6, s29, v6
v_add_u32 v165, s30, v{vL16}
v_lshlrev_b32 v166, 3, v0
v_add_u32 v166, s30, v166
s_nop 3
s_cmp_lg_u32 s{sREDO}, 0
s_cbranch_scc1 {L('nochk')}
""")
        a(f"v_mul_f32 v{T}, 0, v{O[0]}")
        for t in range(2):
            for i in range(8):
                if t == 0 and i == 0: continue
                a(f"v_fma_f32 v{T}, v{O[t]+i}, 0, v{T}")
        a(f"""
v_max_f32 v{T+1}, v{O[0]+8}, v{O[1]+8}
v_add_f32 v{T+2}, v{O[0]+8}, v{O[1]+8}
v_add_f32 v{T+1}, v{T+1}, v{T}
v_mul_f32 v{T+2}, 0, v{T+2}
v_add_f32 v{T+1}, v{T+1}, v{T+2}
v_mov_b32 v{T+3}, 0x4e800000
v_mov_b32 v167, {FLAG}
v_cmp_nle_f32 vcc, v{T+1}, v{T+3}
v_mov_b32 v{T+3}, 1
s_nop 3
s_cmp_eq_u64 vcc, 0
s_cbranch_scc1 {L('nochk')}
ds_write_b32 v167, v{T+3}
{L('nochk')}:
s_cmp_eq_u32 s{sUH}, 0
s_cbranch_scc1 {L('noswap')}
""")
        for i in range(9): a(f"v_swap_b32 v{O[0]+i}, v{O[1]+i}")
        a(f"v_swap_b32 v{C[0]}, v{C[1]}")
        a.label(L('noswap'))
        a(f"""
v_mov_b32 v{T}, v{O[1]+8}
v_mov_b32 v{T+1}, v{C[1]}
ds_write_b128 v5, {vr(O[1],4)}
ds_write_b128 v5, {vr(O[1]+4,4)} offset:1024
ds_write_b64 v6, {vr(T,2)} offset:2048
""")
        def c_part(order):
            l = a.newlabel(L("cp"))
            a(f"s_cmp_eq_u32 s{sUH}, 0\ns_cbranch_scc1 {l}")
            for g_ in self.c_pieces(order): a(g_)
            a(f"{l}:")
        c_part("hw")
        self.poll_check(7, 1)
        a(f"""
s_waitcnt lgkmcnt(0)
s_barrier
v_mov_b32 v167, {FLAG}
ds_read_b32 v167, v167
ds_read_b64 {vr(T,2)}, v166 offset:2048
ds_read_b128 {vr(O[1],4)}, v165
ds_read_b128 {vr(O[1]+4,4)}, v165 offset:1024
""")
        c_part("a")
        a(f"""
s_waitcnt lgkmcnt(3)
v_readfirstlane_b32 s29, v167
s_cmp_lg_u32 s{sREDO}, 0
s_cbranch_scc1 {L('ok')}
s_nop 2
s_cmp_eq_u32 s29, 0
s_cbranch_scc1 {L('ok')}
s_mov_b32 s{sREDO}, 1
""")
        a("s_waitcnt vmcnt(0) lgkmcnt(0)")
        a("s_barrier")
        self.kv_scalars()
        for st_ in range(4):
            a(f"s_mov_b32 m0, s{sDST}\ns_add_u32 s{sDST}, s{sDST}, 8192")
            for q in range(4):
                a(f"buffer_load_dwordx4 v{vL16}, s[{SRD_WS}:{SRD_WS+3}], s{sSRC} offen offset:{q*1024} sc1 lds")
            a(f"s_add_u32 s{sSRC}, s{sSRC}, 8192")
        self.c_setup()
        for t in range(2):
            for i in range(16): a(f"v_mov_b32 v{O[t]+i}, 0")
        for i in range(8,16): a(f"v_mov_b32 v{S[1]+i}, 0")
        a(f"""
s_waitcnt vmcnt(0)
s_barrier
s_branch {L('redo')}
{L('ok')}:
""")
        a(f"""
s_waitcnt lgkmcnt(2)
v_min_f32 v{T+2}, v{T+1}, v{C[0]}
v_sub_f32 v{T+3}, v{T+2}, v{C[0]}
v_sub_f32 v{T+4}, v{T+2}, v{T+1}
v_exp_f32 v{T+3}, v{T+3}
v_exp_f32 v{T+4}, v{T+4}
s_nop 0
v_mul_f32 v{T+5}, v{T+3}, v{O[0]+8}
v_fma_f32 v{T+5}, v{T+4}, v{T}, v{T+5}
v_rcp_f32 v{T+5}, v{T+5}
s_nop 0
v_mul_f32 v{T+3}, v{T+3}, v{T+5}
v_mul_f32 v{T+4}, v{T+4}, v{T+5}
s_waitcnt lgkmcnt(0)
""")
        for i in range(8): a(f"v_mul_f32 v{O[0]+i}, v{O[0]+i}, v{T+3}")
        for i in range(8): a(f"v_fma_f32 v{O[0]+i}, v{O[1]+i}, v{T+4}, v{O[0]+i}")
        for i in range(4): a(f"v_cvt_pk_bf16_f32 v{T+8+i}, v{O[0]+2*i}, v{O[0]+2*i+1}")
        if "olate" in opt: c_part("haw")
        a(f"""
s_add_u32 s29, s{sTB0}, s{sUH}
s_lshl_b32 s29, s29, 5
s_add_u32 s29, s29, s{sHD}
s_lshl_b32 s29, s29, 10
s_add_u32 s29, s29, {OF}
buffer_store_dwordx4 {vr(T+8,4)}, v{vL16}, s[{SRD_WS}:{SRD_WS+3}], s29 offen sc1
""")
        stamp(9)

    cSRC, cA, cW = 224, 225, 226
    SRD_C = 4
    def c_setup(self):
        a = self.a; L = self.L
        vS_ = self.cSRC; C4 = self.SRD_C
        a(f"""
v_lshrrev_b32 v165, 3, v0
v_lshrrev_b32 v166, 4, v0
v_and_b32 v166, 1, v166
v_lshlrev_b32 v166, 2, v166
v_and_b32 v167, 7, v0
v_xor_b32 v166, v166, v167
v_lshlrev_b32 v166, 4, v166
v_lshl_add_u32 v{vS_}, v165, 10, v166
s_lshl_b32 s29, s{sCB}, 7
v_add_u32 v{vS_}, s29, v{vS_}
s_mov_b32 s{SRD_WF}, s{pOUT}
s_mov_b32 s{SRD_WF+1}, s{pOUT+1}
s_mov_b32 s{SRD_WF+2}, {2048*1024}
s_mov_b32 s{C4}, s{pW2}
s_mov_b32 s{C4+1}, s{pW2+1}
s_mov_b32 s{C4+2}, {1376*1024}
s_mov_b32 s{C4+3}, 0x20000
s_lshr_b32 s29, s{sTB}, 1
s_lshl_b32 s30, s{sRB64}, 1
s_add_u32 s30, s30, s29
s_mul_i32 s31, s30, 86
s_and_b32 s32, s{sTB}, 1
s_lshl_b32 s32, s32, 2
s_add_u32 s31, s31, s32
s_lshl_b32 s31, s31, 10
s_add_u32 s{sAOFF}, s31, {HF}
s_lshl_b32 s30, s30, 5
s_add_u32 s30, s30, s32
s_lshl_b32 s30, s30, 10
s_add_u32 s{sALT}, s30, {OF}
s_lshl_b32 s29, s29, 15
s_lshl_b32 s32, s32, 10
s_add_u32 s{sLOFF}, s29, s32
s_add_u32 s{sWL}, s{sLOFF}, 65536
s_lshl_b32 s{sWOFF}, s{sTB}, 15
s_mov_b32 s{sISS}, 0
""")
    def c_pieces(self, order="haw"):
        a = self.a; L = self.L; vS_ = self.cSRC; C4 = self.SRD_C
        out = []; pre = ""
        for part in order:
            if part == "H":
                out += self.c_pieces("h") ; continue
            if part == "h":
                lns = a.newlabel(L('ns'))
                pre = f"""s_cmp_lg_u32 s{sISS}, 11
s_cbranch_scc1 {lns}
s_mov_b32 s{sAOFF}, s{sALT}
s_lshl_b32 s{sWOFF}, s{sTB}, 15
s_mov_b32 s{C4}, s{pWO}
s_mov_b32 s{C4+1}, s{pWO+1}
s_mov_b32 s{C4+2}, {512*1024}
{lns}:
s_cmp_eq_u32 s{sISS}, 10
s_cselect_b32 s{sA2}, s{sTB}, 0
s_and_b32 s{sA2}, s{sA2}, 1
s_lshl_b32 s{sA2}, s{sA2}, 11
s_sub_u32 s{sA2}, s{sAOFF}, s{sA2}
s_and_b32 s{sTMP}, s{sISS}, 3
s_lshl_b32 s{sTMP}, s{sTMP}, 13
s_add_u32 s{sISS}, s{sISS}, 1
"""
            elif part == "a":
                for q in range(4):
                    t = pre; pre = ""
                    if q == 0: t += f"s_add_u32 m0, s{sTMP}, s{sLOFF}\ns_nop 0\n"
                    t += f"buffer_load_dwordx4 v{vL16}, s[{SRD_WS}:{SRD_WS+3}], s{sAOFF if q < 2 else sA2} offen offset:{q*1024} sc1 lds"
                    if q == 3: t += f"\ns_add_u32 s{sAOFF}, s{sAOFF}, 8192"
                    out.append(t)
            else:
                for q in range(4):
                    t = pre; pre = ""
                    if q == 0: t += f"s_add_u32 s{sWM}, s{sTMP}, s{sWL}\n"
                    t += f"s_mov_b32 m0, s{sWM}\ns_add_u32 s{sWM}, s{sWM}, 1024\n"
                    t += f"buffer_load_dwordx4 v{vS_}, s[{C4}:{C4+3}], s{sWOFF} offen lds\n"
                    t += f"s_add_u32 s{sWOFF}, s{sWOFF}, {8192 if q < 3 else 8192 + 96*1024}"
                    out.append(t)
        if pre: out.append(pre.rstrip())
        return out

    def pst(self):
        if "pst" in self.opt:
            a = self.a
            for slot, stg in enumerate(((0,11) if "pst2" in self.opt else (0,2,4,7,8,10,13)), 1):
                l = a.newlabel(self.L("ps"))
                a(f"s_cmp_lg_u32 s{sCST}, {stg}\ns_cbranch_scc1 {l}")
                a(f"s_memtime s[{70+2*slot}:{71+2*slot}]")
                a(f"{l}:")
    def phaseC(self):
        a = self.a; L = self.L; stamp = self.stamp
        vA, vW = self.cA, self.cW
        vA0, vW0, vAn, vWn = 227, 228, 229, 230
        ACCc = 16; AF = [32+4*i for i in range(8)]; WFr = [64+4*i for i in range(8)]; T = 96
        NST = 15
        a(f"s_cmp_eq_u32 s{sUH}, 0")
        a(f"s_cbranch_scc0 {L('cprod')}")
        a(f"""
s_lshr_b32 s29, s{sW}, 1
s_lshl_b32 s30, s{sRB64}, 1
s_add_u32 s30, s30, s29
s_lshl_b32 s30, s30, 15
s_and_b32 s31, s{sW}, 1
s_lshl_b32 s31, s31, 6
s_lshl_b32 s32, s{sCB}, 7
s_add_u32 s30, s30, s31
s_add_u32 s34, s30, s32
v_and_b32 v8, 31, v0
v_lshlrev_b32 v8, 10, v8
v_lshrrev_b32 v6, 5, v0
v_lshl_add_u32 v8, v6, 4, v8
buffer_load_dwordx4 v[{T}:{T+3}], v8, s[{SRD_X}:{SRD_X+3}], s34 offen
buffer_load_dwordx4 v[{T+4}:{T+7}], v8, s[{SRD_X}:{SRD_X+3}], s34 offen offset:32
s_lshl_b32 s29, s29, 15
v_add_u32 v{vA0}, s29, v{vL16}
v_lshrrev_b32 v5, 5, v0
v_lshlrev_b32 v5, 2, v5
v_bfe_u32 v6, v0, 2, 2
v_add_u32 v5, v5, v6
v_lshlrev_b32 v5, 7, v5
v_lshrrev_b32 v6, 1, v6
s_and_b32 s30, s{sW}, 1
v_xor_b32 v6, s30, v6
v_lshl_add_u32 v5, v6, 6, v5
v_bfe_u32 v6, v0, 4, 1
v_lshl_add_u32 v5, v6, 5, v5
v_and_b32 v6, 3, v0
v_lshl_add_u32 v5, v6, 3, v5
v_add_u32 v{vW0}, 65536, v5
v_mov_b32 v{vA}, v{vA0}
v_mov_b32 v{vW}, v{vW0}
s_lshr_b32 s29, s{sRB64}, 2
s_lshl_b32 s29, s29, 7
s_add_u32 s29, s29, {F3}
v_and_b32 v7, 31, v0
v_lshl_add_u32 v7, v7, 2, s29
""")
        for i in range(16): a(f"v_mov_b32 v{ACCc+i}, 0")
        def rd(j, ra, rw):
            a(f"ds_read_b128 {vr(AF[j],4)}, v{ra} offset:{j*1024}")
            a(f"ds_read_b64_tr_b16 {vr(WFr[j],2)}, v{rw} offset:{(j>>2)*32768+(j&3)*2048}")
            a(f"ds_read_b64_tr_b16 {vr(WFr[j]+2,2)}, v{rw} offset:{(j>>2)*32768+(j&3)*2048+1024}")
        a(f"s_mov_b32 s{sVER}, 0")
        a(f"s_mov_b32 s{sCST}, 0")
        if "pc0" in self.opt: a("s_setprio 1")
        a("s_barrier")
        for j in range(3): rd(j, vA, vW)
        a.label(L('cloop'))
        n1, n2, n3, n4 = L('c_n1'), L('c_n2'), L('c_n3'), L('c_n4')
        npoll, nchk = L('c_np'), L('c_nc')
        a(f"""
s_cmp_lg_u32 s{sCST}, {1 if "olate" in self.opt else 0}
s_cbranch_scc1 {n4}
s_waitcnt vmcnt(2)
{n4}:
s_add_u32 s29, s{sCST}, 1
s_and_b32 s29, s29, 3
s_lshl_b32 s29, s29, 13
v_add_u32 v{vAn}, s29, v{vA0}
v_add_u32 v{vWn}, s29, v{vW0}
s_cmp_lg_u32 s{sW}, 0
s_cbranch_scc1 {n2}
s_cmp_eq_u32 s{sVER}, 1
s_cbranch_scc1 {n2}
s_cmp_lt_u32 s{sCST}, 3
s_cbranch_scc1 {n2}
s_cmp_eq_u32 s{sCST}, 3
s_cbranch_scc1 {npoll}
s_waitcnt vmcnt(0)
v_cmp_ne_u32 vcc, s{sTAG}, v{vPOLL}
s_nop 4
s_cmp_eq_u64 vcc, 0
s_cbranch_scc0 {nchk}
s_mov_b32 s{sVER}, 1
""")
        if self.stamps:
            self.stamp(12); a(f"s_mov_b32 s69, s{sCST}")
        a(f"""
s_branch {n2}
{nchk}:
s_cmp_lt_u32 s{sCST}, 8
s_cbranch_scc1 {npoll}
""")
        self.poll_check(7, 2)
        if self.stamps: a(f"s_add_u32 s69, s{sSPIN}, 100")
        a(f"""
s_mov_b32 s{sVER}, 1
s_branch {n2}
{npoll}:
global_load_dword v{vPOLL}, v7, s[{SRD_WS}:{SRD_WS+1}] sc1
{n2}:
s_barrier
s_cmp_lg_u32 s{sCST}, {1 if "olate" in self.opt else 0}
s_cbranch_scc1 {n1}
s_lshl_b32 s29, s{sQB}, 7
s_lshl_b32 s30, s{sHD}, 2
s_add_u32 s29, s29, s30
s_add_u32 s29, s29, {F3}
""")
        self.signal(29)
        a(f"{n1}:")
        self.pst()
        if "cnocomp" not in self.opt:
            for j in range(8):
                a("s_waitcnt lgkmcnt(6)")
                a(mfma(ACCc, WFr[j], AF[j], ACCc))
                if j + 3 < 8: rd(j+3, vA, vW)
                else: rd(j-5, vAn, vWn)
        a(f"""
v_mov_b32 v{vA}, v{vAn}
v_mov_b32 v{vW}, v{vWn}
s_add_u32 s{sCST}, s{sCST}, 1
s_cmp_lt_u32 s{sCST}, {NST}
s_cbranch_scc1 {L('cloop')}
s_waitcnt lgkmcnt(0)
""")
        stamp(10)
        a("s_waitcnt vmcnt(0)")
        a.nop(9)
        for h_ in range(2):
            A_ = ACCc + 8*h_; Xr = T + 4*h_; U = T + 8
            for i in range(4): a(f"v_permlane32_swap_b32 v{A_+i}, v{A_+4+i}")
            for i in range(4):
                a(f"v_lshlrev_b32 v{U+2*i}, 16, v{Xr+i}")
                a(f"v_and_b32 v{U+2*i+1}, 0xffff0000, v{Xr+i}")
            for i in range(8): a(f"v_add_f32 v{A_+i}, v{A_+i}, v{U+i}")
            for i in range(4): a(f"v_cvt_pk_bf16_f32 v{Xr+i}, v{A_+2*i}, v{A_+2*i+1}")
            fl_ = "sc1" if "outsc1" in self.opt else ("nt" if "outnt" in self.opt else ("sc0 sc1" if "outsys" in self.opt else ""))
            a(f"buffer_store_dwordx4 v[{Xr}:{Xr+3}], v8, s[{SRD_WF}:{SRD_WF+3}], s34 offen offset:{32*h_} {fl_}")
        a(f"s_cmp_lg_u32 s2, 0")
        a(f"s_cbranch_scc1 {L('cdone')}")
        a(f"s_mov_b32 s29, {FW0}")
        self.signal(29)
        a(f"s_branch {L('cdone')}")
        a.label(L('cprod'))
        if "pc1" in self.opt: a("s_setprio 1")
        olate = "olate" in self.opt
        if not olate:
            for g_ in self.c_pieces(): a(g_)
        a(f"s_mov_b32 s{sCST}, 0")
        a("s_waitcnt vmcnt(9)")
        a("s_barrier")
        for g_ in self.c_pieces(): a(g_)
        for g_ in self.c_pieces("h"): a(g_)
        a.label(L('ploop'))
        a("s_waitcnt vmcnt(8)")
        a.label(L('pbar'))
        a("s_barrier")
        self.pst()
        if "cnodma" not in self.opt:
            for g_ in self.c_pieces("aw"): a(g_)
        for g_ in self.c_pieces("h"): a(g_)
        a(f"""
s_add_u32 s{sCST}, s{sCST}, 1
s_cmp_lt_u32 s{sCST}, {NST-3}
s_cbranch_scc1 {L('ploop')}
s_waitcnt vmcnt(8)
s_barrier
s_waitcnt vmcnt(0)
s_barrier
s_barrier
""")
        stamp(10)
        a.label(L('cdone'))

    def build(self):
        a = self.a; L = self.L
        self.prologue()
        a(f"s_cmp_eq_u32 s{sUH}, 0")
        a(f"s_cbranch_scc0 {L('uh1')}")
        self.phaseA(0)
        a(f"s_branch {L('join')}")
        a.label(L('uh1'))
        self.phaseA(1)
        a.label(L('join'))
        self.phaseB()
        self.phaseC()
        if self.stamps:
            a("s_waitcnt vmcnt(0)")
            self.stamp(11)
            a("s_memrealtime s[98:99]")
            a("s_waitcnt lgkmcnt(0)")
            for i in range(1,12): a(f"s_sub_u32 s{70+2*i}, s{70+2*i}, s70")
            a("s_sub_u32 s98, s98, s96")
            a("s_sub_u32 s94, s94, s70")
            a("s_mov_b32 s29, s96")
            a("s_mov_b32 s96, s94")
            a("s_mov_b32 s94, s29")
            a(f"""
s_lshl_b32 s29, s2, 3
s_add_u32 s29, s29, s{sW}
s_lshl_b32 s29, s29, 6
s_add_u32 s29, s29, 0xE00000
""")
            for i in range(1,12): a(f"v_mov_b32 v{7+i}, s{70+2*i}")
            a(f"""
v_mov_b32 v19, s98
v_mov_b32 v20, s96
v_mov_b32 v21, s94
v_mov_b32 v22, s69
v_mov_b32 v23, s101
v_mov_b32 v24, s29
s_mov_b64 exec, 1
global_store_dwordx4 v24, v[8:11], s[20:21]
global_store_dwordx4 v24, v[12:15], s[20:21] offset:16
global_store_dwordx4 v24, v[16:19], s[20:21] offset:32
global_store_dwordx4 v24, v[20:23], s[20:21] offset:48
""")
        a.label(L('bail'))
        a.label(L('end'))
        a("s_endpgm")
        return kernel_text(self.name, a.text(), vgpr=256, sgpr=(102 if self.stamps else 100))

HDR = open("parallel_sum__mha_block__glu_gated_swiglu__prompt.s.ref").read().split("; Override launch geometry")[0]
DOC = """;
;
;  A  workgroup (128 tokens, 3 x 32 columns of wqkv, 3 x (32+32) columns of w1/w3): bf16 MFMA GEMMs on the raw x rows; the layer norm
;     (mean, variance, var+eps and the square root are rounded to bf16 like the reference does). q is scaled by log2(e)/4.
;     2:4-sparse MFMA reading the upper halves of the fp32 P registers as bf16.
;
"""
def make(stamps=False, opt=(), name=KNAME):
    s = HDR + f"; @launch grid=(256,1,1) block=(512,1,1) lds={LDS_TOTAL}\n" + DOC
    s += '.amdgcn_target "amdgcn-amd-amdhsa--gfx950"\n'
    s += Gen(name, stamps, opt).build()
    return s
if __name__ == "__main__":
    open("pk.s","w").write(make())
```
